```python
import torch

def _softmax(x, axis=-1):
    return torch.softmax(x, dim=axis)

def _gelu(x):
    return torch.nn.functional.gelu(x, approximate='tanh')

def _silu(x):
    return torch.nn.functional.silu(x)

def _sigmoid(x):
    return torch.sigmoid(x)

def _layernorm(x, axis=-1, eps=1e-05):
    m = x.mean(dim=axis, keepdim=True)
    v = x.var(dim=axis, keepdim=True, unbiased=False)
    return (x - m) / torch.sqrt(v + eps)

def _scatter_add(tgt, idx, src, axis=0):
    return tgt.clone().index_add_(axis, idx, src)

def _segment_sum(src, seg, n):
    out = torch.zeros((n,) + src.shape[1:], dtype=src.dtype)
    return out.index_add_(0, seg, src)

def _pad(x, pw):
    flat = tuple((v for pair in reversed(pw) for v in pair))
    return torch.nn.functional.pad(x, flat)
kernel_name = 'adaLN_cond__grouped_kv_mqa__moe_arch_mod__prompt'

def setup_inputs():

    _w = lambda a: (lambda t: t.to(torch.bfloat16) if t.is_floating_point() else t)(torch.as_tensor(a))

    def _A_setup():
        B, S, D, H = (1, 2048, 640, 32)
        Dh = D // H
        return {'x': _w((lambda *s: torch.randn(*s, dtype=torch.bfloat16) * 0.05)(B, S, D)), 'wq': _w((lambda *s: torch.randn(*s, dtype=torch.bfloat16) * 0.05)(D, H * Dh)), 'wk': _w((lambda *s: torch.randn(*s, dtype=torch.bfloat16) * 0.05)(D, Dh)), 'wv': _w((lambda *s: torch.randn(*s, dtype=torch.bfloat16) * 0.05)(D, Dh)), 'wo': _w((lambda *s: torch.randn(*s, dtype=torch.bfloat16) * 0.05)(H * Dh, D))}
    _A_in = _A_setup()

    def _B_setup():
        B, S, D, F, C = (1, 2048, 640, 1728, 1)
        return {'x': _w((lambda *s: torch.randn(*s, dtype=torch.bfloat16) * 0.05)(B, S, D)), 'w_r': _w((lambda *s: torch.randn(*s, dtype=torch.bfloat16) * 0.05)(D)), 'w_gate': _w((lambda *s: torch.randn(*s, dtype=torch.bfloat16) * 0.05)(D, F)), 'w_up': _w((lambda *s: torch.randn(*s, dtype=torch.bfloat16) * 0.05)(D, F)), 'w_down': _w((lambda *s: torch.randn(*s, dtype=torch.bfloat16) * 0.05)(F, D))}
    _B_in = _B_setup()
    return {'A_x': _A_in['x'], 'A_wq': _A_in['wq'], 'A_wk': _A_in['wk'], 'A_wv': _A_in['wv'], 'A_wo': _A_in['wo'], 'B_x': _B_in['x'], 'B_w_r': _B_in['w_r'], 'B_w_gate': _B_in['w_gate'], 'B_w_up': _B_in['w_up'], 'B_w_down': _B_in['w_down'], 'c': _w((lambda *s: torch.randn(*s, dtype=torch.bfloat16) * 0.1)(1, 640) * 8.0), 'w_mod': _w((lambda *s: torch.randn(*s, dtype=torch.bfloat16) * 0.1)(640, 6 * 640) * 640 ** (-0.5) * 8.0)}

def reference(A_x, A_wq, A_wk, A_wv, A_wo, B_x, B_w_r, B_w_gate, B_w_up, B_w_down, c, w_mod):

    def _A_ref(x, wq, wk, wv, wo):
        B, S, D = x.shape
        H = 32
        Dh = D // H
        q = (lambda x, *d: x.permute(*d))((x @ wq).reshape(B, S, H, Dh), 0, 2, 1, 3)
        k = x @ wk
        v = x @ wv
        scores = torch.einsum('bhqd,bkd->bhqk', q, k) * Dh ** (-0.5)
        p = _softmax(scores, axis=-1)
        o = torch.einsum('bhqk,bkd->bhqd', p, v)
        return (lambda x, *d: x.permute(*d))(o, 0, 2, 1, 3).reshape(B, S, H * Dh) @ wo

    def _B_ref(x, w_r, w_gate, w_up, w_down):
        B, S, D = x.shape
        C = 1
        r = x @ w_r
        idx = torch.argsort(-r, axis=-1)[:, :C]
        idx_e = (lambda x, n, axis: torch.repeat_interleave(x, n, dim=axis))(idx.reshape(B, C, 1), D, axis=2)
        x_sel = (lambda x, i, axis: torch.take_along_dim(x, i, dim=axis))(x, idx_e, axis=1)
        g = _silu(x_sel @ w_gate)
        u = x_sel @ w_up
        y = g * u @ w_down
        r_sel = _sigmoid((lambda x, i, axis: torch.take_along_dim(x, i, dim=axis))(r, idx, axis=1))
        y = y * r_sel.reshape(B, C, 1)
        b_off = (torch.arange(B) * S).reshape(B, 1)
        flat_idx = (idx + b_off).reshape(B * C)
        zero = (x * 0.0).reshape(B * S, D)
        upd = _scatter_add(zero, flat_idx, y.reshape(B * C, D), axis=0)
        return x + upd.reshape(B, S, D)
    x = A_x
    mod = (_silu(c) @ w_mod).reshape(c.shape[0], 6, 1, -1)
    sa, ca, ga, sb, cb, gb = (mod[:, 0].clone(), mod[:, 1].clone(), mod[:, 2].clone(), mod[:, 3].clone(), mod[:, 4].clone(), mod[:, 5].clone())
    h = _layernorm(x, axis=-1) * (1 + ca) + sa
    x = x + ga * _A_ref(h, A_wq, A_wk, A_wv, A_wo)
    h = _layernorm(x, axis=-1) * (1 + cb) + sb
    x = x + gb * _B_ref(h, B_w_r, B_w_gate, B_w_up, B_w_down)
    return x
```

```python
import re

TRANS = ("v_exp_f32", "v_log_f32", "v_rcp_f32", "v_rsq_f32", "v_sqrt_f32", "v_sin_f32", "v_cos_f32",
         "v_exp_f16", "v_rcp_iflag_f32")

def mfma_info(op):
    if op.endswith("_f32") and op.startswith("v_mfma_f32") and ("x4_f32" in op or "x2_f32" in op):
        return ("sgemm", 8 if "16x16x4" in op else 16)
    if "_2b_" in op: return ("xdl", 16)
    if "_4b_" in op: return ("xdl", 8)
    if "32x32" in op: return ("xdl", 8)
    if "16x16" in op: return ("xdl", 4)
    raise ValueError(op)

REG_RE = re.compile(r"^(-|\|)?(abs\()?([vsa])(\d+|\[(\d+):(\d+)\])\)?\|?$")

def regs_of(tok):
    tok = tok.strip()
    if tok in ("vcc", "exec", "m0", "scc"): return {tok}
    if tok in ("vcc_lo", "vcc_hi"): return {"vcc"}
    if tok in ("exec_lo", "exec_hi"): return {"exec"}
    m = REG_RE.match(tok)
    if not m: return set()
    if m.group(5) is not None:
        return {f"{m.group(3)}{i}" for i in range(int(m.group(5)), int(m.group(6)) + 1)}
    return {f"{m.group(3)}{m.group(4)}"}

class Ins:
    def __init__(self, text):
        self.text = text
        body = text.split(";")[0].strip()
        self.label = body[:-1] if body.endswith(":") else None
        self.directive = body.startswith(".") and self.label is None
        self.op = None
        self.rd, self.wr = set(), set()
        self.kind = None
        if self.label or self.directive or not body: return
        parts = body.split(None, 1)
        op = parts[0]
        self.full_op = op
        for suf in ("_e32", "_e64", "_dpp", "_sdwa"):
            if op.endswith(suf): op = op[: -len(suf)]
        self.op = op
        rest = parts[1] if len(parts) > 1 else ""
        rest = re.sub(r"\s(op_sel|op_sel_hi|neg_lo|neg_hi|quad_perm):\[([^\]]*)\]", lambda m: " " + m.group(1) + ":" + m.group(2).replace(",", "_"), rest)
        toks = [t.strip() for t in rest.split(",")] if rest else []
        mods = ""
        if toks:
            last = toks[-1].split()
            if last:
                toks[-1] = last[0]; mods = " ".join(last[1:])
        self.toks, self.mods = toks, mods
        R = [regs_of(t) for t in toks]
        U = lambda xs: set().union(*xs) if xs else set()
        self.dpp = self.full_op.endswith("_dpp") or "row_" in mods or "quad_perm" in mods
        self.sdwa = self.full_op.endswith("_sdwa")
        self.states = 1
        if op.startswith("v_mfma") or op.startswith("v_smfmac"):
            self.kind = "mfma"; self.mclass, self.passes = mfma_info(op)
            self.D = R[0]; self.AB = R[1] | R[2]
            if op.startswith("v_smfmac"): self.C = R[0]; self.AB |= R[3]
            else: self.C = R[3]
            self.wr = R[0]; self.rd = self.AB | self.C
        elif op.startswith("v_"):
            self.kind = "valu"
            if op.startswith("v_permlane") and "swap" in op:
                self.wr = R[0] | R[1]; self.rd = R[0] | R[1]
            elif op in ("v_add_co_u32", "v_addc_co_u32", "v_sub_co_u32", "v_subb_co_u32", "v_mad_u64_u32"):
                self.wr = R[0] | R[1]; self.rd = U(R[2:])
            elif op == "v_nop": pass
            else:
                self.wr = R[0]; self.rd = U(R[1:])
                if op in ("v_fmac_f32", "v_dot2c_f32_bf16", "v_writelane_b32", "v_pk_fmac_f16") or self.dpp or \
                        (self.sdwa and "UNUSED_PRESERVE" in mods):
                    self.rd |= R[0]
            self.rd_sel = R[2] if op in ("v_readlane_b32", "v_writelane_b32") else set()
        elif op.startswith("buffer_") or op.startswith("global_"):
            self.kind = "vmem"
            self.lds = " lds" in " " + mods or "_lds_" in op
            self.store = "store" in op or ("atomic" in op and "sc0" not in mods)
            if op in ("buffer_wbl2", "buffer_inv"): self.store = True; self.data = set()
            elif self.lds: self.rd = U(R) | {"m0"}
            elif self.store:
                self.rd = U(R); self.data = R[0] if op.startswith("buffer_") else R[1]
            else:
                self.wr = R[0]; self.rd = U(R[1:])
        elif op.startswith("ds_"):
            self.kind = "ds"
            if "read" in op or "permute" in op or "swizzle" in op or "_rtn" in op:
                self.wr = R[0]; self.rd = U(R[1:])
            else: self.rd = U(R)
        elif op.startswith("s_load") or op in ("s_memtime", "s_memrealtime"):
            self.kind = "smem"; self.wr = R[0]; self.rd = U(R[1:])
        elif op.startswith("s_"):
            self.kind = "salu"
            if op == "s_nop": self.states = int(toks[0], 0) + 1
            elif op.startswith("s_cmp") or op.startswith("s_bitcmp"): self.rd = U(R); self.wr = {"scc"}
            elif op.startswith("s_cbranch") or op == "s_branch":
                self.target = toks[0]
                if "vcc" in op: self.rd = {"vcc"}
                if "exec" in op: self.rd = {"exec"}
            elif op in ("s_waitcnt", "s_barrier", "s_endpgm", "s_sleep", "s_setprio"): pass
            else:
                self.wr = R[0]; self.rd = U(R[1:])
                if "saveexec" in op: self.wr |= {"exec"}
        else:
            raise ValueError("unknown instruction: " + text)

def is_v(r): return r[0] in "va" and r != "vcc"
def is_s(r): return r == "vcc" or (r[0] == "s" and r != "scc")

def need(p, c):
    n = 0
    if p.kind == "valu":
        pv = {r for r in p.wr if is_v(r)}; ps = {r for r in p.wr if is_s(r)}
        if c.kind == "mfma" and pv & c.rd: n = max(n, 2)
        if c.kind == "valu":
            if p.op in TRANS and pv & (c.rd | c.wr) and c.op not in TRANS: n = max(n, 1)
            if c.dpp and pv & c.rd: n = max(n, 2)
            if c.op in ("v_readlane_b32", "v_readfirstlane_b32") and pv & c.rd: n = max(n, 1)
            if c.op.startswith("v_permlane") and pv & c.rd: n = max(n, 2)
            if ps & c.rd: n = max(n, 2)
            if ps & c.rd_sel: n = max(n, 4)
            if p.sdwa and pv & (c.rd | c.wr): n = max(n, 1)
            if p.op.startswith("v_dot") and pv & (c.rd | c.wr): n = max(n, 3)
        if p.op in TRANS and c.kind in ("vmem", "ds") and pv & c.rd: n = max(n, 1)
        if c.kind == "vmem" and ps & c.rd: n = max(n, 5)
        if c.kind in ("salu", "smem") and ps & c.rd: n = max(n, 1)
    elif p.kind == "mfma":
        i = {2: 0, 4: 1, 8: 2, 16: 3}[p.passes]
        full = (5, 8, 12, 20)[i] if p.mclass == "xdl" else (4, 6, 10, 18)[i]
        if c.kind == "mfma":
            if p.D & c.AB: n = max(n, full)
            if p.D & (c.C | c.D):
                same = p.D == c.C and p.passes == c.passes and p.mclass == c.mclass
                if same: n = max(n, 2 if p.passes == 2 else 0)
                elif p.D & c.C: n = max(n, (4, 6, 10, 18)[i])
                elif c.passes < p.passes: n = max(n, (4, 6, 10, 18)[i])
        elif c.kind in ("valu", "vmem", "ds"):
            if p.D & (c.rd | c.wr): n = max(n, full)
            if c.kind == "valu" and p.mclass == "xdl" and p.C & c.wr: n = max(n, (1, 3, 7, 15)[i])
    elif p.kind == "salu":
        if "m0" in p.wr and c.kind == "vmem" and c.lds: n = max(n, 1)
    elif p.kind == "vmem":
        if p.store and len(p.data) >= 3 and p.data & c.wr: n = max(n, 2)
    return n

class Asm:
    def __init__(self):
        self.lines = []
    def __call__(self, text):
        for ln in text.split("\n"):
            ln = ln.strip()
            if ln: self.lines.append(ln)
    def label(self, name): self.lines.append(name + ":")

def _cfg(ins):
    labels = {x.label: i for i, x in enumerate(ins) if x.label}
    preds = [[] for _ in ins]; succs = [[] for _ in ins]
    for i, x in enumerate(ins):
        if x.op not in ("s_branch", "s_endpgm") and i + 1 < len(ins):
            succs[i].append(i + 1); preds[i + 1].append(i)
        if x.op and (x.op == "s_branch" or x.op.startswith("s_cbranch")):
            t = labels[x.target]; succs[i].append(t); preds[t].append(i)
    return preds, succs

def insert_nops(lines, report=None):
    ins = [Ins(l) for l in lines]
    total = 0
    i = 0
    preds, _ = _cfg(ins)
    while i < len(ins):
        c = ins[i]
        if c.op:
            worst = 0; why = None
            stack = [(p, 0) for p in preds[i]]; seen = {}
            while stack:
                j, d = stack.pop()
                if d >= 20 or seen.get(j, 99) <= d: continue
                seen[j] = d
                p = ins[j]
                if p.op:
                    k = need(p, c) - d
                    if k > worst: worst, why = k, p
                    d2 = d + p.states
                else: d2 = d
                stack += [(q, d2) for q in preds[j]]
            if worst > 0:
                if report is not None: report.append((worst, why.text, c.text))
                total += worst
                new = []
                while worst > 0:
                    k = min(worst, 16); new.append(Ins(f"s_nop {k-1}")); worst -= k
                ins[i:i] = new; i += len(new)
                preds, _ = _cfg(ins)
        i += 1
    return [x.text for x in ins], total

def check_waits(lines, max_states=400000):
    ins = [Ins(l) for l in lines]
    _, succs = _cfg(ins)
    errors = {}
    seen = set(); stack = [(0, (), ())]; n = 0
    while stack:
        i, vm, lg = stack.pop()
        while True:
            x = ins[i]
            if x.label or len(succs[i]) > 1:
                key = (i, vm, lg)
                if key in seen: break
                seen.add(key); n += 1
                if n > max_states: raise RuntimeError("wait checker state explosion")
            if x.op:
                touched = x.rd | x.wr
                for q in (vm, lg):
                    for j in q:
                        if ins[j].wr & touched and not (j == i):
                            same_queue_waw = not (ins[j].wr & x.rd) and x.kind == ins[j].kind and x.kind in ("vmem", "ds")
                            if not same_queue_waw: errors[(i, j)] = (x.text, ins[j].text)
                if x.op == "s_waitcnt":
                    t = x.text.split(";")[0]
                    m = re.search(r"vmcnt\((\d+)\)", t)
                    if m:
                        k = int(m.group(1)); vm = vm[len(vm) - k:] if k < len(vm) and k > 0 else (() if k == 0 else vm)
                    m = re.search(r"lgkmcnt\((\d+)\)", t)
                    if m:
                        k = int(m.group(1))
                        if k == 0: lg = ()
                        elif not any(ins[j].kind == "smem" for j in lg) and k < len(lg): lg = lg[len(lg) - k:]
                elif x.kind == "vmem": vm = (vm + (i,))[-63:]
                elif x.kind in ("ds", "smem"): lg = (lg + (i,))[-40:]
            s = succs[i]
            if not s: break
            for t in s[1:]: stack.append((t, vm, lg))
            i = s[0]
    return list(errors.values())
```

```python
import sys, math, struct
from asmlib import Asm, insert_nops, check_waits

NAME = "adaLN_cond__grouped_kv_mqa__moe_arch_mod__prompt"
OPT = dict(stamps=False, force_slow=False, spin=1 << 17)

def f2u(x): return struct.unpack("<I", struct.pack("<f", x))[0]

WS_MODG = 0x1000
WS_KVF  = 0x9000
WS_OF   = 0x20000
WS_KV   = 0x40000
KVREC   = 5376
WS_OX   = 0x80000
WS_ST   = 0x300000
WS_WIN  = 0x380000
WS_H2   = 0x384000
WS_BASE = 0x3A0000
WS_ACT  = 0x3D0000
WS_DBG  = 0x1000000
L_W    = 0
L_WKV  = 102400
L_R2   = 128000
L_MODV = 152576
L_MISC = 157696
L_SIL  = L_MISC
L_P0P  = L_MISC + 1280
L_LN   = L_MISC + 1536
L_CNT  = L_MISC + 2560
L_VEC  = L_MISC + 2816
L_YP   = L_MISC + 4608
L_AX   = L_WKV
L_AL   = L_WKV + 36864
L_AM   = L_AL + 2048
L_OXC  = L_AM + 2048
LDS_BYTES = 163840
assert L_OXC + 12288 <= L_MISC and L_YP + 256 <= LDS_BYTES
C_P0, C_GA, C_GB, C_ADONE, C_WO, C_PAIR, C_Y = 0, 4, 8, 12, 16, 20, 36

X, WQ, WK, WV, WO, WR, WG, WU, WD, CC, WM, OUT, DBG, WS = (f"s[{i}:{i+1}]" for i in (8, 10, 12, 14, 16, 20, 22, 24, 26, 28, 30, 32, 34, 36))
def lo(p): return "s" + p[2:].split(":")[0]
def hi(p): return "s" + p[2:-1].split(":")[1]
sW, sW4, sWH, sRB, sCB, sTAG, sPASS, sGEN, sCG, sSPIN = (f"s{i}" for i in range(38, 48))
SRD = "s[48:51]"
T0, T1, T2 = "s[52:53]", "s[54:55]", "s[56:57]"
t0, t1, t2, t3, t4, t5 = (f"s{i}" for i in range(58, 64))
sSA, sC0, sWINR, sWINT, sSOFF, sLOOP, sSEND1, sSEND2, sSEND3, sBLK = (f"s{i}" for i in range(64, 74))
MK_N0, MK_LO, MK_A, MK_B = "s[74:75]", "s[76:77]", "s[78:79]", "s[80:81]"
sST = 84
vL, vN, vG = "v1", "v2", "v3"
def vr(a, n=1): return f"v{a}" if n == 1 else f"v[{a}:{a+n-1}]"

a = Asm()
_uid = [0]
def uid(p):
    _uid[0] += 1; return f"{p}_{_uid[0]}"

def stamp(i):
    if not OPT["stamps"]: return
    a(f"""s_memrealtime s[{sST}:{sST+1}]
          s_waitcnt lgkmcnt(0)
          v_writelane_b32 v0, s{sST}, {i}""")

def endpgm():
    if OPT["stamps"]:
        a(f"""s_mov_b64 exec, -1
              v_lshl_add_u32 v4, {vL}, 2, s{sST+2}
              global_store_dword v4, v0, {WS}""")
    a("s_endpgm")

def base_add(dst, src, off):
    a(f"s_add_u32 {lo(dst)}, {lo(src)}, {off}\ns_addc_u32 {hi(dst)}, {hi(src)}, 0")

def lds_signal(cnt, va, vb):
    a(f"""v_mov_b32 {va}, {cnt}
          v_mov_b32 {vb}, 1
          s_waitcnt lgkmcnt(0)
          s_mov_b64 exec, 1
          ds_add_u32 {va}, {vb} 
          s_mov_b64 exec, -1""")

def lds_wait(target, va, vb, sleep=0):
    L, E = uid("L_lw"), uid("L_lwe")
    a(f"s_mov_b32 {sSPIN}, {OPT['spin'] * 8}")
    a.label(L)
    a(f"""ds_read_b32 {vb}, {va}
          s_sub_u32 {sSPIN}, {sSPIN}, 1
          s_cbranch_scc1 {E}
          s_waitcnt lgkmcnt(0)
          v_readfirstlane_b32 {t5}, {vb}
          s_cmp_ge_u32 {t5}, {target}""")
    if sleep:
        a(f"s_cbranch_scc1 {E}\ns_sleep {sleep}\ns_branch {L}")
    else:
        a(f"s_cbranch_scc0 {L}")
    a.label(E)
    a("s_waitcnt lgkmcnt(0)")

def poll(loads, bad, sleep=0):
    L, E = uid("L_pl"), uid("L_ple")
    a(f"s_mov_b32 {sSPIN}, {OPT['spin']}")
    a.label(L)
    a(loads)
    a(f"""s_sub_u32 {sSPIN}, {sSPIN}, 1
          s_cbranch_scc1 {E}
          s_waitcnt vmcnt(0)""")
    a(bad)
    if sleep:
        a(f"s_cbranch_vccz {E}\ns_sleep {sleep}\ns_branch {L}")
    else:
        a(f"s_cbranch_vccnz {L}")
    a.label(E)
    a("s_waitcnt vmcnt(0)")

def unpack(dlo, dhi, src):
    a(f"v_lshlrev_b32 {dlo}, 16, {src}\nv_and_b32 {dhi}, 0xffff0000, {src}")

def w_dma_patterns(dst):
    for i in range(5):
        d = vr(dst + i)
        a(f"""v_add_u32 v4, {64*i}, {vL}
              v_mul_u32_u24 v5, 6554, v4
              v_lshrrev_b32 v5, 16, v5
              v_mul_u32_u24 v6, 10, v5
              v_sub_u32 v6, v4, v6
              v_and_b32 v7, 12, v5
              v_lshlrev_b32 v7, 1, v7
              v_and_or_b32 v7, v5, 3, v7
              v_lshrrev_b32 v5, 2, v5
              v_and_or_b32 v7, v5, 4, v7
              v_mul_u32_u24 v7, 1280, v7
              v_lshl_add_u32 {d}, v6, 4, v7""")

def w_dma(src, pat):
    a(f"""s_mul_i32 {t0}, {sW4}, {5*40960}
          s_mul_i32 {t1}, {sCB}, 160
          s_add_u32 {t0}, {t0}, {t1}
          s_add_u32 {lo(T0)}, {lo(src)}, {t0}
          s_addc_u32 {hi(T0)}, {hi(src)}, 0
          s_mul_i32 {t2}, {sW4}, {5*5120}""")
    for st in range(5):
        for i in range(5):
            a(f"s_add_u32 m0, {t2}, {L_W + st*5120 + i*1024}\nglobal_load_lds_dwordx4 {vr(pat+i)}, {T0}")
        if st < 4: base_add(T0, T0, 40960)

def prologue():
    XR = 16
    a(f"""s_cmp_ge_u32 s2, 256
          s_cbranch_scc1 L_exit
          s_load_dwordx16 s[8:23], s[0:1], 0
          s_load_dwordx8 s[24:31], s[0:1], 64
          s_load_dwordx4 s[32:35], s[0:1], 96
          s_load_dwordx2 s[36:37], s[0:1], 112
          v_and_b32 {vL}, 63, v0
          v_lshrrev_b32 v4, 6, v0
          v_and_b32 {vN}, 15, v0
          v_readfirstlane_b32 {sW}, v4
          v_lshrrev_b32 {vG}, 4, {vL}
          s_and_b32 {t0}, s2, 7
          s_lshr_b32 {t1}, s2, 3
          s_and_b32 {sCB}, {t1}, 7
          s_lshr_b32 {t1}, {t1}, 3
          s_lshl_b32 {t0}, {t0}, 2
          s_add_u32 {sRB}, {t0}, {t1}
          s_and_b32 {sW4}, {sW}, 3
          s_lshr_b32 {sWH}, {sW}, 2
          s_lshl_b32 {sBLK}, {sRB}, 3
          s_add_u32 {sBLK}, {sBLK}, {sCB}
          v_cmp_eq_u32 {MK_N0}, 0, {vN}
          s_mov_b32 {lo(MK_LO)}, -1
          s_mov_b32 {hi(MK_LO)}, 0
          s_lshl_b32 {t0}, {sRB}, 6
          s_lshl_b32 {t1}, {sW4}, 4
          s_add_u32 {t0}, {t0}, {t1}
          v_add_u32 v8, {t0}, {vN}
          v_mul_u32_u24 v8, 1280, v8
          s_mul_i32 {t1}, {sWH}, 640
          v_lshl_add_u32 v8, {vG}, 4, v8
          v_add_u32 v8, {t1}, v8""")
    if OPT["stamps"]:
        a(f"""s_lshl_b32 s{sST+2}, s2, 3
              s_add_u32 s{sST+2}, s{sST+2}, {sW}
              s_lshl_b32 s{sST+2}, s{sST+2}, 8
              s_add_u32 s{sST+2}, s{sST+2}, {WS_DBG}
              v_mov_b32 v0, 0""")
        stamp(31)
    a(f"""s_cmp_lg_u32 {sWH}, 0
          s_cbranch_scc1 L_proQ""")
    a(f"""s_setprio 1
          s_min_u32 {t3}, s2, 239
          v_min_u32 v9, 39, {vL}
          s_mul_i32 {t0}, {sW4}, 320
          v_lshl_add_u32 v9, v9, 3, {t0}
          v_lshrrev_b32 v10, 1, {vL}
          s_mul_i32 {t1}, {sW4}, 160
          v_add_u32 v10, {t1}, v10
          v_mul_u32_u24 v10, 7680, v10
          v_and_b32 v11, 1, {vL}
          v_lshl_add_u32 v10, v11, 4, v10
          s_lshl_b32 {t1}, {t3}, 5
          v_add_u32 v10, {t1}, v10
          s_mul_i32 {t2}, {sW4}, 5120
          s_waitcnt lgkmcnt(0)
          s_load_dword {sTAG}, {WS}, 0
          global_load_dwordx2 v[12:13], v9, {CC}""")
    for i in range(5):
        a(f"s_add_u32 m0, {t2}, {L_R2 + i*1024}\nglobal_load_lds_dwordx4 v10, {WM}")
        if i < 4: a(f"v_add_u32 v10, 245760, v10")
    for s in range(10):
        a(f"global_load_dwordx4 {vr(XR+4*s,4)}, v8, {X} offset:{64*s}")
    a(f"""s_bitcmp1_b32 {sCB}, 0
          s_cselect_b64 {T0}, {WV}, {WK}
          v_lshlrev_b32 v10, 4, {vL}
          s_mul_i32 {t0}, {sW4}, 7""")
    for i in range(7):
        a(f"""s_add_u32 {t1}, {t0}, {i}
              s_min_u32 {t1}, {t1}, 24
              s_lshl_b32 {t1}, {t1}, 10
              v_add_u32 v11, {t1}, v10
              s_add_u32 m0, {t1}, {L_WKV}
              global_load_lds_dwordx4 v11, {T0}""")
    a(f"""v_mov_b32 v4, 0
          v_lshlrev_b32 v5, 2, {vN}
          v_add_u32 v5, {L_CNT}, v5
          ds_write_b32 v5, v4
          s_waitcnt lgkmcnt(0)
          s_barrier""")
    stamp(0)
    nst = 0
    a(f"s_waitcnt vmcnt({22 + nst})")
    unpack("v56", "v57", "v12"); unpack("v58", "v59", "v13")
    for i in range(4): a(f"v_mul_f32 v{60+i}, {hex(f2u(-math.log2(math.e)))}, v{56+i}")
    for i in range(4): a(f"v_exp_f32 v{60+i}, v{60+i}")
    for i in range(4): a(f"v_add_f32 v{60+i}, 1.0, v{60+i}")
    for i in range(4): a(f"v_rcp_f32 v{60+i}, v{60+i}")
    for i in range(4): a(f"v_mul_f32 v{60+i}, v{56+i}, v{60+i}")
    a(f"""v_cvt_pk_bf16_f32 v12, v60, v61
          v_cvt_pk_bf16_f32 v13, v62, v63
          v_add_u32 v9, {L_SIL}, v9
          ds_write_b64 v9, v[12:13]
          s_mul_i32 {t0}, {sW4}, 320
          s_add_u32 {t0}, {t0}, {L_SIL}
          v_lshl_add_u32 v9, {vG}, 4, {t0}
          v_lshlrev_b32 v10, 8, {vG}
          v_lshl_add_u32 v10, {vN}, 3, v10
          s_add_u32 {t2}, {t2}, {L_R2}
          v_add_u32 v10, {t2}, v10
          s_waitcnt lgkmcnt(0)""")
    for i in range(5): a(f"ds_read_b128 {vr(56+4*i,4)}, v9 offset:{64*i}")
    a(f"s_waitcnt vmcnt({17 + nst})")
    for i in range(5):
        a(f"ds_read_b64_tr_b16 {vr(76+4*i,2)}, v10 offset:{1024*i}\nds_read_b64_tr_b16 {vr(78+4*i,2)}, v10 offset:{1024*i+128}")
    for i in range(5):
        a(f"s_waitcnt lgkmcnt({8-2*i})")
        a(f"v_mfma_f32_16x16x32_bf16 v[96:99], {vr(76+4*i,4)}, {vr(56+4*i,4)}, {'0' if i == 0 else 'v[96:99]'}")
    a(f"""s_lshl_b32 {t0}, {sW4}, 6
          s_add_u32 {t0}, {t0}, {L_P0P}
          v_lshl_add_u32 v9, {vG}, 4, {t0}
          s_mul_i32 {sTAG}, {sTAG}, 1664525
          s_add_u32 {sTAG}, {sTAG}, 1013904223
          s_cmp_eq_u32 {sW4}, 0
          s_cbranch_scc1 L_p0fin
          ds_write_b128 v9, v[96:99]""")
    lds_signal(L_CNT + C_P0, "v4", "v5")
    a("s_branch L_ln")
    a.label("L_p0fin")
    a(f"v_mov_b32 v4, {L_CNT + C_P0}")
    lds_wait(3, "v4", "v5")
    a(f"""ds_read_b128 v[56:59], v9 offset:64
          ds_read_b128 v[60:63], v9 offset:128
          ds_read_b128 v[64:67], v9 offset:192
          s_lshl_b32 {t0}, s2, 7
          s_add_u32 {t0}, {t0}, {WS_MODG}
          v_lshl_add_u32 v9, {vG}, 4, {t0}
          v_mov_b32 v69, {sTAG}
          v_mov_b32 v71, {sTAG}
          s_waitcnt lgkmcnt(0)
          v_pk_add_f32 v[96:97], v[96:97], v[56:57]
          v_pk_add_f32 v[98:99], v[98:99], v[58:59]
          v_pk_add_f32 v[60:61], v[60:61], v[64:65]
          v_pk_add_f32 v[62:63], v[62:63], v[66:67]
          v_pk_add_f32 v[96:97], v[96:97], v[60:61]
          v_pk_add_f32 v[98:99], v[98:99], v[62:63]
          v_cvt_pk_bf16_f32 v68, v96, v97
          v_cvt_pk_bf16_f32 v70, v98, v99
          s_cmp_ge_u32 s2, 240
          s_cbranch_scc1 L_ln
          s_mov_b64 exec, {MK_N0}
          global_store_dwordx4 v9, v[68:71], {WS} sc1
          s_mov_b64 exec, -1
          s_branch L_ln""")
    a.label("L_proQ")
    a(f"s_waitcnt lgkmcnt(0)\ns_load_dword {sTAG}, {WS}, 0")
    for s in range(10):
        a(f"global_load_dwordx4 {vr(XR+4*s,4)}, v8, {X} offset:{64*s}")
    w_dma_patterns(9)
    w_dma(WQ, 9)
    a(f"""s_lshl_b32 {t0}, {sRB}, 1
          s_and_b32 {t1}, {sW4}, 1
          s_add_u32 {t0}, {t0}, {t1}
          s_mul_i32 {t1}, {t0}, 1280
          s_mul_i32 {t2}, {sCB}, 160
          s_add_u32 {t1}, {t1}, {t2}
          s_lshl_b32 {t2}, {t1}, 1
          s_add_u32 {t1}, {t1}, {WS_H2}
          s_add_u32 {t2}, {t2}, {WS_BASE - 160}
          v_min_u32 v4, 29, {vL}
          v_mov_b32 v5, {t1}
          v_mov_b32 v6, {t2}
          v_cmp_gt_u32 vcc, 10, v4
          v_cndmask_b32 v5, v6, v5, vcc
          v_lshl_add_u32 v5, v4, 4, v5
          s_lshl_b32 {t0}, s2, 6
          s_add_u32 {t0}, {t0}, {WS_ACT}
          v_mov_b32 v6, {t0}
          s_cmp_ge_u32 {sW4}, 2
          s_cselect_b64 vcc, -1, 0
          v_cndmask_b32 v5, v5, v6, vcc
          v_mov_b32 v12, -1
          v_mov_b32 v13, -1
          v_mov_b32 v14, -1
          v_mov_b32 v15, -1
          global_store_dwordx4 v5, v[12:15], {WS} sc1
          s_waitcnt lgkmcnt(0)
          s_mul_i32 {sTAG}, {sTAG}, 1664525
          s_add_u32 {sTAG}, {sTAG}, 1013904223
          s_barrier""")
    stamp(0)
    a(f"s_waitcnt vmcnt({26 + nst})\ns_branch L_ln2")

def layernorm1():
    XR, NR = 16, 56
    a.label("L_ln")
    a("s_waitcnt vmcnt(7)")
    a.label("L_ln2")
    stamp(1)
    for i in range(4): a(f"v_mov_b32 v{136+i}, 0x3f803f80")
    for s in range(10):
        c1, c2 = ("0", "0") if s == 0 else ("v[140:143]", "v[144:147]")
        a(f"v_mfma_f32_16x16x32_bf16 v[140:143], v[136:139], {vr(XR+4*s,4)}, {c1}")
        a(f"v_mfma_f32_16x16x32_bf16 v[144:147], {vr(XR+4*s,4)}, {vr(XR+4*s,4)}, {c2}")
        unpack(vr(NR+8*s), vr(NR+8*s+1), vr(XR+4*s)); unpack(vr(NR+8*s+2), vr(NR+8*s+3), vr(XR+4*s+1))
    a(f"""v_and_b32 v4, 3, {vN}
          v_lshrrev_b32 v5, 2, {vN}
          v_cmp_eq_u32 {MK_A}, v5, {vG}
          s_lshl_b32 {t0}, {sW}, 7
          s_add_u32 {t0}, {t0}, {L_LN}
          v_lshl_add_u32 v6, {vN}, 3, {t0}
          v_cmp_eq_u32 vcc, 1, v4
          v_cndmask_b32 v141, v144, v145, vcc
          v_cmp_eq_u32 vcc, 2, v4
          v_cndmask_b32 v141, v141, v146, vcc
          v_cmp_eq_u32 vcc, 3, v4
          v_cndmask_b32 v141, v141, v147, vcc
          s_mov_b64 exec, {MK_A}
          ds_write_b64 v6, v[140:141]
          s_mov_b64 exec, -1
          s_lshl_b32 {t0}, {sW4}, 7
          s_add_u32 {t0}, {t0}, {L_LN}
          v_lshl_add_u32 v6, {vN}, 3, {t0}""")
    for s in range(10):
        unpack(vr(NR+8*s+4), vr(NR+8*s+5), vr(XR+4*s+2)); unpack(vr(NR+8*s+6), vr(NR+8*s+7), vr(XR+4*s+3))
    a(f"""s_waitcnt lgkmcnt(0)
          s_barrier
          ds_read_b64 v[8:9], v6
          ds_read_b64 v[10:11], v6 offset:512
          s_waitcnt lgkmcnt(0)
          v_pk_add_f32 v[8:9], v[8:9], v[10:11]
          v_mul_f32 v8, {hex(f2u(1/640))}, v8
          v_mul_f32 v9, {hex(f2u(1/640))}, v9
          v_fma_f32 v9, -v8, v8, v9
          v_max_f32 v9, 0, v9
          v_add_f32 v9, {hex(f2u(1e-5))}, v9
          v_rsq_f32 v10, v9
          v_mul_f32 v8, -1.0, v8
          v_mul_f32 v12, v8, v10""")
    for i in range(40):
        a(f"v_pk_fma_f32 {vr(NR+2*i,2)}, {vr(NR+2*i,2)}, v[10:11], v[12:13] op_sel_hi:[1,0,0]")

NR, ACC, WF, AS, HF = 56, 136, 160, 16, 48
def wq_reads(s):
    r = WF + 24 * (s % 4)
    out = []
    for t in range(5):
        for j in range(2):
            out.append(f"ds_read_b64_tr_b16 {vr(r+4*t+2*j,2)}, v8 offset:{s*5120 + j*2560 + 8*t}")
    for j in range(2):
        out.append(f"ds_read_b64_tr_b16 {vr(r+20+2*j,2)}, v9 offset:{s*1280 + j*160}")
    return out
def as_reads(s):
    r = AS + 16 * (s % 2)
    return [f"ds_read_b128 {vr(r,4)}, v10 offset:{2560 + s*128}", f"ds_read_b128 {vr(r+4,4)}, v10 offset:{2560 + s*128 + 16}",
            f"ds_read_b128 {vr(r+8,4)}, v10 offset:{s*128}", f"ds_read_b128 {vr(r+12,4)}, v10 offset:{s*128 + 16}"]

def qkv():
    a(f"""v_mul_u32_u24 v8, 40, {vL}
          s_mul_i32 {t0}, {sWH}, 51200
          v_add_u32 v8, {t0}, v8
          v_lshrrev_b32 v4, 2, {vN}
          v_lshl_add_u32 v4, {vG}, 3, v4
          v_mul_u32_u24 v9, 40, v4
          v_and_b32 v4, 3, {vN}
          v_lshlrev_b32 v4, 3, v4
          s_bitcmp1_b32 {sCB}, 1
          s_cselect_b64 vcc, -1, 0
          v_cndmask_b32 v4, v4, 32, vcc
          s_mul_i32 {t0}, {sWH}, 12800
          s_add_u32 {t0}, {t0}, {L_WKV}
          v_add3_u32 v9, v9, v4, {t0}
          s_mul_i32 {t0}, {sWH}, 1280
          s_add_u32 {t0}, {t0}, {L_MODV}
          v_lshl_add_u32 v10, {vG}, 5, {t0}
          s_waitcnt vmcnt(0)
          s_barrier""")
    stamp(2)
    for s in range(4): a("\n".join(wq_reads(s)))
    a(f"""s_cmp_ge_u32 {sW}, 5
          s_cbranch_scc1 L_modok
          v_lshl_add_u32 v7, {sW}, 6, {vL}
          v_lshrrev_b32 v4, 2, v7
          v_lshlrev_b32 v4, 7, v4
          v_and_b32 v5, 3, v7
          v_lshl_add_u32 v4, v5, 4, v4
          v_add_u32 v4, {WS_MODG}, v4
          v_lshlrev_b32 v5, 4, v7
          v_add_u32 v5, {L_MODV}, v5
          v_cmp_le_u32 vcc, 160, v7
          v_cndmask_b32 v6, 0, 1.0, vcc""")
    poll(f"global_load_dwordx4 v[16:19], v4, {WS} sc1",
         f"v_cmp_ne_u32 vcc, {sTAG}, v17\nv_cmp_ne_u32 {T0}, {sTAG}, v19\ns_or_b64 vcc, vcc, {T0}")
    unpack("v20", "v21", "v16"); unpack("v22", "v23", "v18")
    a("""v_pk_add_f32 v[20:21], v[20:21], v[6:7] op_sel_hi:[1,0]
         v_pk_add_f32 v[22:23], v[22:23], v[6:7] op_sel_hi:[1,0]
         v_cvt_pk_bf16_f32 v16, v20, v21
         v_cvt_pk_bf16_f32 v18, v22, v23""")
    unpack("v20", "v21", "v16"); unpack("v22", "v23", "v18")
    a("ds_write_b128 v5, v[20:23]")
    a.label("L_modok")
    a("s_waitcnt lgkmcnt(0)\ns_barrier")
    stamp(3)
    a("\n".join(as_reads(0)))
    a(f"s_bitcmp1_b32 {sCB}, 0\ns_cbranch_scc1 L_kloopV")
    for typ in "KV":
        if typ == "V": a.label("L_kloopV")
        for s in range(10):
            r, h, w = AS + 16 * (s % 2), HF + 4 * (s % 2), WF + 24 * (s % 4)
            if s < 9: a("\n".join(as_reads(s + 1)))
            a(f"s_waitcnt lgkmcnt({4 if s < 9 else 0})")
            for i in range(4):
                a(f"v_pk_fma_f32 {vr(NR+8*s+2*i,2)}, {vr(NR+8*s+2*i,2)}, {vr(r+2*i,2)}, {vr(r+8+2*i,2)}")
            for i in range(4):
                a(f"v_cvt_pk_bf16_f32 {vr(h+i)}, {vr(NR+8*s+2*i)}, {vr(NR+8*s+2*i+1)}")
            for t in (5, 0, 1, 2, 3, 4):
                c = "0" if s == 0 else vr(ACC+4*t, 4)
                A, B = vr(w+4*t, 4), vr(h, 4)
                if t == 5 and typ == "V": A, B = B, A
                a(f"v_mfma_f32_16x16x32_bf16 {vr(ACC+4*t,4)}, {A}, {B}, {c}")
            if s + 4 < 10: a("\n".join(wq_reads(s + 4)))
        if typ == "K": a("s_branch L_kdone")
    a.label("L_kdone")
    stamp(4)
    a(f"""s_mul_i32 {t0}, {sW}, 3072
          s_add_u32 {t0}, {t0}, {L_R2}
          v_lshl_add_u32 v4, {vL}, 4, {t0}
          s_xor_b32 {t0}, {sW}, 4
          s_mul_i32 {t0}, {t0}, 3072
          s_add_u32 {t0}, {t0}, {L_R2}
          v_lshl_add_u32 v5, {vL}, 4, {t0}
          s_lshr_b32 {t0}, {sW4}, 1
          s_mul_i32 {t0}, {t0}, 5120
          s_and_b32 {t1}, {sW4}, 1
          s_add_u32 {t0}, {t0}, {L_WKV}
          v_mul_u32_u24 v6, 1280, {vG}
          v_add_u32 v6, {t0}, v6
          v_lshl_add_u32 v7, {t1}, 4, {vN}
          s_mov_b32 {lo(T1)}, {hex(f2u(math.log2(math.e) / math.sqrt(20)))}
          s_cmp_lg_u32 {sWH}, 0
          s_cbranch_scc1 L_ex1""")
    for kh, (keep, send) in enumerate((((0, 1, 4), (2, 3, 5)), ((2, 3, 5), (0, 1, 4)))):
        if kh: a.label("L_ex1")
        for i, t in enumerate(send): a(f"ds_write_b128 v4, {vr(ACC+4*t,4)} offset:{1024*i}")
        if kh:
            a(f"""s_lshr_b32 {t0}, {sW4}, 1
                  v_lshrrev_b32 v9, 1, {vG}
                  v_and_b32 v10, 1, {vG}
                  s_mov_b64 {MK_A}, -1
                  s_mov_b64 {MK_B}, 0
                  v_mov_b32 v12, 0x3f803f80
                  v_mov_b32 v13, 0x3f803f80
                  s_bitcmp1_b32 {sCB}, 0
                  s_cbranch_scc1 L_kvaV
                  s_bitcmp1_b32 {sCB}, 1
                  s_cbranch_scc1 L_kvaKr
                  s_lshl_b32 {t0}, {t0}, 10
                  v_lshl_add_u32 v8, v9, 9, {t0}
                  v_lshl_add_u32 v8, v7, 4, v8
                  v_lshl_add_u32 v8, v10, 3, v8
                  s_branch L_kvaE""")
            a.label("L_kvaKr")
            a(f"""s_lshl_b32 {t0}, {t0}, 3
                  s_add_u32 {t0}, {t0}, 2048
                  v_lshl_add_u32 v8, v7, 4, {t0}
                  v_lshlrev_b32 v9, 3, {vN}
                  v_add_u32 v9, 2560, v9
                  s_mov_b64 {MK_B}, 0x30000
                  s_mov_b64 {MK_A}, 0x3ffff
                  v_cndmask_b32 v8, v8, v9, {MK_B}
                  v_mov_b32 v13, 0x3f80
                  s_branch L_kvaE""")
            a.label("L_kvaV")
            a(f"""s_mul_i32 {t0}, {sW4}, 672
                  s_add_u32 {t0}, {t0}, 2688
                  v_mul_u32_u24 v8, 336, v9
                  v_lshl_add_u32 v8, {vN}, 4, v8
                  v_lshl_add_u32 v8, v10, 3, v8
                  v_add_u32 v8, {t0}, v8
                  s_bitcmp1_b32 {sCB}, 1
                  s_cbranch_scc0 L_kvaE
                  v_add_u32 v8, 256, v8
                  v_cmp_ge_u32 {MK_A}, 4, {vN}
                  v_cmp_eq_u32 {MK_B}, 4, {vN}""")
            a.label("L_kvaE")
            a(f"""s_mul_i32 {t0}, {sRB}, {KVREC}
                  s_add_u32 {t0}, {t0}, {WS_KV}
                  v_add_u32 v8, {t0}, v8""")
        a("s_waitcnt lgkmcnt(0)\ns_barrier")
        order = (2, 0, 1) if kh else (0, 1, 2)
        for i in order: a(f"ds_read_b128 {vr(16+4*i,4)}, v5 offset:{1024*i}")
        a(f"v_lshl_add_u32 v9, v7, 4, v6")
        if kh:
            r = ACC + 20
            a(f"""s_waitcnt lgkmcnt(2)
                  v_pk_add_f32 {vr(r,2)}, {vr(r,2)}, v[24:25]
                  v_pk_add_f32 {vr(r+2,2)}, {vr(r+2,2)}, v[26:27]
                  v_cvt_pk_bf16_f32 v14, {vr(r)}, {vr(r+1)}
                  v_cvt_pk_bf16_f32 v15, {vr(r+2)}, {vr(r+3)}
                  v_cndmask_b32 v14, v14, v12, {MK_B}
                  v_cndmask_b32 v15, v15, v13, {MK_B}
                  s_cmp_ge_u32 {sCB}, 4
                  s_cbranch_scc1 L_nokv
                  s_mov_b64 exec, {MK_A}
                  global_store_dwordx2 v8, v[14:15], {WS} sc1
                  s_mov_b64 exec, -1""")
            a.label("L_nokv")
        else:
            a("v_lshl_add_u32 v10, v7, 3, v6")
        a("s_waitcnt lgkmcnt(0)")
        for i, t in enumerate(keep[:2] if kh else keep):
            r = ACC + 4 * t
            a(f"""v_pk_add_f32 {vr(r,2)}, {vr(r,2)}, {vr(16+4*i,2)}
                  v_pk_add_f32 {vr(r+2,2)}, {vr(r+2,2)}, {vr(18+4*i,2)}
                  v_pk_mul_f32 {vr(r,2)}, {vr(r,2)}, {T1} op_sel_hi:[1,0]
                  v_pk_mul_f32 {vr(r+2,2)}, {vr(r+2,2)}, {T1} op_sel_hi:[1,0]
                  v_cvt_pk_bf16_f32 {vr(28+2*i)}, {vr(r)}, {vr(r+1)}
                  v_cvt_pk_bf16_f32 {vr(29+2*i)}, {vr(r+2)}, {vr(r+3)}""")
        a(f"ds_write_b128 v9, v[28:31] offset:{512*kh}")
        if not kh: a("ds_write_b64 v10, v[32:33] offset:1024\ns_branch L_exd")
    a.label("L_exd")
    a(f"""s_waitcnt vmcnt(0) lgkmcnt(0)
          s_barrier
          s_cmp_lg_u32 {sW}, 4
          s_cbranch_scc1 L_noflag
          s_lshl_b32 {t0}, {sBLK}, 7
          s_add_u32 {t0}, {t0}, {WS_KVF}
          v_mov_b32 v4, {t0}
          v_mov_b32 v5, {sTAG}
          s_mov_b64 exec, 1
          global_store_dword v4, v5, {WS} sc1
          s_mov_b64 exec, -1""")
    a.label("L_noflag")
    stamp(5)

QA, QB, KVB, SB, OA = 16, 32, 40, 96, 160
vKA, vKB, vV, vIDX = "v8", "v9", "v10", "v11"
def kvreg(p):
    b = KVB + 28 * p
    return dict(KA=(b, b + 4), KB=b + 8, V=((b + 12, b + 16), (b + 20, b + 24)))
def ld_ka(p, T, so): return f"buffer_load_dwordx4 {vr(kvreg(p)['KA'][T],4)}, {vKA}, {SRD}, {so} offen offset:{1024*T} sc1"
def ld_kb(p, so): return f"buffer_load_dwordx4 {vr(kvreg(p)['KB'],4)}, {vKB}, {SRD}, {so} offen sc1"
def ld_v(p, T, j, so): return f"buffer_load_dwordx4 {vr(kvreg(p)['V'][T][j],4)}, {vV}, {SRD}, {so} offen offset:{1344*T + 672*j} sc1"
def q8(p, T, j): return f"v_mfma_f32_32x32x8bf16_1k {vr(SB+16*j,16)}, {vr(kvreg(p)['KB']+2*T,2)}, {vr(QB+2*j,2)}, 0"
def q16(p, T, j): return f"v_mfma_f32_32x32x16_bf16 {vr(SB+16*j,16)}, {vr(kvreg(p)['KA'][T],4)}, {vr(QA+4*j,4)}, {vr(SB+16*j,16)}"
def pv(p, T, j, h): return f"v_smfmac_f32_32x32x32_bf16 {vr(OA+16*j,16)}, {vr(kvreg(p)['V'][T][h],4)}, {vr(SB+16*j+8*h,8)}, {vIDX}"

def attention():
    a(f"""s_mul_i32 {t0}, {sWH}, 5120
          s_add_u32 {t0}, {t0}, {L_WKV}
          v_lshl_add_u32 v4, {vL}, 4, {t0}
          v_lshl_add_u32 v5, {vL}, 3, {t0}""")
    for j in range(8): a(f"v_mov_b32 {vr(QB+j)}, 0")
    for j in range(4):
        a(f"""s_add_u32 {t0}, {sW4}, {j}
              s_and_b32 {t0}, {t0}, 3
              s_mul_i32 {t1}, {t0}, 1280
              v_add_u32 v6, {t1}, v4
              v_add_u32 v7, {t1}, v5
              ds_read_b128 {vr(QA+4*j,4)}, v6
              s_mov_b64 exec, {MK_LO}
              ds_read_b64 {vr(QB+2*j,2)}, v7 offset:1024
              s_mov_b64 exec, -1""")
        if j: a(f"s_mul_i32 {(sSEND1, sSEND2, sSEND3)[j-1]}, {t0}, 9216")
    a(f"""v_lshlrev_b32 {vKA}, 4, {vL}
          v_min_u32 {vKB}, 32, {vL}
          v_lshlrev_b32 {vKB}, 4, {vKB}
          v_add_u32 {vKB}, 2048, {vKB}
          v_lshrrev_b32 v4, 5, {vL}
          v_and_b32 v5, 31, {vL}
          v_mul_u32_u24 {vV}, 336, v4
          v_lshl_add_u32 {vV}, v5, 4, {vV}
          v_add_u32 {vV}, 2688, {vV}
          v_mov_b32 v6, 0x40000000
          v_cmp_gt_u32 vcc, 21, v5
          v_cndmask_b32 {vV}, v6, {vV}, vcc
          v_mov_b32 {vIDX}, 0xdddddddd
          s_add_u32 s48, {lo(WS)}, {WS_KV}
          s_addc_u32 s49, {hi(WS)}, 0
          s_mov_b32 s50, {32*KVREC}
          s_mov_b32 s51, 0x20000
          s_mov_b32 {sPASS}, 0
          s_mov_b32 {sGEN}, 0
          s_cmp_lg_u32 {sWH}, 0
          s_cbranch_scc1 L_kvok
          v_lshrrev_b32 v4, 2, v5
          v_and_b32 v6, 3, v5
          v_lshl_add_u32 v4, v4, 3, v6
          s_lshl_b32 {t0}, {sW4}, 13
          s_add_u32 {t0}, {t0}, {WS_KVF}
          v_lshl_add_u32 v4, v4, 7, {t0}""")
    poll(f"global_load_dword v6, v4, {WS} sc1", f"v_cmp_ne_u32 vcc, {sTAG}, v6")
    a.label("L_kvok")
    a("s_waitcnt lgkmcnt(0)\ns_barrier")
    stamp(6)
    a.label("L_attn")
    a(f"""s_mul_i32 {sSOFF}, {sW4}, {8*KVREC}
          s_add_u32 {t0}, {sSOFF}, {KVREC}""")
    a("\n".join([ld_ka(0, 0, sSOFF), ld_kb(0, sSOFF), ld_v(0, 0, 0, sSOFF), ld_v(0, 0, 1, sSOFF), ld_ka(0, 1, sSOFF),
                 ld_v(0, 1, 0, sSOFF), ld_v(0, 1, 1, sSOFF), ld_ka(1, 0, t0), ld_v(1, 0, 0, t0), ld_v(1, 0, 1, t0), ld_ka(1, 1, t0), ld_kb(1, t0)]))
    for i in range(64): a(f"v_mov_b32 {vr(OA+i)}, 0")
    for i in range(8): a(f"v_mov_b32 {vr(SB+56+i)}, 0")
    for i in range(4): a(f"v_mov_b32 {vr(kvreg(1)['V'][1][1]+i)}, 0")
    a(f"""s_mov_b32 {sLOOP}, 0
          s_mov_b32 {t1}, {t0}
          s_add_u32 {t2}, {t0}, {KVREC}
          s_waitcnt vmcnt(10)""")
    a("\n".join([q8(0, 0, 0), q16(0, 0, 0), q8(0, 0, 1), q16(0, 0, 1)]))
    a("s_waitcnt vmcnt(7)\ns_nop 7")
    a(".p2align 6")
    a.label("L_loop")
    for p in range(2):
        for s in range(8):
            T, j = s // 4, s % 4
            X_ = SB + 16 * j
            e = lambda i: f"v_exp_f32 {vr(X_+i)}, {vr(X_+i)}"
            pp, pT, pj = (p, (s - 1) // 4, (s - 1) % 4) if s else (1 - p, 1, 3)
            np_, nT, nj = (p, (s + 2) // 4, (s + 2) % 4) if s < 6 else (1 - p, 0, s - 6)
            pre, mid = [], []
            if s == 1: pre = [ld_v(1 - p, 1, 0, t1), ld_v(1 - p, 1, 1, t1)]
            if s == 2: pre = [ld_ka(p, 0, t2)]
            if s == 4: mid = ["s_waitcnt vmcnt(8)"]
            if s == 5: pre = [ld_v(p, 0, 0, t2), ld_v(p, 0, 1, t2)]
            if s == 6: pre = ["s_waitcnt vmcnt(5)", ld_ka(p, 1, t2), ld_kb(p, t2)]
            if s == 7:
                pre = [f"s_mov_b32 {t1}, {t2}", f"s_add_u32 {t2}, {t2}, {KVREC}"]
                if p == 1:
                    pre += [f"s_add_u32 {sLOOP}, {sLOOP}, 1", f"s_cmp_ge_u32 {sLOOP}, 3", f"s_cselect_b32 {t2}, 0x1000000, {t2}",
                            f"s_cmp_lt_u32 {sLOOP}, 4"]
            a("\n".join([e(0), e(1), pv(pp, pT, pj, 1)] + pre + [e(2), e(3), e(4), e(5), q8(np_, nT, nj), e(6), e(7), e(8), e(9)] + mid +
                        [pv(p, T, j, 0), e(10), e(11), e(12), e(13), q16(np_, nT, nj), e(14), e(15)]))
    a("s_cbranch_scc1 L_loop")
    a(pv(1, 1, 3, 1))
    stamp(7)
    a(f"""s_cmp_eq_u32 {sWH}, 0
          s_cbranch_scc1 L_axfree
          v_mov_b32 v4, {L_CNT + C_ADONE}""")
    lds_wait(4, "v4", "v5", sleep=2)
    a.label("L_axfree")
    a(f"""v_lshlrev_b32 v4, 4, {vL}
          v_add_u32 v4, {L_AX}, v4
          v_and_b32 v12, 31, {vL}
          s_lshl_b32 {t0}, {sW4}, 2
          s_add_u32 {t0}, {t0}, {L_AL}
          v_lshl_add_u32 v13, v12, 4, {t0}
          s_waitcnt vmcnt(0)""")
    for j in (1, 2, 3):
        a(f"v_add_u32 v5, {(sSEND1, sSEND2, sSEND3)[j-1]}, v4")
        for r in range(3): a(f"ds_write_b128 v5, {vr(OA+16*j+4*r,4)} offset:{3072*(j-1) + 1024*r}")
    a(f"s_not_b64 exec, {MK_LO}")
    for j in range(4):
        a(f"""s_add_u32 {t0}, {sW4}, {j}
              s_and_b32 {t0}, {t0}, 3
              s_lshl_b32 {t0}, {t0}, 9
              v_add_u32 v5, {t0}, v13
              ds_write_b32 v5, {vr(OA+16*j+8)}""")
    a(f"""s_mov_b64 exec, -1
          s_lshl_b32 {t4}, {sWH}, 2
          s_add_u32 {t4}, {t4}, {L_CNT + C_GA}
          s_add_u32 {sGEN}, {sGEN}, 4""")
    lds_signal(t4, "v6", "v7")
    a(f"""s_mul_i32 {t0}, {sW4}, 9216
          v_add_u32 v5, {t0}, v4
          s_lshl_b32 {t0}, {sW4}, 9
          s_add_u32 {t0}, {t0}, {L_AL}
          v_lshl_add_u32 v14, v12, 4, {t0}""")
    lds_wait(sGEN, "v6", "v7")
    P = SB
    a(f"""ds_read_b128 {vr(P+36,4)}, v4 offset:{L_AL - L_AX}
          ds_read_b128 {vr(P+40,4)}, v4 offset:{L_AL - L_AX + 1024}
          ds_read_b128 {vr(P+44,4)}, v14""")
    for i in range(9): a(f"ds_read_b128 {vr(P+4*i,4)}, v5 offset:{1024*i}")
    a(f"""s_lshl_b32 {t0}, {sRB}, 1
          s_add_u32 {t0}, {t0}, {sWH}
          s_mul_i32 {t1}, {t0}, 40960
          s_mul_i32 {t2}, {sCB}, 2560
          s_add_u32 {t1}, {t1}, {t2}
          s_add_u32 {t1}, {t1}, {WS_OX}
          s_mul_i32 {t2}, {sW4}, 5
          v_lshrrev_b32 v15, 5, {vL}
          v_add_u32 v15, {t2}, v15
          v_and_b32 v4, 1, v15
          v_lshrrev_b32 v15, 1, v15
          v_lshlrev_b32 v15, 8, v15
          v_lshl_add_u32 v15, v4, 3, v15
          v_lshl_add_u32 v15, {vN}, 4, v15
          v_and_b32 v4, 1, {vG}
          v_mul_u32_u24 v4, 20480, v4
          v_add3_u32 v15, v15, v4, {t1}
          s_lshl_b32 {t0}, {t0}, 3
          s_add_u32 {t0}, {t0}, {sCB}
          s_lshl_b32 {t0}, {t0}, 2
          s_add_u32 {t0}, {t0}, {sW4}
          s_lshl_b32 {t0}, {t0}, 6
          s_add_u32 {t3}, {t0}, {WS_OF}
          s_waitcnt lgkmcnt(9)""")
    for k in (36, 40, 44):
        a(f"v_pk_add_f32 {vr(P+k,2)}, {vr(P+k,2)}, {vr(P+k+2,2)}\nv_add_f32 {vr(P+k)}, {vr(P+k)}, {vr(P+k+1)}")
    lo_, hi_ = hex(f2u(2.0 ** -60)), hex(f2u(2.0 ** 60))
    a(f"""v_rcp_f32 {vr(P+46)}, {vr(P+44)}
          v_cmp_nle_f32 vcc, {lo_}, {vr(P+36)}
          s_mov_b64 {T0}, vcc
          v_cmp_nge_f32 vcc, {hi_}, {vr(P+36)}
          s_or_b64 {T0}, {T0}, vcc
          v_cmp_nle_f32 vcc, {lo_}, {vr(P+40)}
          s_or_b64 {T0}, {T0}, vcc
          v_cmp_nge_f32 vcc, {hi_}, {vr(P+40)}
          s_or_b64 vcc, {T0}, vcc
          s_waitcnt lgkmcnt(0)""")
    if OPT["force_slow"]: a("s_mov_b64 vcc, -1")
    a(f"""s_cbranch_vccz L_fin
          s_cmp_eq_u32 {sPASS}, 0
          s_cbranch_scc1 L_slow""")
    a.label("L_fin")
    for i in range(6):
        a(f"""v_pk_add_f32 {vr(OA+2*i,2)}, {vr(OA+2*i,2)}, {vr(P+2*i,2)}
              v_pk_add_f32 {vr(P+12+2*i,2)}, {vr(P+12+2*i,2)}, {vr(P+24+2*i,2)}
              v_pk_add_f32 {vr(OA+2*i,2)}, {vr(OA+2*i,2)}, {vr(P+12+2*i,2)}
              v_pk_mul_f32 {vr(OA+2*i,2)}, {vr(OA+2*i,2)}, {vr(P+46,2)} op_sel_hi:[1,0]
              v_cvt_pk_bf16_f32 {vr(P+48+i)}, {vr(OA+2*i)}, {vr(OA+2*i+1)}""")
        if i == 5: a(f"s_mov_b64 exec, {MK_LO}")
        if i % 2: a(f"global_store_dwordx2 v15, {vr(P+47+i,2)}, {WS} offset:{128*(i-1)} sc1")
    a(f"""s_mov_b64 exec, 1
          v_mov_b32 v4, {t3}
          v_mov_b32 v5, {sTAG}
          s_waitcnt vmcnt(0)
          global_store_dword v4, v5, {WS} sc1
          s_mov_b64 exec, -1""")
    stamp(8)
    a(f"s_cmp_lg_u32 {sWH}, 0\ns_cbranch_scc1 L_ffn")

def slow_path():
    a.label("L_slow")
    a(f"""s_mov_b32 {sPASS}, 1
          s_mul_i32 {sSOFF}, {sW4}, {8*KVREC}
          s_mov_b32 {sLOOP}, 0""")
    for j in range(4): a(f"v_mov_b32 {vr(OA+j)}, 0xff800000")
    a.label("L_mx")
    a("\n".join([ld_ka(0, 0, sSOFF), ld_ka(0, 1, sSOFF), ld_kb(0, sSOFF), "s_waitcnt vmcnt(0)"]))
    for T in range(2):
        for j in range(4): a(q8(0, T, j) + "\n" + q16(0, T, j))
        for j in range(4):
            for i in range(8): a(f"v_max3_f32 {vr(OA+j)}, {vr(OA+j)}, {vr(SB+16*j+2*i)}, {vr(SB+16*j+2*i+1)}")
    a(f"""s_add_u32 {sSOFF}, {sSOFF}, {KVREC}
          s_add_u32 {sLOOP}, {sLOOP}, 1
          s_cmp_lt_u32 {sLOOP}, 8
          s_cbranch_scc1 L_mx""")
    for j in range(4):
        a(f"""v_mov_b32 v4, {vr(OA+j)}
              v_permlane32_swap_b32 v4, {vr(OA+j)}
              v_max_f32 {vr(OA+j)}, v4, {vr(OA+j)}
              s_add_u32 {t0}, {sW4}, {j}
              s_and_b32 {t0}, {t0}, 3
              s_lshl_b32 {t0}, {t0}, 9
              v_add_u32 {vr(OA+4+j)}, {t0}, v13
              ds_write_b32 {vr(OA+4+j)}, {vr(OA+j)} offset:2048""")
    a(f"s_add_u32 {sGEN}, {sGEN}, 4")
    lds_signal(t4, "v6", "v7")
    lds_wait(sGEN, "v6", "v7")
    a(f"s_lshl_b32 {t0}, {sW4}, 2")
    for j in range(4):
        a(f"v_subrev_u32 {vr(OA+4+j)}, {t0}, {vr(OA+4+j)}\nds_read_b128 {vr(SB+4*j,4)}, {vr(OA+4+j)} offset:2048")
    a(f"s_waitcnt lgkmcnt(0)\ns_not_b64 exec, {MK_LO}")
    for j in range(4):
        m = SB + 4 * j
        a(f"""v_max3_f32 {vr(m)}, {vr(m)}, {vr(m+1)}, {vr(m+2)}
              v_max_f32 {vr(m)}, {vr(m)}, {vr(m+3)}
              v_xor_b32 {vr(m)}, 0x80000000, {vr(m)}
              v_and_b32 {vr(m+1)}, 0xffff0000, {vr(m)}
              v_sub_f32 {vr(m)}, {vr(m)}, {vr(m+1)}
              v_and_b32 {vr(m+2)}, 0xffff0000, {vr(m)}
              v_sub_f32 {vr(m)}, {vr(m)}, {vr(m+2)}
              v_lshrrev_b32 {vr(m+1)}, 16, {vr(m+1)}
              v_or_b32 {vr(QB+2*j)}, {vr(m+1)}, {vr(m+2)}
              v_lshrrev_b32 {vr(QB+2*j+1)}, 16, {vr(m)}""")
    a("s_mov_b64 exec, -1\ns_branch L_attn")

def allreduce_g(regs, tmp, op="v_add_f32"):
    for swap in ("v_permlane32_swap_b32", "v_permlane16_swap_b32"):
        for i, r in enumerate(regs): a(f"v_mov_b32 {vr(tmp+i)}, {vr(r)}")
        for i, r in enumerate(regs): a(f"{swap} {vr(tmp+i)}, {vr(r)}")
        for i, r in enumerate(regs): a(f"{op} {vr(r)}, {vr(tmp+i)}, {vr(r)}")

def row_allreduce(regs, op):
    for k in (8, 4, 2, 1):
        for r in regs: a(f"{op}_dpp {vr(r)}, {vr(r)}, {vr(r)} row_ror:{k} row_mask:0xf bank_mask:0xf")

OF, OAC, OW = 16, 56, 76
def outproj():
    lds_signal(L_CNT + C_ADONE, "v4", "v5")
    w_dma_patterns(9)
    w_dma(WO, 9)
    a(f"""v_min_u32 v4, 19, {vL}
          s_mul_i32 {t0}, {sCB}, 20
          v_add_u32 v5, {t0}, v4
          v_lshlrev_b32 v6, 3, v5
          v_lshrrev_b32 v7, 2, v5
          v_and_b32 v5, 3, v5
          v_lshlrev_b32 v7, 7, v7
          v_lshl_add_u32 v7, v5, 4, v7
          v_add_u32 v7, {WS_MODG + 80*128}, v7
          v_add_u32 v8, 5120, v7
          v_add_u32 v9, 10240, v7
          v_add_u32 v10, 15360, v7
          v_lshlrev_b32 v4, 4, v4
          v_add_u32 v4, {L_VEC}, v4""")
    for k in range(3):
        a(f"""v_add_u32 v5, {64*k}, {vL}
              v_min_u32 v5, 159, v5
              v_lshlrev_b32 {vr(11+k)}, 3, v5
              v_lshrrev_b32 {vr(70+k)}, 2, v5
              v_and_b32 v5, 3, v5
              v_lshlrev_b32 {vr(70+k)}, 7, {vr(70+k)}
              v_lshl_add_u32 {vr(70+k)}, v5, 4, {vr(70+k)}
              v_add_u32 {vr(70+k)}, {WS_MODG + 120*128}, {vr(70+k)}
              v_add_u32 {vr(73+k)}, 5120, {vr(70+k)}
              global_load_dwordx2 {vr(56+2*k,2)}, {vr(11+k)}, {WR}""")
    a(f"global_load_dwordx2 v[62:63], v6, {WR}")
    lds = [f"global_load_dwordx4 {vr(16+4*i,4)}, {vr(r)}, {WS} sc1" for i, r in enumerate((7, 8, 9, 10, 70, 71, 72, 73, 74, 75))]
    bad = [f"v_cmp_ne_u32 vcc, {sTAG}, v17"] + [f"v_cmp_ne_u32 {T0}, {sTAG}, {vr(17+2*i)}\ns_or_b64 vcc, vcc, {T0}" for i in range(1, 20)]
    poll("\n".join(lds), "\n".join(bad), sleep=4)
    def unp4(dst, r0, r1): unpack(vr(dst), vr(dst+1), vr(r0)); unpack(vr(dst+2), vr(dst+3), vr(r1))
    def plus1(r, t):
        a(f"""v_pk_add_f32 {vr(r,2)}, {vr(r,2)}, 1.0 op_sel_hi:[1,0]
              v_pk_add_f32 {vr(r+2,2)}, {vr(r+2,2)}, 1.0 op_sel_hi:[1,0]
              v_cvt_pk_bf16_f32 {vr(t)}, {vr(r)}, {vr(r+1)}
              v_cvt_pk_bf16_f32 {vr(t+1)}, {vr(r+2)}, {vr(r+3)}""")
        unp4(r, t, t + 1)
    unp4(80, 16, 18); unp4(84, 24, 26); plus1(84, 64); unp4(88, 20, 22); unp4(92, 28, 30); unp4(96, 62, 63)
    a("v_pk_mul_f32 v[96:97], v[96:97], v[84:85]\nv_pk_mul_f32 v[98:99], v[98:99], v[86:87]")
    for i in range(5): a(f"ds_write_b128 v4, {vr(80+4*i,4)} offset:{320*i}")
    a("v_mov_b32 v100, 0\nv_mov_b32 v101, 0")
    for k in range(3):
        unp4(104, 32 + 4*k, 34 + 4*k); unp4(108, 44 + 4*k, 46 + 4*k); plus1(108, 64); unp4(112, 56 + 2*k, 57 + 2*k)
        if k == 2: a(f"s_mov_b64 exec, {MK_LO}")
        for i in range(4): a(f"v_fmac_f32 v100, {vr(108+i)}, {vr(112+i)}\nv_fmac_f32 v101, {vr(104+i)}, {vr(112+i)}")
    a("s_mov_b64 exec, -1")
    row_allreduce((100, 101), "v_add_f32")
    allreduce_g((100, 101), 102)
    a(f"v_readfirstlane_b32 {sSA}, v100\nv_readfirstlane_b32 {sC0}, v101")
    lds_signal(L_CNT + C_WO, "v4", "v5")
    lds_wait(4, "v4", "v5", sleep=2)
    sTT, sKH = sSEND1, sSEND2
    a(f"""s_and_b32 {sTT}, {sW4}, 1
          s_lshr_b32 {sKH}, {sW4}, 1
          v_mul_u32_u24 v8, 40, {vL}
          s_mul_i32 {t0}, {sKH}, 51200
          v_add_u32 v8, {t0}, v8
          s_mov_b32 {sCG}, 0
          s_mov_b32 {sGEN}, 0""")
    a.label("L_op")
    def wo_reads(s, slot):
        return "\n".join(f"ds_read_b64_tr_b16 {vr(OW+20*slot+4*t+2*j,2)}, v8 offset:{s*5120 + j*2560 + 8*t}" for t in range(5) for j in range(2))
    for s in range(9): a(wo_reads(s, s))
    a(f"""s_lshl_b32 {t0}, {sRB}, 1
          s_add_u32 {t0}, {t0}, {sCG}
          s_lshl_b32 {t1}, {t0}, 11
          s_lshl_b32 {t2}, {sKH}, 10
          s_add_u32 {t1}, {t1}, {t2}
          s_add_u32 {t1}, {t1}, {WS_OF}
          v_lshl_add_u32 v9, {vN}, 6, {t1}
          s_lshl_b32 {t1}, {t0}, 1
          s_add_u32 {t1}, {t1}, {sTT}
          s_mul_i32 {t2}, {t1}, 20480
          s_mul_i32 {t3}, {sKH}, 10240
          s_add_u32 {t2}, {t2}, {t3}
          s_add_u32 {t2}, {t2}, {WS_OX + 4096}
          v_lshl_add_u32 v10, {vL}, 4, {t2}
          s_lshl_b32 {t2}, {t1}, 4
          v_add_u32 v11, {t2}, {vN}
          v_mul_u32_u24 v11, 1280, v11
          v_mul_u32_u24 v4, 40, {vG}
          s_mul_i32 {t2}, {sCB}, 160
          s_mul_i32 {t3}, {sKH}, 24
          s_add_u32 {t2}, {t2}, {t3}
          v_add_u32 v14, {t2}, v4
          v_add_u32 v11, v14, v11
          s_lshl_b32 {t2}, {t1}, 12
          s_lshl_b32 {t3}, {sCB}, 9
          s_add_u32 {t2}, {t2}, {t3}
          s_lshl_b32 {t3}, {sKH}, 8
          s_add_u32 {t2}, {t2}, {t3}
          s_add_u32 {t2}, {t2}, {WS_ST}
          v_lshl_add_u32 v12, {vN}, 4, {t2}
          s_lshl_b32 {t2}, {t0}, 13
          s_add_u32 {t2}, {t2}, {WS_ST + 4096}
          v_lshlrev_b32 v13, 10, {vG}
          v_lshl_add_u32 v13, {vN}, 4, v13
          v_add_u32 v13, {t2}, v13
          v_add_u32 v15, 0x2000, v10
          s_waitcnt lgkmcnt(0)
          s_cmp_eq_u32 {sCG}, 0
          s_cbranch_scc1 L_opgo
          s_barrier""")
    a.label("L_opgo")
    stamp(9)
    poll(f"global_load_dword v4, v9, {WS} sc1", f"v_cmp_ne_u32 vcc, {sTAG}, v4", sleep=1)
    stamp(10)
    for s in range(10):
        if s < 8: a(f"global_load_dwordx4 {vr(OF+4*s,4)}, v10, {WS} offset:{1024*s - 4096} sc1")
        else: a(f"global_load_dwordx4 {vr(OF+4*s,4)}, v15, {WS} offset:{1024*(s-8) - 4096} sc1")
    a(f"""global_load_dwordx2 v[4:5], v11, {X}
          global_load_dwordx2 v[6:7], v11, {X} offset:8""")
    for s in range(10):
        a(f"s_waitcnt vmcnt({11-s})" + (" lgkmcnt(0)" if s == 9 else ""))
        slot = s if s < 9 else 0
        for t in range(5):
            a(f"v_mfma_f32_16x16x32_bf16 {vr(OAC+4*t,4)}, {vr(OW+20*slot+4*t,4)}, {vr(OF+4*s,4)}, {'0' if s == 0 else vr(OAC+4*t,4)}")
        if s == 1: a(wo_reads(9, 0))
    VE = OW + 20
    EX = OF
    a(f"""s_mul_i32 {t0}, {sW4}, 3072
          s_add_u32 {t0}, {t0}, {L_OXC}
          v_lshl_add_u32 v9, {vL}, 4, {t0}
          s_xor_b32 {t0}, {sW4}, 2
          s_mul_i32 {t0}, {t0}, 3072
          s_add_u32 {t0}, {t0}, {L_OXC}
          v_lshl_add_u32 v10, {vL}, 4, {t0}
          v_mul_u32_u24 v15, 80, {vG}
          s_mul_i32 {t0}, {sKH}, 48
          s_add_u32 {t0}, {t0}, {L_VEC}
          v_add_u32 v15, {t0}, v15
          s_lshl_b32 {t4}, {sTT}, 2
          s_add_u32 {t4}, {t4}, {L_CNT + C_PAIR}
          s_add_u32 {sGEN}, {sGEN}, 2
          s_cmp_lg_u32 {sKH}, 0
          s_cbranch_scc1 L_oe1""")
    X1, H2, S1 = 160, 176, 192
    for kh, (keep, send) in enumerate((((0, 1, 2), (3, 4)), ((3, 4), (0, 1, 2)))):
        nk = len(keep)
        if kh: a.label("L_oe1")
        else: a(f"global_load_dwordx2 v[54:55], v11, {X} offset:16")
        for i, t in enumerate(send): a(f"ds_write_b128 v9, {vr(OAC+4*t,4)} offset:{1024*i}")
        lds_signal(t4, "v52", "v53")
        for arr in (0, 4):
            for i in range(nk): a(f"ds_read_b128 {vr(VE+12*arr+4*i,4)}, v15 offset:{320*arr + 16*i}")
        a("s_waitcnt vmcnt(0)")
        for i, r in enumerate((4, 6, 54)[:nk]):
            unpack(vr(X1+4*i), vr(X1+4*i+1), vr(r)); unpack(vr(X1+4*i+2), vr(X1+4*i+3), vr(r+1))
        lds_wait(sGEN, "v52", "v53")
        for i in range(nk): a(f"ds_read_b128 {vr(EX+4*i,4)}, v10 offset:{1024*i}")
        for arr in (1, 2, 3):
            for i in range(nk): a(f"ds_read_b128 {vr(VE+12*arr+4*i,4)}, v15 offset:{320*arr + 16*i}")
        a(f"s_waitcnt lgkmcnt({3*nk})")
        for i, t in enumerate(keep):
            for h in range(2):
                r, x = OAC + 4*t + 2*h, X1 + 4*i + 2*h
                a(f"v_pk_add_f32 {vr(r,2)}, {vr(r,2)}, {vr(EX+4*i+2*h,2)}")
                a(f"v_pk_fma_f32 {vr(x,2)}, {vr(r,2)}, {vr(VE+4*i+2*h,2)}, {vr(x,2)}")
                if i == 0 and h == 0:
                    a(f"""v_mov_b64 {vr(S1,2)}, {vr(x,2)}
                          v_pk_mul_f32 {vr(S1+2,2)}, {vr(x,2)}, {vr(x,2)}
                          v_pk_mul_f32 {vr(S1+4,2)}, {vr(x,2)}, {vr(VE+48,2)}""")
                else:
                    a(f"""v_pk_add_f32 {vr(S1,2)}, {vr(S1,2)}, {vr(x,2)}
                          v_pk_fma_f32 {vr(S1+2,2)}, {vr(x,2)}, {vr(x,2)}, {vr(S1+2,2)}
                          v_pk_fma_f32 {vr(S1+4,2)}, {vr(x,2)}, {vr(VE+48+4*i+2*h,2)}, {vr(S1+4,2)}""")
        if not kh: a("s_branch L_oe2")
    a.label("L_oe2")
    G = 200
    a(f"""v_add_f32 {vr(G)}, {vr(S1)}, {vr(S1+1)}
          v_add_f32 {vr(G+1)}, {vr(S1+2)}, {vr(S1+3)}
          v_add_f32 {vr(G+2)}, {vr(S1+4)}, {vr(S1+5)}
          v_mov_b32 {vr(G+3)}, {sTAG}""")
    allreduce_g((G, G + 1, G + 2), G + 4)
    a(f"""s_mov_b64 exec, 0xffff
          global_store_dwordx4 v12, {vr(G,4)}, {WS} sc1
          s_mov_b64 exec, -1""")
    stamp(11)
    ST = 16
    lds = [f"global_load_dwordx4 {vr(ST+16*u+4*i,4)}, v13, {WS} offset:{4096*(u-1) + 256*i} sc1" for u in range(2) for i in range(4)]
    bad = [f"v_cmp_ne_u32 vcc, {sTAG}, {vr(ST+3)}"] + [f"v_cmp_ne_u32 {T0}, {sTAG}, {vr(ST+3+4*i)}\ns_or_b64 vcc, vcc, {T0}" for i in range(1, 8)]
    poll("\n".join(lds), "\n".join(bad), sleep=1)
    stamp(12)
    for u in range(2):
        b = ST + 16 * u
        a(f"""v_pk_add_f32 {vr(b,2)}, {vr(b,2)}, {vr(b+4,2)}
              v_pk_add_f32 {vr(b+8,2)}, {vr(b+8,2)}, {vr(b+12,2)}
              v_add_f32 {vr(b+2)}, {vr(b+2)}, {vr(b+6)}
              v_add_f32 {vr(b+10)}, {vr(b+10)}, {vr(b+14)}
              v_pk_add_f32 {vr(b,2)}, {vr(b,2)}, {vr(b+8,2)}
              v_add_f32 {vr(b+2)}, {vr(b+2)}, {vr(b+10)}""")
    allreduce_g((ST, ST + 1, ST + 2, ST + 16, ST + 17, ST + 18), G)
    for u in range(2):
        b = ST + 16 * u
        a(f"""v_mul_f32 {vr(b)}, {hex(f2u(-1/640))}, {vr(b)}
              v_mul_f32 {vr(b+1)}, {hex(f2u(1/640))}, {vr(b+1)}
              v_fma_f32 {vr(b+1)}, -{vr(b)}, {vr(b)}, {vr(b+1)}
              v_max_f32 {vr(b+1)}, 0, {vr(b+1)}
              v_add_f32 {vr(b+1)}, {hex(f2u(1e-5))}, {vr(b+1)}
              v_rsq_f32 {vr(b+1)}, {vr(b+1)}
              v_fma_f32 {vr(b+2)}, {vr(b)}, {sSA}, {vr(b+2)}
              v_fma_f32 {vr(b+2)}, {vr(b+2)}, {vr(b+1)}, {sC0}""")
    a(f"""s_mov_b32 {lo(T0)}, 0xffff0000
          s_mov_b32 {hi(T0)}, 0xffff0000
          v_cndmask_b32 {vr(G)}, {vr(ST+2)}, {vr(ST+18)}, {T0}
          v_max_f32 {vr(G+1)}, {vr(ST+2)}, {vr(ST+18)}""")
    row_allreduce((G + 1,), "v_max_f32")
    a(f"""s_cmp_lg_u32 {sTT}, 0
          s_cselect_b64 {T1}, -1, 0
          v_cmp_eq_f32 vcc, {vr(G)}, {vr(G+1)}
          v_cndmask_b32 {vr(ST+4)}, {vr(ST+1)}, {vr(ST+17)}, {T1}
          v_cndmask_b32 {vr(ST+6)}, {vr(ST)}, {vr(ST+16)}, {T1}
          s_ff1_i32_b32 {sWINT}, vcc_lo
          s_and_b32 {sWINT}, {sWINT}, 31
          s_lshl_b32 {t0}, {sRB}, 1
          s_add_u32 {t0}, {t0}, {sCG}
          s_or_b32 {t1}, {sCB}, {sW4}
          s_cmp_lg_u32 {t1}, 0
          s_cbranch_scc1 L_nowin
          s_lshl_b32 {t1}, {t0}, 5
          s_add_u32 {t1}, {t1}, {sWINT}
          s_lshl_b32 {t2}, {t0}, 7
          s_add_u32 {t2}, {t2}, {WS_WIN}
          v_mov_b32 {vr(G+4)}, {vr(G+1)}
          v_mov_b32 {vr(G+5)}, {t1}
          v_mov_b32 {vr(G+6)}, 0
          v_mov_b32 {vr(G+7)}, {sTAG}
          v_mov_b32 v4, {t2}
          s_mov_b64 exec, 1
          global_store_dwordx4 v4, {vr(G+4,4)}, {WS} sc1
          s_mov_b64 exec, -1""")
    a.label("L_nowin")
    a(f"""v_mul_f32 {vr(ST+6)}, {vr(ST+6)}, {vr(ST+4)}
          s_lshl_b32 {t1}, {sTT}, 4
          s_sub_u32 {t1}, {sWINT}, {t1}
          v_cmp_eq_u32 {MK_A}, {t1}, {vN}
          s_mul_i32 {t1}, {t0}, 1280
          v_add_u32 v14, {t1}, v14
          v_lshlrev_b32 v9, 1, v14
          v_add_u32 v9, {WS_BASE}, v9
          v_add_u32 v14, {WS_H2}, v14
          s_waitcnt lgkmcnt(0)""")
    for i in range(6):
        x, h = X1 + 2*i, H2 + 2*i
        a(f"""v_pk_fma_f32 {vr(h,2)}, {vr(x,2)}, {vr(ST+4,2)}, {vr(ST+6,2)} op_sel_hi:[1,0,0]
              v_pk_fma_f32 {vr(h,2)}, {vr(h,2)}, {vr(VE+12+2*i,2)}, {vr(VE+24+2*i,2)}
              v_pk_fma_f32 {vr(x,2)}, {vr(h,2)}, {vr(VE+36+2*i,2)}, {vr(x,2)}
              v_cvt_pk_bf16_f32 {vr(G+i)}, {vr(h)}, {vr(h+1)}
              v_min_u32 {vr(G+i)}, -2, {vr(G+i)}
              v_cvt_pk_bf16_f32 {vr(G+8+i)}, {vr(x)}, {vr(x+1)}
              v_min_u32 {vr(x)}, -2, {vr(x)}""")
    a(f"""s_cmp_eq_u32 {sKH}, 0
          s_and_saveexec_b64 {T0}, {MK_A}
          s_cbranch_execz L_nocand
          global_store_dwordx2 v14, {vr(G,2)}, {WS} sc1
          global_store_dwordx2 v14, {vr(G+2,2)}, {WS} offset:8 sc1
          global_store_dwordx4 v9, {vr(X1,4)}, {WS} sc1
          global_store_dwordx4 v9, {vr(X1+4,4)}, {WS} offset:16 sc1
          s_cmp_lg_u32 {sKH}, 0
          s_cbranch_scc1 L_nocand
          global_store_dwordx2 v14, {vr(G+4,2)}, {WS} offset:16 sc1
          global_store_dwordx4 v9, {vr(X1+8,4)}, {WS} offset:32 sc1""")
    a.label("L_nocand")
    a(f"""s_not_b64 exec, {MK_A}
          global_store_dwordx2 v11, {vr(G+8,2)}, {OUT}
          global_store_dwordx2 v11, {vr(G+10,2)}, {OUT} offset:8
          s_cmp_lg_u32 {sKH}, 0
          s_cbranch_scc1 L_o2
          global_store_dwordx2 v11, {vr(G+12,2)}, {OUT} offset:16""")
    a.label("L_o2")
    a("s_mov_b64 exec, -1")
    stamp(13)
    a(f"""s_add_u32 {sCG}, {sCG}, 1
          s_cmp_lt_u32 {sCG}, 2
          s_cbranch_scc1 L_op""")
    endpgm()

def find_winner():
    a(f"v_lshlrev_b32 v8, 7, {vL}\nv_add_u32 v8, {WS_WIN}, v8")
    poll(f"global_load_dwordx4 v[4:7], v8, {WS} sc1", f"v_cmp_ne_u32 vcc, {sTAG}, v7", sleep=1)
    a("v_mov_b32 v9, v4")
    row_allreduce((9,), "v_max_f32")
    allreduce_g((9,), 10, "v_max_f32")
    a(f"""v_cmp_eq_f32 vcc, v4, v9
          s_ff1_i32_b64 {t3}, vcc
          s_and_b32 {t3}, {t3}, 63
          v_readlane_b32 {sWINT}, v5, {t3}
          v_readlane_b32 {sWINR}, v4, {t3}""")

def ffn():
    FW, FA = 16, 96
    a.label("L_ffn")
    a(f"""s_barrier
          v_lshrrev_b32 v4, 1, {vL}
          v_and_b32 v5, 1, {vL}
          v_lshlrev_b32 v14, 8, {vG}
          v_lshl_add_u32 v14, {vN}, 3, v14
          s_cmp_ge_u32 s2, 216
          s_cbranch_scc1 L_ffn2
          s_cmp_lg_u32 {sW4}, 0
          s_cbranch_scc1 L_end
          v_mul_u32_u24 v4, 3456, v4
          s_lshl_b32 {t0}, s2, 4
          v_add_u32 v4, {t0}, v4
          v_cmp_eq_u32 vcc, 1, v5
          v_mov_b32 v6, {lo(WG)}
          v_mov_b32 v7, {hi(WG)}
          v_mov_b32 v8, {lo(WU)}
          v_mov_b32 v9, {hi(WU)}
          v_cndmask_b32 v6, v6, v8, vcc
          v_cndmask_b32 v7, v7, v9, vcc
          v_add_co_u32 v6, vcc, v6, v4
          v_addc_co_u32 v7, vcc, 0, v7, vcc""")
    for s in range(20):
        a(f"s_mov_b32 m0, {L_W + 1024*s}\nglobal_load_lds_dwordx4 v[6:7], off")
        if s < 19: a(f"v_add_co_u32 v6, vcc, {32*3456}, v6\nv_addc_co_u32 v7, vcc, 0, v7, vcc")
    a("s_waitcnt vmcnt(0)")
    for s in range(20):
        a(f"ds_read_b64_tr_b16 {vr(FW+4*s,2)}, v14 offset:{1024*s}\nds_read_b64_tr_b16 {vr(FW+4*s+2,2)}, v14 offset:{1024*s+128}")
    stamp(14)
    find_winner()
    stamp(15)
    a(f"""s_mul_i32 {t0}, {t3}, 1280
          s_add_u32 {t0}, {t0}, {WS_H2}
          v_lshl_add_u32 v8, {vG}, 4, {t0}
          s_lshl_b32 {t0}, s2, 6
          s_add_u32 {t0}, {t0}, {WS_ACT}
          v_lshl_add_u32 v9, {vG}, 3, {t0}
          s_mov_b64 exec, {MK_N0}""")
    def maxchain(n):
        regs = [FA + 2*i for i in range(2 * n)]
        out = [f"v_max_u32 v10, {vr(regs[0])}, {vr(regs[1])}"]
        out += [f"v_max3_u32 v10, v10, {vr(regs[i])}, {vr(regs[i+1])}" for i in range(2, 2 * n, 2)]
        return "\n".join(out + ["v_cmp_eq_u32 vcc, -1, v10"])
    poll("\n".join(f"global_load_dwordx4 {vr(FA+4*s,4)}, v8, {WS} offset:{64*s} sc1" for s in range(20)), maxchain(20))
    a("s_mov_b64 exec, -1\ns_waitcnt lgkmcnt(0)")
    for s in range(20):
        d = 176 + 4 * (s % 2)
        a(f"v_mfma_f32_16x16x32_bf16 {vr(d,4)}, {vr(FW+4*s,4)}, {vr(FA+4*s,4)}, {'0' if s < 2 else vr(d,4)}")
    a("v_pk_add_f32 v[176:177], v[176:177], v[180:181]\nv_pk_add_f32 v[178:179], v[178:179], v[182:183]")
    for i in range(4): a(f"v_mov_b32 {vr(180+i)}, {vr(176+i)}")
    for i in range(4): a(f"v_permlane32_swap_b32 {vr(176+i)}, {vr(180+i)}")
    for i in range(4): a(f"v_mul_f32 {vr(184+i)}, {hex(f2u(-math.log2(math.e)))}, {vr(176+i)}")
    for i in range(4): a(f"v_exp_f32 {vr(184+i)}, {vr(184+i)}")
    for i in range(4): a(f"v_add_f32 {vr(184+i)}, 1.0, {vr(184+i)}")
    for i in range(4): a(f"v_rcp_f32 {vr(184+i)}, {vr(184+i)}")
    for i in range(4): a(f"v_mul_f32 {vr(176+i)}, {vr(176+i)}, {vr(180+i)}")
    for i in range(4): a(f"v_mul_f32 {vr(176+i)}, {vr(176+i)}, {vr(184+i)}")
    a(f"""v_cvt_pk_bf16_f32 v12, v176, v177
          v_cvt_pk_bf16_f32 v13, v178, v179
          v_min_u32 v12, -2, v12
          s_mov_b64 exec, 0x10001
          global_store_dwordx2 v9, v[12:13], {WS} sc1
          s_mov_b64 exec, -1""")
    stamp(16)
    a(f"""s_cmp_lg_u32 s2, 0
          s_cbranch_scc1 L_end
          v_mov_b32 v4, 0
          v_mov_b32 v5, {sTAG}
          s_mov_b64 exec, 1
          global_store_dword v4, v5, {WS}""")
    endpgm()
    a.label("L_ffn2")
    sQ, sS0 = sSEND1, sSEND2
    a(f"""s_sub_u32 {sQ}, s2, 216
          s_mul_i32 {sS0}, {sW4}, 14
          s_min_u32 {sS0}, {sS0}, 40
          s_mul_i32 {t0}, {sS0}, 40960
          s_lshl_b32 {t1}, {sQ}, 5
          s_add_u32 {t0}, {t0}, {t1}
          v_mul_u32_u24 v4, 1280, v4
          v_lshl_add_u32 v4, v5, 4, v4
          v_add_u32 v4, {t0}, v4
          s_and_b32 {t1}, {sW4}, 1
          s_mul_i32 {t1}, {t1}, 14336
          s_lshr_b32 {t2}, {sW4}, 1
          s_mul_i32 {t2}, {t2}, 51200
          s_add_u32 {t2}, {t2}, {t1}
          v_add_u32 v14, {t2}, v14""")
    for s in range(14):
        a(f"s_add_u32 m0, {t2}, {L_W + 1024*s}\nglobal_load_lds_dwordx4 v4, {WD}")
        if s < 13: a("v_add_u32 v4, 40960, v4")
    a(f"""s_lshl_b32 {t0}, {sQ}, 7
          s_add_u32 {t0}, {t0}, {WS_MODG + 200*128}
          v_lshl_add_u32 v12, {vG}, 4, {t0}
          s_waitcnt vmcnt(0)""")
    for s in range(14):
        a(f"ds_read_b64_tr_b16 {vr(FW+4*s,2)}, v14 offset:{1024*s}\nds_read_b64_tr_b16 {vr(FW+4*s+2,2)}, v14 offset:{1024*s+128}")
    a(f"""s_waitcnt lgkmcnt(0)
          s_cmp_lg_u32 {sW4}, 3
          s_cbranch_scc1 L_f2full""")
    for i in range(8): a(f"v_mov_b32 {vr(FW+i)}, 0")
    a.label("L_f2full")
    stamp(14)
    find_winner()
    stamp(15)
    a(f"""global_load_dwordx4 v[188:191], v12, {WS} sc1
          s_lshl_b32 {t0}, {sW4}, 4
          v_add_u32 v8, {t0}, {vN}
          v_lshlrev_b32 v9, 2, v8
          ds_bpermute_b32 v10, v9, v5
          v_cmp_ne_u32 {MK_A}, {t3}, v8
          v_mul_u32_u24 v8, 2560, v8
          s_lshl_b32 {t0}, {sQ}, 6
          s_add_u32 {t0}, {t0}, {WS_BASE}
          v_lshl_add_u32 v9, {vG}, 4, {t0}
          v_add_u32 v8, v9, v8
          s_mul_i32 {t0}, {t3}, 2560
          v_add_u32 v9, {t0}, v9
          s_lshl_b32 {t0}, {sQ}, 5
          v_lshl_add_u32 v11, {vG}, 3, {t0}
          s_waitcnt lgkmcnt(0)
          v_and_b32 v10, 2047, v10
          v_mul_u32_u24 v10, 1280, v10
          v_add_u32 v15, v11, v10
          s_and_b32 {sWINT}, {sWINT}, 2047
          s_mul_i32 {t0}, {sWINT}, 1280
          v_add_u32 v11, {t0}, v11""")
    poll(f"global_load_dwordx4 v[196:199], v8, {WS} sc1\nglobal_load_dwordx4 v[200:203], v9, {WS} sc1",
         "v_max_u32 v10, v196, v200\nv_cmp_eq_u32 vcc, -1, v10")
    unpack("v192", "v193", "v188"); unpack("v194", "v195", "v190")
    a(f"""v_cvt_pk_bf16_f32 v12, v196, v197
          v_cvt_pk_bf16_f32 v13, v198, v199
          s_mov_b64 exec, {MK_A}
          global_store_dwordx2 v15, v[12:13], {OUT}
          s_mov_b64 exec, -1
          v_mov_b32 v204, {sWINR}
          v_mul_f32 v204, {hex(f2u(-math.log2(math.e)))}, v204
          v_exp_f32 v204, v204
          s_lshl_b32 {t0}, {sS0}, 8
          s_add_u32 {t0}, {t0}, {WS_ACT}
          v_add_f32 v204, 1.0, v204
          v_rcp_f32 v204, v204
          v_lshl_add_u32 v8, {vG}, 6, {t0}
          v_pk_mul_f32 v[192:193], v[192:193], v[204:205] op_sel_hi:[1,0]
          v_pk_mul_f32 v[194:195], v[194:195], v[204:205] op_sel_hi:[1,0]
          s_lshl_b32 {t0}, {sW4}, 6
          s_add_u32 {t0}, {t0}, {L_YP}
          v_lshl_add_u32 v9, {vG}, 4, {t0}
          s_mov_b64 exec, {MK_N0}""")
    poll("\n".join(f"global_load_dwordx4 {vr(FA+4*s,4)}, v8, {WS} offset:{256*s} sc1" for s in range(14)), maxchain(14))
    a("s_mov_b64 exec, -1")
    stamp(16)
    for s in range(14):
        d = 176 + 4 * (s % 2)
        a(f"v_mfma_f32_16x16x32_bf16 {vr(d,4)}, {vr(FW+4*s,4)}, {vr(FA+4*s,4)}, {'0' if s < 2 else vr(d,4)}")
    a(f"""v_pk_add_f32 v[176:177], v[176:177], v[180:181]
          v_pk_add_f32 v[178:179], v[178:179], v[182:183]
          s_cmp_eq_u32 {sW4}, 0
          s_cbranch_scc1 L_f2fin
          s_mov_b64 exec, {MK_N0}
          ds_write_b128 v9, v[176:179]
          s_mov_b64 exec, -1""")
    lds_signal(L_CNT + C_Y, "v4", "v5")
    endpgm()
    a.label("L_f2fin")
    a(f"v_mov_b32 v4, {L_CNT + C_Y}")
    lds_wait(3, "v4", "v5")
    a(f"""ds_read_b128 v[180:183], v9 offset:64
          ds_read_b128 v[184:187], v9 offset:128
          ds_read_b128 v[188:191], v9 offset:192
          s_waitcnt lgkmcnt(0)
          v_pk_add_f32 v[176:177], v[176:177], v[180:181]
          v_pk_add_f32 v[178:179], v[178:179], v[182:183]
          v_pk_add_f32 v[184:185], v[184:185], v[188:189]
          v_pk_add_f32 v[186:187], v[186:187], v[190:191]
          v_pk_add_f32 v[176:177], v[176:177], v[184:185]
          v_pk_add_f32 v[178:179], v[178:179], v[186:187]
          v_pk_fma_f32 v[200:201], v[176:177], v[192:193], v[200:201]
          v_pk_fma_f32 v[202:203], v[178:179], v[194:195], v[202:203]
          v_cvt_pk_bf16_f32 v12, v200, v201
          v_cvt_pk_bf16_f32 v13, v202, v203
          s_mov_b64 exec, {MK_N0}
          global_store_dwordx2 v11, v[12:13], {OUT}
          s_mov_b64 exec, -1""")
    stamp(17)
    a.label("L_end")
    endpgm()
    a.label("L_exit")
    a("s_endpgm")

def build(**opt):
    global a
    OPT.update(opt)
    a.lines.clear(); _uid[0] = 0
    prologue(); layernorm1(); qkv(); attention(); outproj(); ffn(); slow_path()
    rep = []
    lines, nn = insert_nops(a.lines, rep)
    errs = check_waits(lines)
    head = open(f"cdna_kernels/{NAME}.s.ref").read().split("; Override launch")[0]
    out = head + f"; @launch grid=(256,1,1) block=(512,1,1) lds={LDS_BYTES}\n"
    out += f""".amdgcn_target "amdgcn-amd-amdhsa--gfx950"
.text
.globl {NAME}_kernel
.p2align 8
.type {NAME}_kernel,@function
{NAME}_kernel:
"""
    out += "\n".join(l if l.endswith(":") or l.startswith(".") else "    " + l for l in lines)
    out += f"""
.section .rodata,"a"
.p2align 6
.amdhsa_kernel {NAME}_kernel
  .amdhsa_next_free_vgpr 256
  .amdhsa_next_free_sgpr 96
  .amdhsa_accum_offset 256
  .amdhsa_group_segment_fixed_size 0
  .amdhsa_kernarg_size 120
  .amdhsa_user_sgpr_count 2
  .amdhsa_user_sgpr_kernarg_segment_ptr 1
  .amdhsa_system_sgpr_workgroup_id_x 1
  .amdhsa_float_denorm_mode_32 3
.end_amdhsa_kernel
"""
    return out, rep, errs

if __name__ == "__main__":
    opts = {}
    path = f"cdna_kernels/{NAME}.s"
    for arg in sys.argv[1:]:
        if arg.startswith("-o"): path = arg[2:]
        else:
            k, _, v = arg.partition("="); opts[k] = int(v) if v else True
    out, rep, errs = build(**opts)
    open(path, "w").write(out)
    print(f"{path}: {out.count(chr(10))} lines, {len(rep)} nop sites, {sum(r[0] for r in rep)} states")
    if opts.get("verbose"):
        for r in rep: print("  nop", r)
    for e in errs: print("WAIT ERROR:", e)
```

```python
import sys, math, struct
from asmlib import Asm, insert_nops, check_waits

NAME = "adaLN_cond__grouped_kv_mqa__moe_arch_mod__prompt"
OPT = dict(stamps=False, force_slow=False, spin=1 << 17)

def f2u(x): return struct.unpack("<I", struct.pack("<f", x))[0]

WS_MODG = 0x1000
WS_KVF  = 0x9000
WS_OF   = 0x20000
WS_KV   = 0x40000
KVREC   = 5376
WS_OX   = 0x80000
WS_ST   = 0x300000
WS_WIN  = 0x380000
WS_H2   = 0x384000
WS_BASE = 0x3A0000
WS_ACT  = 0x3D0000
WS_DBG  = 0x1000000
L_W    = 0
L_WKV  = 102400
L_R2   = 128000
L_MODV = 152576
L_MISC = 157696
L_SIL  = L_MISC
L_P0P  = L_MISC + 1280
L_LN   = L_MISC + 1536
L_CNT  = L_MISC + 2560
L_VEC  = L_MISC + 2816
L_YP   = L_MISC + 4608
L_AX   = L_WKV
L_AL   = L_WKV + 36864
L_AM   = L_AL + 2048
L_OXC  = L_AM + 2048
LDS_BYTES = 163840
assert L_OXC + 12288 <= L_MISC and L_YP + 256 <= LDS_BYTES
C_P0, C_GA, C_GB, C_ADONE, C_WO, C_PAIR, C_Y = 0, 4, 8, 12, 16, 20, 36

X, WQ, WK, WV, WO, WR, WG, WU, WD, CC, WM, OUT, DBG, WS = (f"s[{i}:{i+1}]" for i in (8, 10, 12, 14, 16, 20, 22, 24, 26, 28, 30, 32, 34, 36))
def lo(p): return "s" + p[2:].split(":")[0]
def hi(p): return "s" + p[2:-1].split(":")[1]
sW, sW4, sWH, sRB, sCB, sTAG, sPASS, sGEN, sCG, sSPIN = (f"s{i}" for i in range(38, 48))
SRD = "s[48:51]"
T0, T1, T2 = "s[52:53]", "s[54:55]", "s[56:57]"
t0, t1, t2, t3, t4, t5 = (f"s{i}" for i in range(58, 64))
sSA, sC0, sWINR, sWINT, sSOFF, sLOOP, sSEND1, sSEND2, sSEND3, sBLK = (f"s{i}" for i in range(64, 74))
sP4, sP8 = "s82", "s83"
MK_N0, MK_LO, MK_A, MK_B = "s[74:75]", "s[76:77]", "s[78:79]", "s[80:81]"
sST = 84
vL, vN, vG = "v1", "v2", "v3"
def vr(a, n=1): return f"v{a}" if n == 1 else f"v[{a}:{a+n-1}]"

a = Asm()
_uid = [0]
def uid(p):
    _uid[0] += 1; return f"{p}_{_uid[0]}"

def stamp(i):
    if not OPT["stamps"]: return
    a(f"""s_memrealtime s[{sST}:{sST+1}]
          s_waitcnt lgkmcnt(0)
          v_writelane_b32 v0, s{sST}, {i}""")

def endpgm():
    if OPT["stamps"]:
        a(f"""s_mov_b64 exec, -1
              v_lshl_add_u32 v4, {vL}, 2, s{sST+2}
              global_store_dword v4, v0, {WS}""")
    if OPT.get("dbgstamps"):
        for wg, wave, base, ids in ((0, 0, 0, (31, 21, 3, 6, 7, 10, 12, 13)), (255, 4, 32, (31, 0, 6, 7, 8, 15, 16, 17))):
            L = uid("L_dbg")
            a(f"""s_cmp_lg_u32 s2, {wg}
                  s_cbranch_scc1 {L}
                  s_cmp_lg_u32 {sW}, {wave}
                  s_cbranch_scc1 {L}
                  v_mov_b32 v4, 0""")
            for i, k in enumerate(ids):
                a(f"""v_readlane_b32 {t0}, v0, {k}
                      s_and_b32 {t0}, {t0}, 0xfffff
                      v_mov_b32 v5, {t0}
                      global_store_dword v4, v5, {DBG} offset:{base + 4*i}""")
            a.label(L)
    a("s_endpgm")

def base_add(dst, src, off):
    a(f"s_add_u32 {lo(dst)}, {lo(src)}, {off}\ns_addc_u32 {hi(dst)}, {hi(src)}, 0")

def lds_signal(cnt, va, vb):
    a(f"""v_mov_b32 {va}, {cnt}
          v_mov_b32 {vb}, 1
          s_waitcnt lgkmcnt(0)
          s_mov_b64 exec, 1
          ds_add_u32 {va}, {vb} 
          s_mov_b64 exec, -1""")

def lds_wait(target, va, vb, sleep=0):
    L, E = uid("L_lw"), uid("L_lwe")
    a(f"s_mov_b32 {sSPIN}, {OPT['spin'] * 8}")
    a.label(L)
    a(f"""ds_read_b32 {vb}, {va}
          s_sub_u32 {sSPIN}, {sSPIN}, 1
          s_cbranch_scc1 {E}
          s_waitcnt lgkmcnt(0)
          v_readfirstlane_b32 {t5}, {vb}
          s_cmp_ge_u32 {t5}, {target}""")
    if sleep:
        a(f"s_cbranch_scc1 {E}\ns_sleep {sleep}\ns_branch {L}")
    else:
        a(f"s_cbranch_scc0 {L}")
    a.label(E)
    a("s_waitcnt lgkmcnt(0)")

def poll(loads, bad, sleep=0):
    L, E = uid("L_pl"), uid("L_ple")
    a(f"s_mov_b32 {sSPIN}, {OPT['spin']}")
    a.label(L)
    a(loads)
    a(f"""s_sub_u32 {sSPIN}, {sSPIN}, 1
          s_cbranch_scc1 {E}
          s_waitcnt vmcnt(0)""")
    a(bad)
    if sleep:
        a(f"s_cbranch_vccz {E}\ns_sleep {sleep}\ns_branch {L}")
    else:
        a(f"s_cbranch_vccnz {L}")
    a.label(E)
    a("s_waitcnt vmcnt(0)")

def unpack(dlo, dhi, src):
    a(f"v_lshlrev_b32 {dlo}, 16, {src}\nv_and_b32 {dhi}, 0xffff0000, {src}")

def w_dma_patterns(dst):
    for i in range(5):
        d = vr(dst + i)
        a(f"""v_add_u32 v4, {64*i}, {vL}
              v_mul_u32_u24 v5, 6554, v4
              v_lshrrev_b32 v5, 16, v5
              v_mul_u32_u24 v6, 10, v5
              v_sub_u32 v6, v4, v6
              v_and_b32 v7, 12, v5
              v_lshlrev_b32 v7, 1, v7
              v_and_or_b32 v7, v5, 3, v7
              v_lshrrev_b32 v5, 2, v5
              v_and_or_b32 v7, v5, 4, v7
              v_mul_u32_u24 v7, 1280, v7
              v_lshl_add_u32 {d}, v6, 4, v7""")

def w_dma(src, pat):
    a(f"""s_mul_i32 {t0}, {sW4}, {5*40960}
          s_mul_i32 {t1}, {sCB}, 160
          s_add_u32 {t0}, {t0}, {t1}
          s_add_u32 {lo(T0)}, {lo(src)}, {t0}
          s_addc_u32 {hi(T0)}, {hi(src)}, 0
          s_mul_i32 {t2}, {sW4}, {5*5120}""")
    for st in range(5):
        for i in range(5):
            a(f"s_add_u32 m0, {t2}, {L_W + st*5120 + i*1024}\nglobal_load_lds_dwordx4 {vr(pat+i)}, {T0}")
        if st < 4: base_add(T0, T0, 40960)

def prologue():
    XR = 16
    a(f"""s_cmp_ge_u32 s2, 256
          s_cbranch_scc1 L_exit
          s_load_dwordx16 s[8:23], s[0:1], 0
          s_load_dwordx8 s[24:31], s[0:1], 64
          s_load_dwordx4 s[32:35], s[0:1], 96
          s_load_dwordx2 s[36:37], s[0:1], 112
          v_and_b32 {vL}, 63, v0
          v_lshrrev_b32 v4, 6, v0
          v_and_b32 {vN}, 15, v0
          v_readfirstlane_b32 {sW}, v4
          v_lshrrev_b32 {vG}, 4, {vL}
          s_and_b32 {t0}, s2, 7
          s_lshr_b32 {t1}, s2, 3
          s_and_b32 {sCB}, {t1}, 7
          s_lshr_b32 {t1}, {t1}, 3
          s_lshl_b32 {t0}, {t0}, 2
          s_add_u32 {sRB}, {t0}, {t1}
          s_and_b32 {sW4}, {sW}, 3
          s_lshr_b32 {sWH}, {sW}, 2
          s_lshl_b32 {sBLK}, {sRB}, 3
          s_add_u32 {sBLK}, {sBLK}, {sCB}
          s_and_b32 {t0}, s2, 7
          s_lshr_b32 {t1}, s2, 3
          s_and_b32 {t2}, {t1}, 3
          s_lshl_b32 {sP4}, {t0}, 2
          s_or_b32 {sP4}, {sP4}, {t2}
          s_and_b32 {t2}, s2, 0xe0
          s_or_b32 {sP4}, {sP4}, {t2}
          s_lshl_b32 {sP8}, {t0}, 3
          s_or_b32 {sP8}, {sP8}, {sCB}
          s_and_b32 {t2}, s2, 0xc0
          s_or_b32 {sP8}, {sP8}, {t2}
          v_cmp_eq_u32 {MK_N0}, 0, {vN}
          s_mov_b32 {lo(MK_LO)}, -1
          s_mov_b32 {hi(MK_LO)}, 0
          s_lshl_b32 {t0}, {sRB}, 6
          s_lshl_b32 {t1}, {sW4}, 4
          s_add_u32 {t0}, {t0}, {t1}
          v_add_u32 v8, {t0}, {vN}
          v_mul_u32_u24 v8, 1280, v8
          s_mul_i32 {t1}, {sWH}, 640
          v_lshl_add_u32 v8, {vG}, 4, v8
          v_add_u32 v8, {t1}, v8""")
    if OPT["stamps"]:
        a(f"""s_lshl_b32 s{sST+2}, s2, 3
              s_add_u32 s{sST+2}, s{sST+2}, {sW}
              s_lshl_b32 s{sST+2}, s{sST+2}, 8
              s_add_u32 s{sST+2}, s{sST+2}, {WS_DBG}
              v_mov_b32 v0, 0""")
        stamp(31)
    a(f"""s_cmp_lg_u32 {sWH}, 0
          s_cbranch_scc1 L_proQ""")
    a(f"""s_setprio 1
          v_mov_b32 v4, 0
          v_lshlrev_b32 v5, 2, {vN}
          v_add_u32 v5, {L_CNT}, v5
          ds_write_b32 v5, v4
          s_min_u32 {t3}, {sP4}, 239
          v_min_u32 v9, 39, {vL}
          s_mul_i32 {t0}, {sW4}, 320
          v_lshl_add_u32 v9, v9, 3, {t0}
          v_lshrrev_b32 v10, 1, {vL}
          s_mul_i32 {t1}, {sW4}, 160
          v_add_u32 v10, {t1}, v10
          v_mul_u32_u24 v10, 7680, v10
          v_and_b32 v11, 1, {vL}
          v_lshl_add_u32 v10, v11, 4, v10
          s_lshl_b32 {t1}, {t3}, 5
          v_add_u32 v10, {t1}, v10
          s_mul_i32 {t2}, {sW4}, 5120
          s_waitcnt lgkmcnt(0)
          s_load_dword {sTAG}, {WS}, 0
          global_load_dwordx2 v[12:13], v9, {CC}""")
    for i in range(5):
        a(f"s_add_u32 m0, {t2}, {L_R2 + i*1024}\nglobal_load_lds_dwordx4 v10, {WM}")
        if i < 4: a(f"v_add_u32 v10, 245760, v10")
    a("s_barrier")
    for s in range(10):
        a(f"global_load_dwordx4 {vr(XR+4*s,4)}, v8, {X} offset:{64*s}")
    stamp(0)
    a("s_waitcnt vmcnt(15)")
    unpack("v56", "v57", "v12"); unpack("v58", "v59", "v13")
    for i in range(4): a(f"v_mul_f32 v{60+i}, {hex(f2u(-math.log2(math.e)))}, v{56+i}")
    for i in range(4): a(f"v_exp_f32 v{60+i}, v{60+i}")
    for i in range(4): a(f"v_add_f32 v{60+i}, 1.0, v{60+i}")
    for i in range(4): a(f"v_rcp_f32 v{60+i}, v{60+i}")
    for i in range(4): a(f"v_mul_f32 v{60+i}, v{56+i}, v{60+i}")
    a(f"""v_cvt_pk_bf16_f32 v12, v60, v61
          v_cvt_pk_bf16_f32 v13, v62, v63
          v_add_u32 v9, {L_SIL}, v9
          ds_write_b64 v9, v[12:13]
          s_mul_i32 {t0}, {sW4}, 320
          s_add_u32 {t0}, {t0}, {L_SIL}
          v_lshl_add_u32 v9, {vG}, 4, {t0}
          v_lshlrev_b32 v10, 8, {vG}
          v_lshl_add_u32 v10, {vN}, 3, v10
          s_add_u32 {t2}, {t2}, {L_R2}
          v_add_u32 v10, {t2}, v10
          s_waitcnt lgkmcnt(0)""")
    for i in range(5): a(f"ds_read_b128 {vr(56+4*i,4)}, v9 offset:{64*i}")
    a("s_waitcnt vmcnt(10)")
    stamp(20)
    for i in range(5):
        a(f"ds_read_b64_tr_b16 {vr(76+4*i,2)}, v10 offset:{1024*i}\nds_read_b64_tr_b16 {vr(78+4*i,2)}, v10 offset:{1024*i+128}")
    for i in range(5):
        a(f"s_waitcnt lgkmcnt({8-2*i})")
        a(f"v_mfma_f32_16x16x32_bf16 v[96:99], {vr(76+4*i,4)}, {vr(56+4*i,4)}, {'0' if i == 0 else 'v[96:99]'}")
    a(f"""s_lshl_b32 {t0}, {sW4}, 6
          s_add_u32 {t0}, {t0}, {L_P0P}
          v_lshl_add_u32 v9, {vG}, 4, {t0}
          s_mul_i32 {sTAG}, {sTAG}, 1664525
          s_add_u32 {sTAG}, {sTAG}, 1013904223
          s_cmp_eq_u32 {sW4}, 0
          s_cbranch_scc1 L_p0fin
          ds_write_b128 v9, v[96:99]""")
    lds_signal(L_CNT + C_P0, "v4", "v5")
    a("s_branch L_ln")
    a.label("L_p0fin")
    a(f"v_mov_b32 v4, {L_CNT + C_P0}")
    lds_wait(3, "v4", "v5")
    a(f"""ds_read_b128 v[56:59], v9 offset:64
          ds_read_b128 v[60:63], v9 offset:128
          ds_read_b128 v[64:67], v9 offset:192
          s_lshl_b32 {t0}, {sP4}, 7
          s_add_u32 {t0}, {t0}, {WS_MODG}
          v_lshl_add_u32 v9, {vG}, 4, {t0}
          v_mov_b32 v69, {sTAG}
          v_mov_b32 v71, {sTAG}
          s_waitcnt lgkmcnt(0)
          v_pk_add_f32 v[96:97], v[96:97], v[56:57]
          v_pk_add_f32 v[98:99], v[98:99], v[58:59]
          v_pk_add_f32 v[60:61], v[60:61], v[64:65]
          v_pk_add_f32 v[62:63], v[62:63], v[66:67]
          v_pk_add_f32 v[96:97], v[96:97], v[60:61]
          v_pk_add_f32 v[98:99], v[98:99], v[62:63]
          v_cvt_pk_bf16_f32 v68, v96, v97
          v_cvt_pk_bf16_f32 v70, v98, v99
          s_cmp_ge_u32 {sP4}, 240
          s_cbranch_scc1 L_ln
          s_mov_b64 exec, {MK_N0}
          global_store_dwordx4 v9, v[68:71], {WS} sc1
          s_mov_b64 exec, -1
          s_branch L_ln""")
    a.label("L_proQ")
    w_dma_patterns(9)
    a(f"s_waitcnt lgkmcnt(0)\ns_load_dword {sTAG}, {WS}, 0\ns_barrier")
    for s in range(10):
        a(f"global_load_dwordx4 {vr(XR+4*s,4)}, v8, {X} offset:{64*s}")
    stamp(20)
    w_dma(WQ, 9)
    a(f"""s_lshl_b32 {t0}, {sRB}, 1
          s_and_b32 {t1}, {sW4}, 1
          s_add_u32 {t0}, {t0}, {t1}
          s_mul_i32 {t1}, {t0}, 1280
          s_mul_i32 {t2}, {sCB}, 160
          s_add_u32 {t1}, {t1}, {t2}
          s_lshl_b32 {t2}, {t1}, 1
          s_add_u32 {t1}, {t1}, {WS_H2}
          s_add_u32 {t2}, {t2}, {WS_BASE - 160}
          v_min_u32 v4, 29, {vL}
          v_mov_b32 v5, {t1}
          v_mov_b32 v6, {t2}
          v_cmp_gt_u32 vcc, 10, v4
          v_cndmask_b32 v5, v6, v5, vcc
          v_lshl_add_u32 v5, v4, 4, v5
          s_lshl_b32 {t0}, {sP8}, 6
          s_add_u32 {t0}, {t0}, {WS_ACT}
          v_mov_b32 v6, {t0}
          s_cmp_ge_u32 {sW4}, 2
          s_cselect_b64 vcc, -1, 0
          v_cndmask_b32 v5, v5, v6, vcc
          v_mov_b32 v12, -1
          v_mov_b32 v13, -1
          v_mov_b32 v14, -1
          v_mov_b32 v15, -1
          global_store_dwordx4 v5, v[12:15], {WS} sc1
          s_waitcnt lgkmcnt(0)
          s_mul_i32 {sTAG}, {sTAG}, 1664525
          s_add_u32 {sTAG}, {sTAG}, 1013904223""")
    stamp(0)
    a(f"s_waitcnt vmcnt(26)\ns_branch L_ln2")

def layernorm1():
    XR, NR = 16, 56
    a.label("L_ln")
    stamp(21)
    a(f"""s_bitcmp1_b32 {sCB}, 0
          s_cselect_b64 {T0}, {WV}, {WK}
          v_lshlrev_b32 v10, 4, {vL}
          s_mul_i32 {t0}, {sW4}, 7""")
    for i in range(7):
        a(f"""s_add_u32 {t1}, {t0}, {i}
              s_min_u32 {t1}, {t1}, 24
              s_lshl_b32 {t1}, {t1}, 10
              s_add_u32 m0, {t1}, {L_WKV}
              v_add_u32 v11, {t1}, v10
              global_load_lds_dwordx4 v11, {T0}""")
    a("s_waitcnt vmcnt(7)")
    a.label("L_ln2")
    stamp(1)
    for i in range(4): a(f"v_mov_b32 v{136+i}, 0x3f803f80")
    for s in range(10):
        c1, c2 = ("0", "0") if s == 0 else ("v[140:143]", "v[144:147]")
        a(f"v_mfma_f32_16x16x32_bf16 v[140:143], v[136:139], {vr(XR+4*s,4)}, {c1}")
        a(f"v_mfma_f32_16x16x32_bf16 v[144:147], {vr(XR+4*s,4)}, {vr(XR+4*s,4)}, {c2}")
        unpack(vr(NR+8*s), vr(NR+8*s+1), vr(XR+4*s)); unpack(vr(NR+8*s+2), vr(NR+8*s+3), vr(XR+4*s+1))
    a(f"""v_and_b32 v4, 3, {vN}
          v_lshrrev_b32 v5, 2, {vN}
          v_cmp_eq_u32 {MK_A}, v5, {vG}
          s_lshl_b32 {t0}, {sW}, 7
          s_add_u32 {t0}, {t0}, {L_LN}
          v_lshl_add_u32 v6, {vN}, 3, {t0}
          v_cmp_eq_u32 vcc, 1, v4
          v_cndmask_b32 v141, v144, v145, vcc
          v_cmp_eq_u32 vcc, 2, v4
          v_cndmask_b32 v141, v141, v146, vcc
          v_cmp_eq_u32 vcc, 3, v4
          v_cndmask_b32 v141, v141, v147, vcc
          s_mov_b64 exec, {MK_A}
          ds_write_b64 v6, v[140:141]
          s_mov_b64 exec, -1
          s_lshl_b32 {t0}, {sW4}, 7
          s_add_u32 {t0}, {t0}, {L_LN}
          v_lshl_add_u32 v6, {vN}, 3, {t0}""")
    for s in range(10):
        unpack(vr(NR+8*s+4), vr(NR+8*s+5), vr(XR+4*s+2)); unpack(vr(NR+8*s+6), vr(NR+8*s+7), vr(XR+4*s+3))
    a(f"""s_waitcnt lgkmcnt(0)
          s_barrier
          ds_read_b64 v[8:9], v6
          ds_read_b64 v[10:11], v6 offset:512
          s_waitcnt lgkmcnt(0)
          v_pk_add_f32 v[8:9], v[8:9], v[10:11]
          v_mul_f32 v8, {hex(f2u(1/640))}, v8
          v_mul_f32 v9, {hex(f2u(1/640))}, v9
          v_fma_f32 v9, -v8, v8, v9
          v_max_f32 v9, 0, v9
          v_add_f32 v9, {hex(f2u(1e-5))}, v9
          v_rsq_f32 v10, v9
          v_mul_f32 v8, -1.0, v8
          v_mul_f32 v12, v8, v10""")
    for i in range(40):
        a(f"v_pk_fma_f32 {vr(NR+2*i,2)}, {vr(NR+2*i,2)}, v[10:11], v[12:13] op_sel_hi:[1,0,0]")

NR, ACC, WF, AS, HF = 56, 136, 160, 16, 48
def wq_reads(s):
    r = WF + 24 * (s % 4)
    out = []
    for t in range(5):
        for j in range(2):
            out.append(f"ds_read_b64_tr_b16 {vr(r+4*t+2*j,2)}, v8 offset:{s*5120 + j*2560 + 8*t}")
    for j in range(2):
        out.append(f"ds_read_b64_tr_b16 {vr(r+20+2*j,2)}, v9 offset:{s*1280 + j*160}")
    return out
def as_reads(s):
    r = AS + 16 * (s % 2)
    return [f"ds_read_b128 {vr(r,4)}, v10 offset:{2560 + s*128}", f"ds_read_b128 {vr(r+4,4)}, v10 offset:{2560 + s*128 + 16}",
            f"ds_read_b128 {vr(r+8,4)}, v10 offset:{s*128}", f"ds_read_b128 {vr(r+12,4)}, v10 offset:{s*128 + 16}"]

def qkv():
    a(f"""v_mul_u32_u24 v8, 40, {vL}
          s_mul_i32 {t0}, {sWH}, 51200
          v_add_u32 v8, {t0}, v8
          v_lshrrev_b32 v4, 2, {vN}
          v_lshl_add_u32 v4, {vG}, 3, v4
          v_mul_u32_u24 v9, 40, v4
          v_and_b32 v4, 3, {vN}
          v_lshlrev_b32 v4, 3, v4
          s_bitcmp1_b32 {sCB}, 1
          s_cselect_b64 vcc, -1, 0
          v_cndmask_b32 v4, v4, 32, vcc
          s_mul_i32 {t0}, {sWH}, 12800
          s_add_u32 {t0}, {t0}, {L_WKV}
          v_add3_u32 v9, v9, v4, {t0}
          s_mul_i32 {t0}, {sWH}, 1280
          s_add_u32 {t0}, {t0}, {L_MODV}
          v_lshl_add_u32 v10, {vG}, 5, {t0}
          s_waitcnt vmcnt(0)
          s_barrier""")
    stamp(2)
    for s in range(4): a("\n".join(wq_reads(s)))
    a(f"""s_cmp_ge_u32 {sW}, 5
          s_cbranch_scc1 L_modok
          v_lshl_add_u32 v7, {sW}, 6, {vL}
          v_lshrrev_b32 v4, 2, v7
          v_lshlrev_b32 v4, 7, v4
          v_and_b32 v5, 3, v7
          v_lshl_add_u32 v4, v5, 4, v4
          v_add_u32 v4, {WS_MODG}, v4
          v_lshlrev_b32 v5, 4, v7
          v_add_u32 v5, {L_MODV}, v5
          v_cmp_le_u32 vcc, 160, v7
          v_cndmask_b32 v6, 0, 1.0, vcc""")
    poll(f"global_load_dwordx4 v[16:19], v4, {WS} sc1",
         f"v_cmp_ne_u32 vcc, {sTAG}, v17\nv_cmp_ne_u32 {T0}, {sTAG}, v19\ns_or_b64 vcc, vcc, {T0}")
    unpack("v20", "v21", "v16"); unpack("v22", "v23", "v18")
    a("""v_pk_add_f32 v[20:21], v[20:21], v[6:7] op_sel_hi:[1,0]
         v_pk_add_f32 v[22:23], v[22:23], v[6:7] op_sel_hi:[1,0]
         v_cvt_pk_bf16_f32 v16, v20, v21
         v_cvt_pk_bf16_f32 v18, v22, v23""")
    unpack("v20", "v21", "v16"); unpack("v22", "v23", "v18")
    a("ds_write_b128 v5, v[20:23]")
    a.label("L_modok")
    a("s_waitcnt lgkmcnt(0)\ns_barrier")
    stamp(3)
    a("\n".join(as_reads(0)))
    a(f"s_bitcmp1_b32 {sCB}, 0\ns_cbranch_scc1 L_kloopV")
    for typ in "KV":
        if typ == "V": a.label("L_kloopV")
        for s in range(10):
            r, h, w = AS + 16 * (s % 2), HF + 4 * (s % 2), WF + 24 * (s % 4)
            if s < 9: a("\n".join(as_reads(s + 1)))
            a(f"s_waitcnt lgkmcnt({4 if s < 9 else 0})")
            for i in range(4):
                a(f"v_pk_fma_f32 {vr(NR+8*s+2*i,2)}, {vr(NR+8*s+2*i,2)}, {vr(r+2*i,2)}, {vr(r+8+2*i,2)}")
            for i in range(4):
                a(f"v_cvt_pk_bf16_f32 {vr(h+i)}, {vr(NR+8*s+2*i)}, {vr(NR+8*s+2*i+1)}")
            for t in (5, 0, 1, 2, 3, 4):
                c = "0" if s == 0 else vr(ACC+4*t, 4)
                A, B = vr(w+4*t, 4), vr(h, 4)
                if t == 5 and typ == "V": A, B = B, A
                a(f"v_mfma_f32_16x16x32_bf16 {vr(ACC+4*t,4)}, {A}, {B}, {c}")
            if s + 4 < 10: a("\n".join(wq_reads(s + 4)))
        if typ == "K": a("s_branch L_kdone")
    a.label("L_kdone")
    stamp(4)
    a(f"""s_mul_i32 {t0}, {sW}, 3072
          s_add_u32 {t0}, {t0}, {L_R2}
          v_lshl_add_u32 v4, {vL}, 4, {t0}
          s_xor_b32 {t0}, {sW}, 4
          s_mul_i32 {t0}, {t0}, 3072
          s_add_u32 {t0}, {t0}, {L_R2}
          v_lshl_add_u32 v5, {vL}, 4, {t0}
          s_lshr_b32 {t0}, {sW4}, 1
          s_mul_i32 {t0}, {t0}, 5120
          s_and_b32 {t1}, {sW4}, 1
          s_add_u32 {t0}, {t0}, {L_WKV}
          v_mul_u32_u24 v6, 1280, {vG}
          v_add_u32 v6, {t0}, v6
          v_lshl_add_u32 v7, {t1}, 4, {vN}
          s_mov_b32 {lo(T1)}, {hex(f2u(math.log2(math.e) / math.sqrt(20)))}
          s_cmp_lg_u32 {sWH}, 0
          s_cbranch_scc1 L_ex1""")
    for kh, (keep, send) in enumerate((((0, 1, 4), (2, 3, 5)), ((2, 3, 5), (0, 1, 4)))):
        if kh: a.label("L_ex1")
        for i, t in enumerate(send): a(f"ds_write_b128 v4, {vr(ACC+4*t,4)} offset:{1024*i}")
        if kh:
            a(f"""s_lshr_b32 {t0}, {sW4}, 1
                  v_lshrrev_b32 v9, 1, {vG}
                  v_and_b32 v10, 1, {vG}
                  s_mov_b64 {MK_A}, -1
                  s_mov_b64 {MK_B}, 0
                  v_mov_b32 v12, 0x3f803f80
                  v_mov_b32 v13, 0x3f803f80
                  s_bitcmp1_b32 {sCB}, 0
                  s_cbranch_scc1 L_kvaV
                  s_bitcmp1_b32 {sCB}, 1
                  s_cbranch_scc1 L_kvaKr
                  s_lshl_b32 {t0}, {t0}, 10
                  v_lshl_add_u32 v8, v9, 9, {t0}
                  v_lshl_add_u32 v8, v7, 4, v8
                  v_lshl_add_u32 v8, v10, 3, v8
                  s_branch L_kvaE""")
            a.label("L_kvaKr")
            a(f"""s_lshl_b32 {t0}, {t0}, 3
                  s_add_u32 {t0}, {t0}, 2048
                  v_lshl_add_u32 v8, v7, 4, {t0}
                  v_lshlrev_b32 v9, 3, {vN}
                  v_add_u32 v9, 2560, v9
                  s_mov_b64 {MK_B}, 0x30000
                  s_mov_b64 {MK_A}, 0x3ffff
                  v_cndmask_b32 v8, v8, v9, {MK_B}
                  v_mov_b32 v13, 0x3f80
                  s_branch L_kvaE""")
            a.label("L_kvaV")
            a(f"""s_mul_i32 {t0}, {sW4}, 672
                  s_add_u32 {t0}, {t0}, 2688
                  v_mul_u32_u24 v8, 336, v9
                  v_lshl_add_u32 v8, {vN}, 4, v8
                  v_lshl_add_u32 v8, v10, 3, v8
                  v_add_u32 v8, {t0}, v8
                  s_bitcmp1_b32 {sCB}, 1
                  s_cbranch_scc0 L_kvaE
                  v_add_u32 v8, 256, v8
                  v_cmp_ge_u32 {MK_A}, 4, {vN}
                  v_cmp_eq_u32 {MK_B}, 4, {vN}""")
            a.label("L_kvaE")
            a(f"""s_mul_i32 {t0}, {sRB}, {KVREC}
                  s_add_u32 {t0}, {t0}, {WS_KV}
                  v_add_u32 v8, {t0}, v8""")
        a("s_waitcnt lgkmcnt(0)\ns_barrier")
        order = (2, 0, 1) if kh else (0, 1, 2)
        for i in order: a(f"ds_read_b128 {vr(16+4*i,4)}, v5 offset:{1024*i}")
        a(f"v_lshl_add_u32 v9, v7, 4, v6")
        if kh:
            r = ACC + 20
            a(f"""s_waitcnt lgkmcnt(2)
                  v_pk_add_f32 {vr(r,2)}, {vr(r,2)}, v[24:25]
                  v_pk_add_f32 {vr(r+2,2)}, {vr(r+2,2)}, v[26:27]
                  v_cvt_pk_bf16_f32 v14, {vr(r)}, {vr(r+1)}
                  v_cvt_pk_bf16_f32 v15, {vr(r+2)}, {vr(r+3)}
                  v_cndmask_b32 v14, v14, v12, {MK_B}
                  v_cndmask_b32 v15, v15, v13, {MK_B}
                  s_cmp_ge_u32 {sCB}, 4
                  s_cbranch_scc1 L_nokv
                  s_mov_b64 exec, {MK_A}
                  global_store_dwordx2 v8, v[14:15], {WS} sc1
                  s_mov_b64 exec, -1""")
            a.label("L_nokv")
        else:
            a("v_lshl_add_u32 v10, v7, 3, v6")
        a("s_waitcnt lgkmcnt(0)")
        for i, t in enumerate(keep[:2] if kh else keep):
            r = ACC + 4 * t
            a(f"""v_pk_add_f32 {vr(r,2)}, {vr(r,2)}, {vr(16+4*i,2)}
                  v_pk_add_f32 {vr(r+2,2)}, {vr(r+2,2)}, {vr(18+4*i,2)}
                  v_pk_mul_f32 {vr(r,2)}, {vr(r,2)}, {T1} op_sel_hi:[1,0]
                  v_pk_mul_f32 {vr(r+2,2)}, {vr(r+2,2)}, {T1} op_sel_hi:[1,0]
                  v_cvt_pk_bf16_f32 {vr(28+2*i)}, {vr(r)}, {vr(r+1)}
                  v_cvt_pk_bf16_f32 {vr(29+2*i)}, {vr(r+2)}, {vr(r+3)}""")
        a(f"ds_write_b128 v9, v[28:31] offset:{512*kh}")
        if not kh: a("ds_write_b64 v10, v[32:33] offset:1024\ns_branch L_exd")
    a.label("L_exd")
    a(f"""s_waitcnt vmcnt(0) lgkmcnt(0)
          s_barrier
          s_cmp_lg_u32 {sW}, 4
          s_cbranch_scc1 L_noflag
          s_lshl_b32 {t0}, {sBLK}, 7
          s_add_u32 {t0}, {t0}, {WS_KVF}
          v_mov_b32 v4, {t0}
          v_mov_b32 v5, {sTAG}
          s_mov_b64 exec, 1
          global_store_dword v4, v5, {WS} sc1
          s_mov_b64 exec, -1""")
    a.label("L_noflag")
    stamp(5)

QA, QB, KVB, SB, OA = 16, 32, 40, 96, 160
vKA, vKB, vV, vIDX = "v8", "v9", "v10", "v11"
def kvreg(p):
    b = KVB + 28 * p
    return dict(KA=(b, b + 4), KB=b + 8, V=((b + 12, b + 16), (b + 20, b + 24)))
def ld_ka(p, T, so): return f"buffer_load_dwordx4 {vr(kvreg(p)['KA'][T],4)}, {vKA}, {SRD}, {so} offen offset:{1024*T} sc1"
def ld_kb(p, so): return f"buffer_load_dwordx4 {vr(kvreg(p)['KB'],4)}, {vKB}, {SRD}, {so} offen sc1"
def ld_v(p, T, j, so): return f"buffer_load_dwordx4 {vr(kvreg(p)['V'][T][j],4)}, {vV}, {SRD}, {so} offen offset:{1344*T + 672*j} sc1"
def q8(p, T, j): return f"v_mfma_f32_32x32x8bf16_1k {vr(SB+16*j,16)}, {vr(kvreg(p)['KB']+2*T,2)}, {vr(QB+2*j,2)}, 0"
def q16(p, T, j): return f"v_mfma_f32_32x32x16_bf16 {vr(SB+16*j,16)}, {vr(kvreg(p)['KA'][T],4)}, {vr(QA+4*j,4)}, {vr(SB+16*j,16)}"
def pv(p, T, j, h): return f"v_smfmac_f32_32x32x32_bf16 {vr(OA+16*j,16)}, {vr(kvreg(p)['V'][T][h],4)}, {vr(SB+16*j+8*h,8)}, {vIDX}"

def attention():
    a(f"""s_mul_i32 {t0}, {sWH}, 5120
          s_add_u32 {t0}, {t0}, {L_WKV}
          v_lshl_add_u32 v4, {vL}, 4, {t0}
          v_lshl_add_u32 v5, {vL}, 3, {t0}""")
    for j in range(8): a(f"v_mov_b32 {vr(QB+j)}, 0")
    for j in range(4):
        a(f"""s_add_u32 {t0}, {sW4}, {j}
              s_and_b32 {t0}, {t0}, 3
              s_mul_i32 {t1}, {t0}, 1280
              v_add_u32 v6, {t1}, v4
              v_add_u32 v7, {t1}, v5
              ds_read_b128 {vr(QA+4*j,4)}, v6
              s_mov_b64 exec, {MK_LO}
              ds_read_b64 {vr(QB+2*j,2)}, v7 offset:1024
              s_mov_b64 exec, -1""")
        if j: a(f"s_mul_i32 {(sSEND1, sSEND2, sSEND3)[j-1]}, {t0}, 9216")
    a(f"""v_lshlrev_b32 {vKA}, 4, {vL}
          v_min_u32 {vKB}, 32, {vL}
          v_lshlrev_b32 {vKB}, 4, {vKB}
          v_add_u32 {vKB}, 2048, {vKB}
          v_lshrrev_b32 v4, 5, {vL}
          v_and_b32 v5, 31, {vL}
          v_mul_u32_u24 {vV}, 336, v4
          v_lshl_add_u32 {vV}, v5, 4, {vV}
          v_add_u32 {vV}, 2688, {vV}
          v_mov_b32 v6, 0x40000000
          v_cmp_gt_u32 vcc, 21, v5
          v_cndmask_b32 {vV}, v6, {vV}, vcc
          v_mov_b32 {vIDX}, 0xdddddddd
          s_add_u32 s48, {lo(WS)}, {WS_KV}
          s_addc_u32 s49, {hi(WS)}, 0
          s_mov_b32 s50, {32*KVREC}
          s_mov_b32 s51, 0x20000
          s_mov_b32 {sPASS}, 0
          s_mov_b32 {sGEN}, 0
          s_cmp_lg_u32 {sWH}, 0
          s_cbranch_scc1 L_kvok
          v_lshrrev_b32 v4, 2, v5
          v_and_b32 v6, 3, v5
          v_lshl_add_u32 v4, v4, 3, v6
          s_lshl_b32 {t0}, {sW4}, 13
          s_add_u32 {t0}, {t0}, {WS_KVF}
          v_lshl_add_u32 v4, v4, 7, {t0}""")
    poll(f"global_load_dword v6, v4, {WS} sc1", f"v_cmp_ne_u32 vcc, {sTAG}, v6")
    a.label("L_kvok")
    a("s_waitcnt lgkmcnt(0)\ns_barrier")
    stamp(6)
    a.label("L_attn")
    a(f"""s_mul_i32 {sSOFF}, {sW4}, {8*KVREC}
          s_add_u32 {t0}, {sSOFF}, {KVREC}""")
    a("\n".join([ld_ka(0, 0, sSOFF), ld_kb(0, sSOFF), ld_v(0, 0, 0, sSOFF), ld_v(0, 0, 1, sSOFF), ld_ka(0, 1, sSOFF),
                 ld_v(0, 1, 0, sSOFF), ld_v(0, 1, 1, sSOFF), ld_ka(1, 0, t0), ld_v(1, 0, 0, t0), ld_v(1, 0, 1, t0), ld_ka(1, 1, t0), ld_kb(1, t0)]))
    for i in range(64): a(f"v_mov_b32 {vr(OA+i)}, 0")
    for i in range(8): a(f"v_mov_b32 {vr(SB+56+i)}, 0")
    for i in range(4): a(f"v_mov_b32 {vr(kvreg(1)['V'][1][1]+i)}, 0")
    a(f"""s_mov_b32 {sLOOP}, 0
          s_mov_b32 {t1}, {t0}
          s_add_u32 {t2}, {t0}, {KVREC}
          s_waitcnt vmcnt(10)""")
    a("\n".join([q8(0, 0, 0), q16(0, 0, 0), q8(0, 0, 1), q16(0, 0, 1)]))
    a("s_waitcnt vmcnt(7)\ns_nop 7")
    a(".p2align 6")
    a.label("L_loop")
    for p in range(2):
        for s in range(8):
            T, j = s // 4, s % 4
            X_ = SB + 16 * j
            e = lambda i: f"v_exp_f32 {vr(X_+i)}, {vr(X_+i)}"
            pp, pT, pj = (p, (s - 1) // 4, (s - 1) % 4) if s else (1 - p, 1, 3)
            np_, nT, nj = (p, (s + 2) // 4, (s + 2) % 4) if s < 6 else (1 - p, 0, s - 6)
            pre, mid = [], []
            if s == 1: pre = [ld_v(1 - p, 1, 0, t1), ld_v(1 - p, 1, 1, t1)]
            if s == 2: pre = [ld_ka(p, 0, t2)]
            if s == 4: mid = ["s_waitcnt vmcnt(8)"]
            if s == 5: pre = [ld_v(p, 0, 0, t2), ld_v(p, 0, 1, t2)]
            if s == 6: pre = ["s_waitcnt vmcnt(5)", ld_ka(p, 1, t2), ld_kb(p, t2)]
            if s == 7:
                pre = [f"s_mov_b32 {t1}, {t2}", f"s_add_u32 {t2}, {t2}, {KVREC}"]
                if p == 1:
                    pre += [f"s_add_u32 {sLOOP}, {sLOOP}, 1", f"s_cmp_ge_u32 {sLOOP}, 3", f"s_cselect_b32 {t2}, 0x1000000, {t2}",
                            f"s_cmp_lt_u32 {sLOOP}, 4"]
            a("\n".join([e(0), e(1), pv(pp, pT, pj, 1)] + pre + [e(2), e(3), e(4), e(5), q8(np_, nT, nj), e(6), e(7), e(8), e(9)] + mid +
                        [pv(p, T, j, 0), e(10), e(11), e(12), e(13), q16(np_, nT, nj), e(14), e(15)]))
    a("s_cbranch_scc1 L_loop")
    a(pv(1, 1, 3, 1))
    stamp(7)
    a(f"""s_cmp_eq_u32 {sWH}, 0
          s_cbranch_scc1 L_axfree
          v_mov_b32 v4, {L_CNT + C_ADONE}""")
    lds_wait(4, "v4", "v5", sleep=2)
    a.label("L_axfree")
    a(f"""v_lshlrev_b32 v4, 4, {vL}
          v_add_u32 v4, {L_AX}, v4
          v_and_b32 v12, 31, {vL}
          s_lshl_b32 {t0}, {sW4}, 2
          s_add_u32 {t0}, {t0}, {L_AL}
          v_lshl_add_u32 v13, v12, 4, {t0}
          s_waitcnt vmcnt(0)""")
    stamp(22)
    for j in (1, 2, 3):
        a(f"v_add_u32 v5, {(sSEND1, sSEND2, sSEND3)[j-1]}, v4")
        for r in range(3): a(f"ds_write_b128 v5, {vr(OA+16*j+4*r,4)} offset:{3072*(j-1) + 1024*r}")
    a(f"s_not_b64 exec, {MK_LO}")
    for j in range(4):
        a(f"""s_add_u32 {t0}, {sW4}, {j}
              s_and_b32 {t0}, {t0}, 3
              s_lshl_b32 {t0}, {t0}, 9
              v_add_u32 v5, {t0}, v13
              ds_write_b32 v5, {vr(OA+16*j+8)}""")
    a(f"""s_mov_b64 exec, -1
          s_lshl_b32 {t4}, {sWH}, 2
          s_add_u32 {t4}, {t4}, {L_CNT + C_GA}
          s_add_u32 {sGEN}, {sGEN}, 4""")
    lds_signal(t4, "v6", "v7")
    a(f"""s_mul_i32 {t0}, {sW4}, 9216
          v_add_u32 v5, {t0}, v4
          s_lshl_b32 {t0}, {sW4}, 9
          s_add_u32 {t0}, {t0}, {L_AL}
          v_lshl_add_u32 v14, v12, 4, {t0}""")
    stamp(23)
    lds_wait(sGEN, "v6", "v7")
    stamp(24)
    P = SB
    a(f"""ds_read_b128 {vr(P+36,4)}, v4 offset:{L_AL - L_AX}
          ds_read_b128 {vr(P+40,4)}, v4 offset:{L_AL - L_AX + 1024}
          ds_read_b128 {vr(P+44,4)}, v14""")
    for i in range(9): a(f"ds_read_b128 {vr(P+4*i,4)}, v5 offset:{1024*i}")
    a(f"""s_lshl_b32 {t0}, {sRB}, 1
          s_add_u32 {t0}, {t0}, {sWH}
          s_mul_i32 {t1}, {t0}, 40960
          s_mul_i32 {t2}, {sCB}, 2560
          s_add_u32 {t1}, {t1}, {t2}
          s_add_u32 {t1}, {t1}, {WS_OX}
          s_mul_i32 {t2}, {sW4}, 5
          v_lshrrev_b32 v15, 5, {vL}
          v_add_u32 v15, {t2}, v15
          v_and_b32 v4, 1, v15
          v_lshrrev_b32 v15, 1, v15
          v_lshlrev_b32 v15, 8, v15
          v_lshl_add_u32 v15, v4, 3, v15
          v_lshl_add_u32 v15, {vN}, 4, v15
          v_and_b32 v4, 1, {vG}
          v_mul_u32_u24 v4, 20480, v4
          v_add3_u32 v15, v15, v4, {t1}
          s_lshl_b32 {t0}, {t0}, 3
          s_add_u32 {t0}, {t0}, {sCB}
          s_lshl_b32 {t0}, {t0}, 2
          s_add_u32 {t0}, {t0}, {sW4}
          s_lshl_b32 {t0}, {t0}, 6
          s_add_u32 {t3}, {t0}, {WS_OF}
          s_waitcnt lgkmcnt(9)""")
    for k in (36, 40, 44):
        a(f"v_pk_add_f32 {vr(P+k,2)}, {vr(P+k,2)}, {vr(P+k+2,2)}\nv_add_f32 {vr(P+k)}, {vr(P+k)}, {vr(P+k+1)}")
    lo_, hi_ = hex(f2u(2.0 ** -60)), hex(f2u(2.0 ** 60))
    a(f"""v_rcp_f32 {vr(P+46)}, {vr(P+44)}
          v_cmp_nle_f32 vcc, {lo_}, {vr(P+36)}
          s_mov_b64 {T0}, vcc
          v_cmp_nge_f32 vcc, {hi_}, {vr(P+36)}
          s_or_b64 {T0}, {T0}, vcc
          v_cmp_nle_f32 vcc, {lo_}, {vr(P+40)}
          s_or_b64 {T0}, {T0}, vcc
          v_cmp_nge_f32 vcc, {hi_}, {vr(P+40)}
          s_or_b64 vcc, {T0}, vcc
          s_waitcnt lgkmcnt(0)""")
    if OPT["force_slow"]: a("s_mov_b64 vcc, -1")
    a(f"""s_cbranch_vccz L_fin
          s_cmp_eq_u32 {sPASS}, 0
          s_cbranch_scc1 L_slow""")
    a.label("L_fin")
    for i in range(6):
        a(f"""v_pk_add_f32 {vr(OA+2*i,2)}, {vr(OA+2*i,2)}, {vr(P+2*i,2)}
              v_pk_add_f32 {vr(P+12+2*i,2)}, {vr(P+12+2*i,2)}, {vr(P+24+2*i,2)}
              v_pk_add_f32 {vr(OA+2*i,2)}, {vr(OA+2*i,2)}, {vr(P+12+2*i,2)}
              v_pk_mul_f32 {vr(OA+2*i,2)}, {vr(OA+2*i,2)}, {vr(P+46,2)} op_sel_hi:[1,0]
              v_cvt_pk_bf16_f32 {vr(P+48+i)}, {vr(OA+2*i)}, {vr(OA+2*i+1)}""")
        if i == 5: a(f"s_mov_b64 exec, {MK_LO}")
        if i % 2: a(f"global_store_dwordx2 v15, {vr(P+47+i,2)}, {WS} offset:{128*(i-1)} sc1")
    stamp(25)
    a(f"""s_mov_b64 exec, 1
          v_mov_b32 v4, {t3}
          v_mov_b32 v5, {sTAG}
          s_waitcnt vmcnt(0)
          global_store_dword v4, v5, {WS} sc1
          s_mov_b64 exec, -1""")
    stamp(8)
    a(f"s_cmp_lg_u32 {sWH}, 0\ns_cbranch_scc1 L_ffn")

def slow_path():
    a.label("L_slow")
    a(f"""s_mov_b32 {sPASS}, 1
          s_mul_i32 {sSOFF}, {sW4}, {8*KVREC}
          s_mov_b32 {sLOOP}, 0""")
    for j in range(4): a(f"v_mov_b32 {vr(OA+j)}, 0xff800000")
    a.label("L_mx")
    a("\n".join([ld_ka(0, 0, sSOFF), ld_ka(0, 1, sSOFF), ld_kb(0, sSOFF), "s_waitcnt vmcnt(0)"]))
    for T in range(2):
        for j in range(4): a(q8(0, T, j) + "\n" + q16(0, T, j))
        for j in range(4):
            for i in range(8): a(f"v_max3_f32 {vr(OA+j)}, {vr(OA+j)}, {vr(SB+16*j+2*i)}, {vr(SB+16*j+2*i+1)}")
    a(f"""s_add_u32 {sSOFF}, {sSOFF}, {KVREC}
          s_add_u32 {sLOOP}, {sLOOP}, 1
          s_cmp_lt_u32 {sLOOP}, 8
          s_cbranch_scc1 L_mx""")
    for j in range(4):
        a(f"""v_mov_b32 v4, {vr(OA+j)}
              v_permlane32_swap_b32 v4, {vr(OA+j)}
              v_max_f32 {vr(OA+j)}, v4, {vr(OA+j)}
              s_add_u32 {t0}, {sW4}, {j}
              s_and_b32 {t0}, {t0}, 3
              s_lshl_b32 {t0}, {t0}, 9
              v_add_u32 {vr(OA+4+j)}, {t0}, v13
              ds_write_b32 {vr(OA+4+j)}, {vr(OA+j)} offset:2048""")
    a(f"s_add_u32 {sGEN}, {sGEN}, 4")
    lds_signal(t4, "v6", "v7")
    lds_wait(sGEN, "v6", "v7")
    a(f"s_lshl_b32 {t0}, {sW4}, 2")
    for j in range(4):
        a(f"v_subrev_u32 {vr(OA+4+j)}, {t0}, {vr(OA+4+j)}\nds_read_b128 {vr(SB+4*j,4)}, {vr(OA+4+j)} offset:2048")
    a(f"s_waitcnt lgkmcnt(0)\ns_not_b64 exec, {MK_LO}")
    for j in range(4):
        m = SB + 4 * j
        a(f"""v_max3_f32 {vr(m)}, {vr(m)}, {vr(m+1)}, {vr(m+2)}
              v_max_f32 {vr(m)}, {vr(m)}, {vr(m+3)}
              v_xor_b32 {vr(m)}, 0x80000000, {vr(m)}
              v_and_b32 {vr(m+1)}, 0xffff0000, {vr(m)}
              v_sub_f32 {vr(m)}, {vr(m)}, {vr(m+1)}
              v_and_b32 {vr(m+2)}, 0xffff0000, {vr(m)}
              v_sub_f32 {vr(m)}, {vr(m)}, {vr(m+2)}
              v_lshrrev_b32 {vr(m+1)}, 16, {vr(m+1)}
              v_or_b32 {vr(QB+2*j)}, {vr(m+1)}, {vr(m+2)}
              v_lshrrev_b32 {vr(QB+2*j+1)}, 16, {vr(m)}""")
    a("s_mov_b64 exec, -1\ns_branch L_attn")

def allreduce_g(regs, tmp, op="v_add_f32"):
    for swap in ("v_permlane32_swap_b32", "v_permlane16_swap_b32"):
        for i, r in enumerate(regs): a(f"v_mov_b32 {vr(tmp+i)}, {vr(r)}")
        for i, r in enumerate(regs): a(f"{swap} {vr(tmp+i)}, {vr(r)}")
        for i, r in enumerate(regs): a(f"{op} {vr(r)}, {vr(tmp+i)}, {vr(r)}")

def row_allreduce(regs, op):
    for k in (8, 4, 2, 1):
        for r in regs: a(f"{op}_dpp {vr(r)}, {vr(r)}, {vr(r)} row_ror:{k} row_mask:0xf bank_mask:0xf")

OF, OAC, OW = 16, 56, 76
def outproj():
    lds_signal(L_CNT + C_ADONE, "v4", "v5")
    w_dma_patterns(9)
    w_dma(WO, 9)
    a(f"""v_min_u32 v4, 19, {vL}
          s_mul_i32 {t0}, {sCB}, 20
          v_add_u32 v5, {t0}, v4
          v_lshlrev_b32 v6, 3, v5
          v_lshrrev_b32 v7, 2, v5
          v_and_b32 v5, 3, v5
          v_lshlrev_b32 v7, 7, v7
          v_lshl_add_u32 v7, v5, 4, v7
          v_add_u32 v7, {WS_MODG + 80*128}, v7
          v_add_u32 v8, 5120, v7
          v_add_u32 v9, 10240, v7
          v_add_u32 v10, 15360, v7
          v_lshlrev_b32 v4, 4, v4
          v_add_u32 v4, {L_VEC}, v4""")
    for k in range(3):
        a(f"""v_add_u32 v5, {64*k}, {vL}
              v_min_u32 v5, 159, v5
              v_lshlrev_b32 {vr(11+k)}, 3, v5
              v_lshrrev_b32 {vr(70+k)}, 2, v5
              v_and_b32 v5, 3, v5
              v_lshlrev_b32 {vr(70+k)}, 7, {vr(70+k)}
              v_lshl_add_u32 {vr(70+k)}, v5, 4, {vr(70+k)}
              v_add_u32 {vr(70+k)}, {WS_MODG + 120*128}, {vr(70+k)}
              v_add_u32 {vr(73+k)}, 5120, {vr(70+k)}
              global_load_dwordx2 {vr(56+2*k,2)}, {vr(11+k)}, {WR}""")
    a(f"global_load_dwordx2 v[62:63], v6, {WR}")
    lds = [f"global_load_dwordx4 {vr(16+4*i,4)}, {vr(r)}, {WS} sc1" for i, r in enumerate((7, 8, 9, 10, 70, 71, 72, 73, 74, 75))]
    bad = [f"v_cmp_ne_u32 vcc, {sTAG}, v17"] + [f"v_cmp_ne_u32 {T0}, {sTAG}, {vr(17+2*i)}\ns_or_b64 vcc, vcc, {T0}" for i in range(1, 20)]
    poll("\n".join(lds), "\n".join(bad), sleep=4)
    def unp4(dst, r0, r1): unpack(vr(dst), vr(dst+1), vr(r0)); unpack(vr(dst+2), vr(dst+3), vr(r1))
    def plus1(r, t):
        a(f"""v_pk_add_f32 {vr(r,2)}, {vr(r,2)}, 1.0 op_sel_hi:[1,0]
              v_pk_add_f32 {vr(r+2,2)}, {vr(r+2,2)}, 1.0 op_sel_hi:[1,0]
              v_cvt_pk_bf16_f32 {vr(t)}, {vr(r)}, {vr(r+1)}
              v_cvt_pk_bf16_f32 {vr(t+1)}, {vr(r+2)}, {vr(r+3)}""")
        unp4(r, t, t + 1)
    unp4(80, 16, 18); unp4(84, 24, 26); plus1(84, 64); unp4(88, 20, 22); unp4(92, 28, 30); unp4(96, 62, 63)
    a("v_pk_mul_f32 v[96:97], v[96:97], v[84:85]\nv_pk_mul_f32 v[98:99], v[98:99], v[86:87]")
    for i in range(5): a(f"ds_write_b128 v4, {vr(80+4*i,4)} offset:{320*i}")
    a("v_mov_b32 v100, 0\nv_mov_b32 v101, 0")
    for k in range(3):
        unp4(104, 32 + 4*k, 34 + 4*k); unp4(108, 44 + 4*k, 46 + 4*k); plus1(108, 64); unp4(112, 56 + 2*k, 57 + 2*k)
        if k == 2: a(f"s_mov_b64 exec, {MK_LO}")
        for i in range(4): a(f"v_fmac_f32 v100, {vr(108+i)}, {vr(112+i)}\nv_fmac_f32 v101, {vr(104+i)}, {vr(112+i)}")
    a("s_mov_b64 exec, -1")
    row_allreduce((100, 101), "v_add_f32")
    allreduce_g((100, 101), 102)
    a(f"v_readfirstlane_b32 {sSA}, v100\nv_readfirstlane_b32 {sC0}, v101")
    lds_signal(L_CNT + C_WO, "v4", "v5")
    lds_wait(4, "v4", "v5", sleep=2)
    sTT, sKH = sSEND1, sSEND2
    a(f"""s_and_b32 {sTT}, {sW4}, 1
          s_lshr_b32 {sKH}, {sW4}, 1
          v_mul_u32_u24 v8, 40, {vL}
          s_mul_i32 {t0}, {sKH}, 51200
          v_add_u32 v8, {t0}, v8
          s_mov_b32 {sCG}, 0
          s_mov_b32 {sGEN}, 0""")
    a.label("L_op")
    def wo_reads(s, slot):
        return "\n".join(f"ds_read_b64_tr_b16 {vr(OW+20*slot+4*t+2*j,2)}, v8 offset:{s*5120 + j*2560 + 8*t}" for t in range(5) for j in range(2))
    for s in range(9): a(wo_reads(s, s))
    a(f"""s_lshl_b32 {t0}, {sRB}, 1
          s_add_u32 {t0}, {t0}, {sCG}
          s_lshl_b32 {t1}, {t0}, 11
          s_lshl_b32 {t2}, {sKH}, 10
          s_add_u32 {t1}, {t1}, {t2}
          s_add_u32 {t1}, {t1}, {WS_OF}
          v_lshl_add_u32 v9, {vN}, 6, {t1}
          s_lshl_b32 {t1}, {t0}, 1
          s_add_u32 {t1}, {t1}, {sTT}
          s_mul_i32 {t2}, {t1}, 20480
          s_mul_i32 {t3}, {sKH}, 10240
          s_add_u32 {t2}, {t2}, {t3}
          s_add_u32 {t2}, {t2}, {WS_OX + 4096}
          v_lshl_add_u32 v10, {vL}, 4, {t2}
          s_lshl_b32 {t2}, {t1}, 4
          v_add_u32 v11, {t2}, {vN}
          v_mul_u32_u24 v11, 1280, v11
          v_mul_u32_u24 v4, 40, {vG}
          s_mul_i32 {t2}, {sCB}, 160
          s_mul_i32 {t3}, {sKH}, 24
          s_add_u32 {t2}, {t2}, {t3}
          v_add_u32 v14, {t2}, v4
          v_add_u32 v11, v14, v11
          s_lshl_b32 {t2}, {t1}, 12
          s_lshl_b32 {t3}, {sCB}, 9
          s_add_u32 {t2}, {t2}, {t3}
          s_lshl_b32 {t3}, {sKH}, 8
          s_add_u32 {t2}, {t2}, {t3}
          s_add_u32 {t2}, {t2}, {WS_ST}
          v_lshl_add_u32 v12, {vN}, 4, {t2}
          s_lshl_b32 {t2}, {t0}, 13
          s_add_u32 {t2}, {t2}, {WS_ST + 4096}
          v_lshlrev_b32 v13, 10, {vG}
          v_lshl_add_u32 v13, {vN}, 4, v13
          v_add_u32 v13, {t2}, v13
          v_add_u32 v15, 0x2000, v10
          s_waitcnt lgkmcnt(0)
          s_cmp_eq_u32 {sCG}, 0
          s_cbranch_scc1 L_opgo
          s_barrier""")
    a.label("L_opgo")
    stamp(9)
    poll(f"global_load_dword v4, v9, {WS} sc1", f"v_cmp_ne_u32 vcc, {sTAG}, v4", sleep=1)
    stamp(10)
    for s in range(10):
        if s < 8: a(f"global_load_dwordx4 {vr(OF+4*s,4)}, v10, {WS} offset:{1024*s - 4096} sc1")
        else: a(f"global_load_dwordx4 {vr(OF+4*s,4)}, v15, {WS} offset:{1024*(s-8) - 4096} sc1")
    a(f"""global_load_dwordx2 v[4:5], v11, {X}
          global_load_dwordx2 v[6:7], v11, {X} offset:8""")
    for s in range(10):
        a(f"s_waitcnt vmcnt({11-s})" + (" lgkmcnt(0)" if s == 9 else ""))
        slot = s if s < 9 else 0
        for t in range(5):
            a(f"v_mfma_f32_16x16x32_bf16 {vr(OAC+4*t,4)}, {vr(OW+20*slot+4*t,4)}, {vr(OF+4*s,4)}, {'0' if s == 0 else vr(OAC+4*t,4)}")
        if s == 1: a(wo_reads(9, 0))
    VE = OW + 20
    EX = OF
    a(f"""s_mul_i32 {t0}, {sW4}, 3072
          s_add_u32 {t0}, {t0}, {L_OXC}
          v_lshl_add_u32 v9, {vL}, 4, {t0}
          s_xor_b32 {t0}, {sW4}, 2
          s_mul_i32 {t0}, {t0}, 3072
          s_add_u32 {t0}, {t0}, {L_OXC}
          v_lshl_add_u32 v10, {vL}, 4, {t0}
          v_mul_u32_u24 v15, 80, {vG}
          s_mul_i32 {t0}, {sKH}, 48
          s_add_u32 {t0}, {t0}, {L_VEC}
          v_add_u32 v15, {t0}, v15
          s_lshl_b32 {t4}, {sTT}, 2
          s_add_u32 {t4}, {t4}, {L_CNT + C_PAIR}
          s_add_u32 {sGEN}, {sGEN}, 2
          s_cmp_lg_u32 {sKH}, 0
          s_cbranch_scc1 L_oe1""")
    X1, H2, S1 = 160, 176, 192
    for kh, (keep, send) in enumerate((((0, 1, 2), (3, 4)), ((3, 4), (0, 1, 2)))):
        nk = len(keep)
        if kh: a.label("L_oe1")
        else: a(f"global_load_dwordx2 v[54:55], v11, {X} offset:16")
        for i, t in enumerate(send): a(f"ds_write_b128 v9, {vr(OAC+4*t,4)} offset:{1024*i}")
        lds_signal(t4, "v52", "v53")
        for arr in (0, 4):
            for i in range(nk): a(f"ds_read_b128 {vr(VE+12*arr+4*i,4)}, v15 offset:{320*arr + 16*i}")
        a("s_waitcnt vmcnt(0)")
        for i, r in enumerate((4, 6, 54)[:nk]):
            unpack(vr(X1+4*i), vr(X1+4*i+1), vr(r)); unpack(vr(X1+4*i+2), vr(X1+4*i+3), vr(r+1))
        lds_wait(sGEN, "v52", "v53")
        for i in range(nk): a(f"ds_read_b128 {vr(EX+4*i,4)}, v10 offset:{1024*i}")
        for arr in (1, 2, 3):
            for i in range(nk): a(f"ds_read_b128 {vr(VE+12*arr+4*i,4)}, v15 offset:{320*arr + 16*i}")
        a(f"s_waitcnt lgkmcnt({3*nk})")
        for i, t in enumerate(keep):
            for h in range(2):
                r, x = OAC + 4*t + 2*h, X1 + 4*i + 2*h
                a(f"v_pk_add_f32 {vr(r,2)}, {vr(r,2)}, {vr(EX+4*i+2*h,2)}")
                a(f"v_pk_fma_f32 {vr(x,2)}, {vr(r,2)}, {vr(VE+4*i+2*h,2)}, {vr(x,2)}")
                if i == 0 and h == 0:
                    a(f"""v_mov_b64 {vr(S1,2)}, {vr(x,2)}
                          v_pk_mul_f32 {vr(S1+2,2)}, {vr(x,2)}, {vr(x,2)}
                          v_pk_mul_f32 {vr(S1+4,2)}, {vr(x,2)}, {vr(VE+48,2)}""")
                else:
                    a(f"""v_pk_add_f32 {vr(S1,2)}, {vr(S1,2)}, {vr(x,2)}
                          v_pk_fma_f32 {vr(S1+2,2)}, {vr(x,2)}, {vr(x,2)}, {vr(S1+2,2)}
                          v_pk_fma_f32 {vr(S1+4,2)}, {vr(x,2)}, {vr(VE+48+4*i+2*h,2)}, {vr(S1+4,2)}""")
        if not kh: a("s_branch L_oe2")
    a.label("L_oe2")
    G = 200
    a(f"""v_add_f32 {vr(G)}, {vr(S1)}, {vr(S1+1)}
          v_add_f32 {vr(G+1)}, {vr(S1+2)}, {vr(S1+3)}
          v_add_f32 {vr(G+2)}, {vr(S1+4)}, {vr(S1+5)}
          v_mov_b32 {vr(G+3)}, {sTAG}""")
    allreduce_g((G, G + 1, G + 2), G + 4)
    a(f"""s_mov_b64 exec, 0xffff
          global_store_dwordx4 v12, {vr(G,4)}, {WS} sc1
          s_mov_b64 exec, -1""")
    stamp(11)
    ST = 16
    lds = [f"global_load_dwordx4 {vr(ST+16*u+4*i,4)}, v13, {WS} offset:{4096*(u-1) + 256*i} sc1" for u in range(2) for i in range(4)]
    bad = [f"v_cmp_ne_u32 vcc, {sTAG}, {vr(ST+3)}"] + [f"v_cmp_ne_u32 {T0}, {sTAG}, {vr(ST+3+4*i)}\ns_or_b64 vcc, vcc, {T0}" for i in range(1, 8)]
    poll("\n".join(lds), "\n".join(bad), sleep=1)
    stamp(12)
    for u in range(2):
        b = ST + 16 * u
        a(f"""v_pk_add_f32 {vr(b,2)}, {vr(b,2)}, {vr(b+4,2)}
              v_pk_add_f32 {vr(b+8,2)}, {vr(b+8,2)}, {vr(b+12,2)}
              v_add_f32 {vr(b+2)}, {vr(b+2)}, {vr(b+6)}
              v_add_f32 {vr(b+10)}, {vr(b+10)}, {vr(b+14)}
              v_pk_add_f32 {vr(b,2)}, {vr(b,2)}, {vr(b+8,2)}
              v_add_f32 {vr(b+2)}, {vr(b+2)}, {vr(b+10)}""")
    allreduce_g((ST, ST + 1, ST + 2, ST + 16, ST + 17, ST + 18), G)
    for u in range(2):
        b = ST + 16 * u
        a(f"""v_mul_f32 {vr(b)}, {hex(f2u(-1/640))}, {vr(b)}
              v_mul_f32 {vr(b+1)}, {hex(f2u(1/640))}, {vr(b+1)}
              v_fma_f32 {vr(b+1)}, -{vr(b)}, {vr(b)}, {vr(b+1)}
              v_max_f32 {vr(b+1)}, 0, {vr(b+1)}
              v_add_f32 {vr(b+1)}, {hex(f2u(1e-5))}, {vr(b+1)}
              v_rsq_f32 {vr(b+1)}, {vr(b+1)}
              v_fma_f32 {vr(b+2)}, {vr(b)}, {sSA}, {vr(b+2)}
              v_fma_f32 {vr(b+2)}, {vr(b+2)}, {vr(b+1)}, {sC0}""")
    a(f"""s_mov_b32 {lo(T0)}, 0xffff0000
          s_mov_b32 {hi(T0)}, 0xffff0000
          v_cndmask_b32 {vr(G)}, {vr(ST+2)}, {vr(ST+18)}, {T0}
          v_max_f32 {vr(G+1)}, {vr(ST+2)}, {vr(ST+18)}""")
    row_allreduce((G + 1,), "v_max_f32")
    a(f"""s_cmp_lg_u32 {sTT}, 0
          s_cselect_b64 {T1}, -1, 0
          v_cmp_eq_f32 vcc, {vr(G)}, {vr(G+1)}
          v_cndmask_b32 {vr(ST+4)}, {vr(ST+1)}, {vr(ST+17)}, {T1}
          v_cndmask_b32 {vr(ST+6)}, {vr(ST)}, {vr(ST+16)}, {T1}
          s_ff1_i32_b32 {sWINT}, vcc_lo
          s_and_b32 {sWINT}, {sWINT}, 31
          s_lshl_b32 {t0}, {sRB}, 1
          s_add_u32 {t0}, {t0}, {sCG}
          s_or_b32 {t1}, {sCB}, {sW4}
          s_cmp_lg_u32 {t1}, 0
          s_cbranch_scc1 L_nowin
          s_lshl_b32 {t1}, {t0}, 5
          s_add_u32 {t1}, {t1}, {sWINT}
          s_lshl_b32 {t2}, {t0}, 7
          s_add_u32 {t2}, {t2}, {WS_WIN}
          v_mov_b32 {vr(G+4)}, {vr(G+1)}
          v_mov_b32 {vr(G+5)}, {t1}
          v_mov_b32 {vr(G+6)}, 0
          v_mov_b32 {vr(G+7)}, {sTAG}
          v_mov_b32 v4, {t2}
          s_mov_b64 exec, 1
          global_store_dwordx4 v4, {vr(G+4,4)}, {WS} sc1
          s_mov_b64 exec, -1""")
    a.label("L_nowin")
    a(f"""v_mul_f32 {vr(ST+6)}, {vr(ST+6)}, {vr(ST+4)}
          s_lshl_b32 {t1}, {sTT}, 4
          s_sub_u32 {t1}, {sWINT}, {t1}
          v_cmp_eq_u32 {MK_A}, {t1}, {vN}
          s_mul_i32 {t1}, {t0}, 1280
          v_add_u32 v14, {t1}, v14
          v_lshlrev_b32 v9, 1, v14
          v_add_u32 v9, {WS_BASE}, v9
          v_add_u32 v14, {WS_H2}, v14
          s_waitcnt lgkmcnt(0)""")
    for i in range(6):
        x, h = X1 + 2*i, H2 + 2*i
        a(f"""v_pk_fma_f32 {vr(h,2)}, {vr(x,2)}, {vr(ST+4,2)}, {vr(ST+6,2)} op_sel_hi:[1,0,0]
              v_pk_fma_f32 {vr(h,2)}, {vr(h,2)}, {vr(VE+12+2*i,2)}, {vr(VE+24+2*i,2)}
              v_pk_fma_f32 {vr(x,2)}, {vr(h,2)}, {vr(VE+36+2*i,2)}, {vr(x,2)}
              v_cvt_pk_bf16_f32 {vr(G+i)}, {vr(h)}, {vr(h+1)}
              v_min_u32 {vr(G+i)}, -2, {vr(G+i)}
              v_cvt_pk_bf16_f32 {vr(G+8+i)}, {vr(x)}, {vr(x+1)}
              v_min_u32 {vr(x)}, -2, {vr(x)}""")
    a(f"""s_cmp_eq_u32 {sKH}, 0
          s_and_saveexec_b64 {T0}, {MK_A}
          s_cbranch_execz L_nocand
          global_store_dwordx2 v14, {vr(G,2)}, {WS} sc1
          global_store_dwordx2 v14, {vr(G+2,2)}, {WS} offset:8 sc1
          global_store_dwordx4 v9, {vr(X1,4)}, {WS} sc1
          global_store_dwordx4 v9, {vr(X1+4,4)}, {WS} offset:16 sc1
          s_cmp_lg_u32 {sKH}, 0
          s_cbranch_scc1 L_nocand
          global_store_dwordx2 v14, {vr(G+4,2)}, {WS} offset:16 sc1
          global_store_dwordx4 v9, {vr(X1+8,4)}, {WS} offset:32 sc1""")
    a.label("L_nocand")
    a(f"""s_not_b64 exec, {MK_A}
          global_store_dwordx2 v11, {vr(G+8,2)}, {OUT}
          global_store_dwordx2 v11, {vr(G+10,2)}, {OUT} offset:8
          s_cmp_lg_u32 {sKH}, 0
          s_cbranch_scc1 L_o2
          global_store_dwordx2 v11, {vr(G+12,2)}, {OUT} offset:16""")
    a.label("L_o2")
    a("s_mov_b64 exec, -1")
    stamp(13)
    a(f"""s_add_u32 {sCG}, {sCG}, 1
          s_cmp_lt_u32 {sCG}, 2
          s_cbranch_scc1 L_op""")
    endpgm()

def find_winner():
    a(f"v_lshlrev_b32 v8, 7, {vL}\nv_add_u32 v8, {WS_WIN}, v8")
    poll(f"global_load_dwordx4 v[4:7], v8, {WS} sc1", f"v_cmp_ne_u32 vcc, {sTAG}, v7", sleep=1)
    a("v_mov_b32 v9, v4")
    row_allreduce((9,), "v_max_f32")
    allreduce_g((9,), 10, "v_max_f32")
    a(f"""v_cmp_eq_f32 vcc, v4, v9
          s_ff1_i32_b64 {t3}, vcc
          s_and_b32 {t3}, {t3}, 63
          v_readlane_b32 {sWINT}, v5, {t3}
          v_readlane_b32 {sWINR}, v4, {t3}""")

def ffn():
    FW, FA = 16, 96
    a.label("L_ffn")
    a(f"""s_barrier
          v_lshrrev_b32 v4, 1, {vL}
          v_and_b32 v5, 1, {vL}
          v_lshlrev_b32 v14, 8, {vG}
          v_lshl_add_u32 v14, {vN}, 3, v14
          s_cmp_ge_u32 {sP8}, 216
          s_cbranch_scc1 L_ffn2
          s_cmp_lg_u32 {sW4}, 0
          s_cbranch_scc1 L_end
          v_mul_u32_u24 v4, 3456, v4
          s_lshl_b32 {t0}, {sP8}, 4
          v_add_u32 v4, {t0}, v4
          v_cmp_eq_u32 vcc, 1, v5
          v_mov_b32 v6, {lo(WG)}
          v_mov_b32 v7, {hi(WG)}
          v_mov_b32 v8, {lo(WU)}
          v_mov_b32 v9, {hi(WU)}
          v_cndmask_b32 v6, v6, v8, vcc
          v_cndmask_b32 v7, v7, v9, vcc
          v_add_co_u32 v6, vcc, v6, v4
          v_addc_co_u32 v7, vcc, 0, v7, vcc""")
    for s in range(20):
        a(f"s_mov_b32 m0, {L_W + 1024*s}\nglobal_load_lds_dwordx4 v[6:7], off")
        if s < 19: a(f"v_add_co_u32 v6, vcc, {32*3456}, v6\nv_addc_co_u32 v7, vcc, 0, v7, vcc")
    a("s_waitcnt vmcnt(0)")
    for s in range(20):
        a(f"ds_read_b64_tr_b16 {vr(FW+4*s,2)}, v14 offset:{1024*s}\nds_read_b64_tr_b16 {vr(FW+4*s+2,2)}, v14 offset:{1024*s+128}")
    stamp(14)
    find_winner()
    stamp(15)
    a(f"""s_mul_i32 {t0}, {t3}, 1280
          s_add_u32 {t0}, {t0}, {WS_H2}
          v_lshl_add_u32 v8, {vG}, 4, {t0}
          s_lshl_b32 {t0}, {sP8}, 6
          s_add_u32 {t0}, {t0}, {WS_ACT}
          v_lshl_add_u32 v9, {vG}, 3, {t0}
          s_mov_b64 exec, {MK_N0}""")
    def maxchain(n):
        regs = [FA + 2*i for i in range(2 * n)]
        out = [f"v_max_u32 v10, {vr(regs[0])}, {vr(regs[1])}"]
        out += [f"v_max3_u32 v10, v10, {vr(regs[i])}, {vr(regs[i+1])}" for i in range(2, 2 * n, 2)]
        return "\n".join(out + ["v_cmp_eq_u32 vcc, -1, v10"])
    poll("\n".join(f"global_load_dwordx4 {vr(FA+4*s,4)}, v8, {WS} offset:{64*s} sc1" for s in range(20)), maxchain(20))
    a("s_mov_b64 exec, -1\ns_waitcnt lgkmcnt(0)")
    for s in range(20):
        d = 176 + 4 * (s % 2)
        a(f"v_mfma_f32_16x16x32_bf16 {vr(d,4)}, {vr(FW+4*s,4)}, {vr(FA+4*s,4)}, {'0' if s < 2 else vr(d,4)}")
    a("v_pk_add_f32 v[176:177], v[176:177], v[180:181]\nv_pk_add_f32 v[178:179], v[178:179], v[182:183]")
    for i in range(4): a(f"v_mov_b32 {vr(180+i)}, {vr(176+i)}")
    for i in range(4): a(f"v_permlane32_swap_b32 {vr(176+i)}, {vr(180+i)}")
    for i in range(4): a(f"v_mul_f32 {vr(184+i)}, {hex(f2u(-math.log2(math.e)))}, {vr(176+i)}")
    for i in range(4): a(f"v_exp_f32 {vr(184+i)}, {vr(184+i)}")
    for i in range(4): a(f"v_add_f32 {vr(184+i)}, 1.0, {vr(184+i)}")
    for i in range(4): a(f"v_rcp_f32 {vr(184+i)}, {vr(184+i)}")
    for i in range(4): a(f"v_mul_f32 {vr(176+i)}, {vr(176+i)}, {vr(180+i)}")
    for i in range(4): a(f"v_mul_f32 {vr(176+i)}, {vr(176+i)}, {vr(184+i)}")
    a(f"""v_cvt_pk_bf16_f32 v12, v176, v177
          v_cvt_pk_bf16_f32 v13, v178, v179
          v_min_u32 v12, -2, v12
          s_mov_b64 exec, 0x10001
          global_store_dwordx2 v9, v[12:13], {WS} sc1
          s_mov_b64 exec, -1""")
    stamp(16)
    a(f"""s_cmp_lg_u32 s2, 0
          s_cbranch_scc1 L_end
          v_mov_b32 v4, 0
          v_mov_b32 v5, {sTAG}
          s_mov_b64 exec, 1
          global_store_dword v4, v5, {WS}""")
    endpgm()
    a.label("L_ffn2")
    sQ, sS0 = sSEND1, sSEND2
    a(f"""s_sub_u32 {sQ}, {sP8}, 216
          s_mul_i32 {sS0}, {sW4}, 14
          s_min_u32 {sS0}, {sS0}, 40
          s_mul_i32 {t0}, {sS0}, 40960
          s_lshl_b32 {t1}, {sQ}, 5
          s_add_u32 {t0}, {t0}, {t1}
          v_mul_u32_u24 v4, 1280, v4
          v_lshl_add_u32 v4, v5, 4, v4
          v_add_u32 v4, {t0}, v4
          s_and_b32 {t1}, {sW4}, 1
          s_mul_i32 {t1}, {t1}, 14336
          s_lshr_b32 {t2}, {sW4}, 1
          s_mul_i32 {t2}, {t2}, 51200
          s_add_u32 {t2}, {t2}, {t1}
          v_add_u32 v14, {t2}, v14""")
    for s in range(14):
        a(f"s_add_u32 m0, {t2}, {L_W + 1024*s}\nglobal_load_lds_dwordx4 v4, {WD}")
        if s < 13: a("v_add_u32 v4, 40960, v4")
    a(f"""s_lshl_b32 {t0}, {sQ}, 7
          s_add_u32 {t0}, {t0}, {WS_MODG + 200*128}
          v_lshl_add_u32 v12, {vG}, 4, {t0}
          s_waitcnt vmcnt(0)""")
    for s in range(14):
        a(f"ds_read_b64_tr_b16 {vr(FW+4*s,2)}, v14 offset:{1024*s}\nds_read_b64_tr_b16 {vr(FW+4*s+2,2)}, v14 offset:{1024*s+128}")
    a(f"""s_waitcnt lgkmcnt(0)
          s_cmp_lg_u32 {sW4}, 3
          s_cbranch_scc1 L_f2full""")
    for i in range(8): a(f"v_mov_b32 {vr(FW+i)}, 0")
    a.label("L_f2full")
    stamp(14)
    find_winner()
    stamp(15)
    a(f"""global_load_dwordx4 v[188:191], v12, {WS} sc1
          s_lshl_b32 {t0}, {sW4}, 4
          v_add_u32 v8, {t0}, {vN}
          v_lshlrev_b32 v9, 2, v8
          ds_bpermute_b32 v10, v9, v5
          v_cmp_ne_u32 {MK_A}, {t3}, v8
          v_mul_u32_u24 v8, 2560, v8
          s_lshl_b32 {t0}, {sQ}, 6
          s_add_u32 {t0}, {t0}, {WS_BASE}
          v_lshl_add_u32 v9, {vG}, 4, {t0}
          v_add_u32 v8, v9, v8
          s_mul_i32 {t0}, {t3}, 2560
          v_add_u32 v9, {t0}, v9
          s_lshl_b32 {t0}, {sQ}, 5
          v_lshl_add_u32 v11, {vG}, 3, {t0}
          s_waitcnt lgkmcnt(0)
          v_and_b32 v10, 2047, v10
          v_mul_u32_u24 v10, 1280, v10
          v_add_u32 v15, v11, v10
          s_and_b32 {sWINT}, {sWINT}, 2047
          s_mul_i32 {t0}, {sWINT}, 1280
          v_add_u32 v11, {t0}, v11""")
    poll(f"global_load_dwordx4 v[196:199], v8, {WS} sc1\nglobal_load_dwordx4 v[200:203], v9, {WS} sc1",
         "v_max_u32 v10, v196, v200\nv_cmp_eq_u32 vcc, -1, v10")
    unpack("v192", "v193", "v188"); unpack("v194", "v195", "v190")
    a(f"""v_cvt_pk_bf16_f32 v12, v196, v197
          v_cvt_pk_bf16_f32 v13, v198, v199
          s_mov_b64 exec, {MK_A}
          global_store_dwordx2 v15, v[12:13], {OUT}
          s_mov_b64 exec, -1
          v_mov_b32 v204, {sWINR}
          v_mul_f32 v204, {hex(f2u(-math.log2(math.e)))}, v204
          v_exp_f32 v204, v204
          s_lshl_b32 {t0}, {sS0}, 8
          s_add_u32 {t0}, {t0}, {WS_ACT}
          v_add_f32 v204, 1.0, v204
          v_rcp_f32 v204, v204
          v_lshl_add_u32 v8, {vG}, 6, {t0}
          v_pk_mul_f32 v[192:193], v[192:193], v[204:205] op_sel_hi:[1,0]
          v_pk_mul_f32 v[194:195], v[194:195], v[204:205] op_sel_hi:[1,0]
          s_lshl_b32 {t0}, {sW4}, 6
          s_add_u32 {t0}, {t0}, {L_YP}
          v_lshl_add_u32 v9, {vG}, 4, {t0}
          s_mov_b64 exec, {MK_N0}""")
    poll("\n".join(f"global_load_dwordx4 {vr(FA+4*s,4)}, v8, {WS} offset:{256*s} sc1" for s in range(14)), maxchain(14))
    a("s_mov_b64 exec, -1")
    stamp(16)
    for s in range(14):
        d = 176 + 4 * (s % 2)
        a(f"v_mfma_f32_16x16x32_bf16 {vr(d,4)}, {vr(FW+4*s,4)}, {vr(FA+4*s,4)}, {'0' if s < 2 else vr(d,4)}")
    a(f"""v_pk_add_f32 v[176:177], v[176:177], v[180:181]
          v_pk_add_f32 v[178:179], v[178:179], v[182:183]
          s_cmp_eq_u32 {sW4}, 0
          s_cbranch_scc1 L_f2fin
          s_mov_b64 exec, {MK_N0}
          ds_write_b128 v9, v[176:179]
          s_mov_b64 exec, -1""")
    lds_signal(L_CNT + C_Y, "v4", "v5")
    endpgm()
    a.label("L_f2fin")
    a(f"v_mov_b32 v4, {L_CNT + C_Y}")
    lds_wait(3, "v4", "v5")
    a(f"""ds_read_b128 v[180:183], v9 offset:64
          ds_read_b128 v[184:187], v9 offset:128
          ds_read_b128 v[188:191], v9 offset:192
          s_waitcnt lgkmcnt(0)
          v_pk_add_f32 v[176:177], v[176:177], v[180:181]
          v_pk_add_f32 v[178:179], v[178:179], v[182:183]
          v_pk_add_f32 v[184:185], v[184:185], v[188:189]
          v_pk_add_f32 v[186:187], v[186:187], v[190:191]
          v_pk_add_f32 v[176:177], v[176:177], v[184:185]
          v_pk_add_f32 v[178:179], v[178:179], v[186:187]
          v_pk_fma_f32 v[200:201], v[176:177], v[192:193], v[200:201]
          v_pk_fma_f32 v[202:203], v[178:179], v[194:195], v[202:203]
          v_cvt_pk_bf16_f32 v12, v200, v201
          v_cvt_pk_bf16_f32 v13, v202, v203
          s_mov_b64 exec, {MK_N0}
          global_store_dwordx2 v11, v[12:13], {OUT}
          s_mov_b64 exec, -1""")
    stamp(17)
    a.label("L_end")
    endpgm()
    a.label("L_exit")
    a("s_endpgm")

def build(**opt):
    global a
    OPT.update(opt)
    a.lines.clear(); _uid[0] = 0
    prologue(); layernorm1(); qkv(); attention(); outproj(); ffn(); slow_path()
    rep = []
    lines, nn = insert_nops(a.lines, rep)
    errs = check_waits(lines)
    head = open(f"cdna_kernels/{NAME}.s.ref").read().split("; Override launch")[0]
    out = head + f"; @launch grid=(256,1,1) block=(512,1,1) lds={LDS_BYTES}\n"
    out += f""".amdgcn_target "amdgcn-amd-amdhsa--gfx950"
.text
.globl {NAME}_kernel
.p2align 8
.type {NAME}_kernel,@function
{NAME}_kernel:
"""
    out += "\n".join(l if l.endswith(":") or l.startswith(".") else "    " + l for l in lines)
    out += f"""
.section .rodata,"a"
.p2align 6
.amdhsa_kernel {NAME}_kernel
  .amdhsa_next_free_vgpr 256
  .amdhsa_next_free_sgpr 96
  .amdhsa_accum_offset 256
  .amdhsa_group_segment_fixed_size 0
  .amdhsa_kernarg_size 120
  .amdhsa_user_sgpr_count 2
  .amdhsa_user_sgpr_kernarg_segment_ptr 1
  .amdhsa_system_sgpr_workgroup_id_x 1
  .amdhsa_float_denorm_mode_32 3
.end_amdhsa_kernel
"""
    return out, rep, errs

if __name__ == "__main__":
    opts = {}
    path = f"cdna_kernels/{NAME}.s"
    for arg in sys.argv[1:]:
        if arg.startswith("-o"): path = arg[2:]
        else:
            k, _, v = arg.partition("="); opts[k] = int(v) if v else True
    out, rep, errs = build(**opts)
    open(path, "w").write(out)
    print(f"{path}: {out.count(chr(10))} lines, {len(rep)} nop sites, {sum(r[0] for r in rep)} states")
    if opts.get("verbose"):
        for r in rep: print("  nop", r)
    for e in errs: print("WAIT ERROR:", e)
```

```python
import sys, math, struct
from asmlib import Asm, insert_nops, check_waits

NAME = "adaLN_cond__grouped_kv_mqa__moe_arch_mod__prompt"
OPT = dict(stamps=False, force_slow=False, spin=1 << 17)

def f2u(x): return struct.unpack("<I", struct.pack("<f", x))[0]

WS_MODG = 0x1000
WS_KVF  = 0x9000
WS_OF   = 0x20000
WS_KV   = 0x40000
KVREC   = 5376
WS_OX   = 0x80000
WS_ST   = 0x300000
WS_WIN  = 0x380000
WS_H2   = 0x384000
WS_BASE = 0x3A0000
WS_ACT  = 0x3D0000
WS_DBG  = 0x1000000
L_W    = 0
L_WKV  = 102400
L_R2   = 128000
L_MODV = 152576
L_MISC = 157696
L_SIL  = L_MISC
L_P0P  = L_MISC + 1280
L_LN   = L_MISC + 1536
L_CNT  = L_MISC + 2560
L_VEC  = L_MISC + 2816
L_YP   = L_MISC + 4608
L_AX   = L_WKV
L_AL   = L_WKV + 36864
L_AM   = L_AL + 2048
L_OXC  = L_AM + 2048
LDS_BYTES = 163840
assert L_OXC + 12288 <= L_MISC and L_YP + 256 <= LDS_BYTES
C_P0, C_GA, C_GB, C_ADONE, C_WO, C_PAIR, C_Y, C_P1, C_WC, C_BPUB, C_FF = 0, 4, 8, 12, 16, 20, 36, 40, 44, 48, 52
PAT = 224

X, WQ, WK, WV, WO, WR, WG, WU, WD, CC, WM, OUT, DBG, WS = (f"s[{i}:{i+1}]" for i in (8, 10, 12, 14, 16, 20, 22, 24, 26, 28, 30, 32, 34, 36))
def lo(p): return "s" + p[2:].split(":")[0]
def hi(p): return "s" + p[2:-1].split(":")[1]
sW, sW4, sWH, sRB, sCB, sTAG, sPASS, sGEN, sCG, sSPIN = (f"s{i}" for i in range(38, 48))
SRD = "s[48:51]"
T0, T1, T2 = "s[52:53]", "s[54:55]", "s[56:57]"
t0, t1, t2, t3, t4, t5 = (f"s{i}" for i in range(58, 64))
sSA, sC0, sWINR, sWINT, sSOFF, sLOOP, sSEND1, sSEND2, sSEND3, sBLK = (f"s{i}" for i in range(64, 74))
sP4, sP8 = "s82", "s83"
MK_N0, MK_LO, MK_A, MK_B = "s[74:75]", "s[76:77]", "s[78:79]", "s[80:81]"
OB0, OB1 = "s[84:85]", "s[86:87]"
sSTS, sSTL, sCAND = "s88", "s89", "s90"
sST = 92
vL, vN, vG = "v1", "v2", "v3"
def vr(a, n=1): return f"v{a}" if n == 1 else f"v[{a}:{a+n-1}]"

a = Asm()
_uid = [0]
def uid(p):
    _uid[0] += 1; return f"{p}_{_uid[0]}"

def stamp(i):
    if not OPT["stamps"]: return
    a(f"""s_memrealtime s[{sST}:{sST+1}]
          s_waitcnt lgkmcnt(0)
          v_writelane_b32 v0, s{sST}, {i}""")

def endpgm():
    if OPT["stamps"]:
        a(f"""s_mov_b64 exec, -1
              v_lshl_add_u32 v4, {vL}, 2, s{sST+2}
              global_store_dword v4, v0, {WS}""")
    if OPT.get("dbgstamps"):
        for wg, wave, base, ids in ((0, 0, 0, (31, 21, 3, 6, 7, 10, 12, 13)), (255, 4, 32, (31, 0, 6, 7, 8, 15, 16, 17))):
            L = uid("L_dbg")
            a(f"""s_cmp_lg_u32 s2, {wg}
                  s_cbranch_scc1 {L}
                  s_cmp_lg_u32 {sW}, {wave}
                  s_cbranch_scc1 {L}
                  v_mov_b32 v4, 0""")
            for i, k in enumerate(ids):
                a(f"""v_readlane_b32 {t0}, v0, {k}
                      s_and_b32 {t0}, {t0}, 0xfffff
                      v_mov_b32 v5, {t0}
                      global_store_dword v4, v5, {DBG} offset:{base + 4*i}""")
            a.label(L)
    a("s_endpgm")

def base_add(dst, src, off):
    a(f"s_add_u32 {lo(dst)}, {lo(src)}, {off}\ns_addc_u32 {hi(dst)}, {hi(src)}, 0")

def lds_signal(cnt, va, vb):
    a(f"""v_mov_b32 {va}, {cnt}
          v_mov_b32 {vb}, 1
          s_waitcnt lgkmcnt(0)
          s_mov_b64 exec, 1
          ds_add_u32 {va}, {vb} 
          s_mov_b64 exec, -1""")

def lds_wait(target, va, vb, sleep=0):
    L, E = uid("L_lw"), uid("L_lwe")
    a(f"s_mov_b32 {sSPIN}, {OPT['spin'] * 8}")
    a.label(L)
    a(f"""ds_read_b32 {vb}, {va}
          s_sub_u32 {sSPIN}, {sSPIN}, 1
          s_cbranch_scc1 {E}
          s_waitcnt lgkmcnt(0)
          v_readfirstlane_b32 {t5}, {vb}
          s_cmp_ge_u32 {t5}, {target}""")
    if sleep:
        a(f"s_cbranch_scc1 {E}\ns_sleep {sleep}\ns_branch {L}")
    else:
        a(f"s_cbranch_scc0 {L}")
    a.label(E)
    a("s_waitcnt lgkmcnt(0)")

def poll(loads, bad, sleep=0):
    L, E = uid("L_pl"), uid("L_ple")
    a(f"s_mov_b32 {sSPIN}, {OPT['spin']}")
    a.label(L)
    a(loads)
    a(f"""s_sub_u32 {sSPIN}, {sSPIN}, 1
          s_cbranch_scc1 {E}
          s_waitcnt vmcnt(0)""")
    a(bad)
    if sleep:
        a(f"s_cbranch_vccz {E}\ns_sleep {sleep}\ns_branch {L}")
    else:
        a(f"s_cbranch_vccnz {L}")
    a.label(E)
    a("s_waitcnt vmcnt(0)")

def unpack(dlo, dhi, src):
    a(f"v_lshlrev_b32 {dlo}, 16, {src}\nv_and_b32 {dhi}, 0xffff0000, {src}")

def w_dma_patterns(dst):
    for i in range(5):
        d = vr(dst + i)
        a(f"""v_add_u32 v4, {64*i}, {vL}
              v_mul_u32_u24 v5, 6554, v4
              v_lshrrev_b32 v5, 16, v5
              v_mul_u32_u24 v6, 10, v5
              v_sub_u32 v6, v4, v6
              v_and_b32 v7, 12, v5
              v_lshlrev_b32 v7, 1, v7
              v_and_or_b32 v7, v5, 3, v7
              v_lshrrev_b32 v5, 2, v5
              v_and_or_b32 v7, v5, 4, v7
              v_mul_u32_u24 v7, 1280, v7
              v_lshl_add_u32 {d}, v6, 4, v7""")

def w_unit(src, unit):
    a(f"""s_mul_i32 {t0}, {unit}, 40960
          s_mul_i32 {t1}, {sCB}, 160
          s_add_u32 {t0}, {t0}, {t1}
          s_add_u32 {lo(T0)}, {lo(src)}, {t0}
          s_addc_u32 {hi(T0)}, {hi(src)}, 0
          s_mul_i32 {t2}, {unit}, 5120""")
    for i in range(5):
        a(f"s_add_u32 m0, {t2}, {L_W + i*1024}\nglobal_load_lds_dwordx4 {vr(PAT+i)}, {T0}")

def mod_dma(slice_):
    a(f"""v_lshrrev_b32 v10, 1, {vL}
          s_mul_i32 {t1}, {sW4}, 160
          v_add_u32 v10, {t1}, v10
          v_mul_u32_u24 v10, 7680, v10
          v_and_b32 v11, 1, {vL}
          v_lshl_add_u32 v10, v11, 4, v10
          s_lshl_b32 {t1}, {slice_}, 5
          v_add_u32 v10, {t1}, v10
          s_mul_i32 {t2}, {sW4}, 5120
          s_add_u32 {t2}, {t2}, {L_WKV}""")
def mod_dma_issue():
    for i in range(5):
        a(f"""s_add_u32 {t0}, {sCB}, {i}
              s_cmp_ge_u32 {t0}, 5
              s_cselect_b32 {t1}, 5, 0
              s_sub_u32 {t0}, {t0}, {t1}
              s_lshl_b32 {t1}, {t0}, 10
              s_mul_i32 {t0}, {t0}, 245760
              s_add_u32 m0, {t2}, {t1}
              v_add_u32 v11, {t0}, v10
              global_load_lds_dwordx4 v11, {WM}""")

def mod_reads(S, W):
    a(f"""s_mul_i32 {t0}, {sW4}, 320
          s_add_u32 {t0}, {t0}, {L_SIL}
          v_lshl_add_u32 v4, {vG}, 4, {t0}
          v_lshlrev_b32 v5, 8, {vG}
          v_lshl_add_u32 v5, {vN}, 3, v5
          s_mul_i32 {t0}, {sW4}, 5120
          s_add_u32 {t0}, {t0}, {L_WKV}
          v_add_u32 v5, {t0}, v5""")
    sil = [f"ds_read_b128 {vr(S+4*i,4)}, v4 offset:{64*i}" for i in range(5)]
    wr = [f"ds_read_b64_tr_b16 {vr(W+4*i+2*j,2)}, v5 offset:{1024*i+128*j}" for i in range(5) for j in range(2)]
    return "\n".join(sil), "\n".join(wr)

def mod_finish(S, W, D, slice_, cnt, done, counted):
    for i in range(5):
        if counted: a(f"s_waitcnt lgkmcnt({8-2*i})")
        a(f"v_mfma_f32_16x16x32_bf16 {vr(D,4)}, {vr(W+4*i,4)}, {vr(S+4*i,4)}, {'0' if i == 0 else vr(D,4)}")
    fin = uid("L_mf")
    a(f"""s_lshl_b32 {t0}, {sW4}, 6
          s_add_u32 {t0}, {t0}, {L_P0P}
          v_lshl_add_u32 v6, {vG}, 4, {t0}
          s_cmp_eq_u32 {sW4}, 0
          s_cbranch_scc1 {fin}
          ds_write_b128 v6, {vr(D,4)}""")
    lds_signal(L_CNT + cnt, "v4", "v5")
    a(f"s_branch {done}")
    a.label(fin)
    a(f"""v_mov_b32 v4, {L_CNT + cnt}
          s_lshl_b32 {t0}, {slice_}, 7
          s_add_u32 {t0}, {t0}, {WS_MODG}
          v_lshl_add_u32 v7, {vG}, 4, {t0}
          v_lshl_add_u32 v7, {vN}, 6, v7
          v_mov_b32 {vr(S+13)}, {sTAG}
          v_mov_b32 {vr(S+15)}, {sTAG}""")
    lds_wait(3, "v4", "v5")
    a(f"""ds_read_b128 {vr(S,4)}, v6 offset:64
          ds_read_b128 {vr(S+4,4)}, v6 offset:128
          ds_read_b128 {vr(S+8,4)}, v6 offset:192
          s_mov_b32 {lo(T0)}, 0x00030003
          s_mov_b32 {hi(T0)}, 0x00030003
          s_waitcnt lgkmcnt(0)
          v_pk_add_f32 {vr(D,2)}, {vr(D,2)}, {vr(S,2)}
          v_pk_add_f32 {vr(D+2,2)}, {vr(D+2,2)}, {vr(S+2,2)}
          v_pk_add_f32 {vr(S+4,2)}, {vr(S+4,2)}, {vr(S+8,2)}
          v_pk_add_f32 {vr(S+6,2)}, {vr(S+6,2)}, {vr(S+10,2)}
          v_pk_add_f32 {vr(D,2)}, {vr(D,2)}, {vr(S+4,2)}
          v_pk_add_f32 {vr(D+2,2)}, {vr(D+2,2)}, {vr(S+6,2)}
          v_cvt_pk_bf16_f32 {vr(S+12)}, {vr(D)}, {vr(D+1)}
          v_cvt_pk_bf16_f32 {vr(S+14)}, {vr(D+2)}, {vr(D+3)}
          s_mov_b64 exec, {T0}
          global_store_dwordx4 v7, {vr(S+12,4)}, {WS} sc1
          s_mov_b64 exec, -1""")

def x_dma():
    a(f"s_mul_i32 {t2}, {sW}, 10240")
    for s in range(10):
        a(f"s_add_u32 m0, {t2}, {L_W + 960*s}\nglobal_load_lds_dwordx4 v8, {X} offset:{64*s}")

def swz(dst, q, tmp):
    a(f"""v_lshrrev_b32 {dst}, 1, {q}
          v_xor_b32 {tmp}, {q}, {dst}
          v_and_b32 {tmp}, 1, {tmp}
          v_lshl_or_b32 {dst}, {tmp}, 1, {dst}""")

def prologue():
    a(f"""s_cmp_ge_u32 s2, 256
          s_cbranch_scc1 L_exit
          s_load_dwordx16 s[8:23], s[0:1], 0
          s_load_dwordx8 s[24:31], s[0:1], 64
          s_load_dwordx4 s[32:35], s[0:1], 96
          s_load_dwordx2 s[36:37], s[0:1], 112
          v_and_b32 {vL}, 63, v0
          v_lshrrev_b32 v4, 6, v0
          v_and_b32 {vN}, 15, v0
          v_readfirstlane_b32 {sW}, v4
          v_lshrrev_b32 {vG}, 4, {vL}
          s_and_b32 {t0}, s2, 7
          s_lshr_b32 {t1}, s2, 3
          s_and_b32 {sCB}, {t1}, 7
          s_lshr_b32 {t1}, {t1}, 3
          s_lshl_b32 {t2}, {t0}, 2
          s_add_u32 {sRB}, {t2}, {t1}
          s_lshl_b32 {sP4}, {t1}, 5
          s_add_u32 {sP4}, {sP4}, {t2}
          s_add_u32 {sP4}, {sP4}, {sCB}
          s_lshl_b32 {sP8}, {t0}, 3
          s_or_b32 {sP8}, {sP8}, {sCB}
          s_and_b32 {t2}, s2, 0xc0
          s_or_b32 {sP8}, {sP8}, {t2}
          s_and_b32 {sW4}, {sW}, 3
          s_lshr_b32 {sWH}, {sW}, 2
          s_lshl_b32 {sBLK}, {sRB}, 3
          s_add_u32 {sBLK}, {sBLK}, {sCB}
          v_cmp_eq_u32 {MK_N0}, 0, {vN}
          s_mov_b32 {lo(MK_LO)}, -1
          s_mov_b32 {hi(MK_LO)}, 0
          s_lshl_b32 {t0}, {sRB}, 6
          s_lshl_b32 {t1}, {sW4}, 4
          s_add_u32 {t0}, {t0}, {t1}
          v_lshrrev_b32 v8, 2, {vL}
          v_add_u32 v8, {t0}, v8
          v_mul_u32_u24 v8, 1280, v8""")
    swz("v4", vG, "v5")
    a(f"""v_xor_b32 v4, v4, {vL}
          v_and_b32 v4, 3, v4
          s_mul_i32 {t1}, {sWH}, 640
          v_lshl_add_u32 v8, v4, 4, v8
          v_add_u32 v8, {t1}, v8""")
    if OPT["stamps"]:
        a(f"""s_lshl_b32 s{sST+2}, s2, 3
              s_add_u32 s{sST+2}, s{sST+2}, {sW}
              s_lshl_b32 s{sST+2}, s{sST+2}, 8
              s_add_u32 s{sST+2}, s{sST+2}, {WS_DBG}
              v_mov_b32 v0, 0""")
        stamp(31)
    a(f"""s_cmp_lg_u32 {sWH}, 0
          s_cbranch_scc1 L_proQ
          s_setprio 2
          v_mov_b32 v4, 0
          v_lshlrev_b32 v5, 2, {vN}
          v_add_u32 v5, {L_CNT}, v5
          ds_write_b32 v5, v4
          s_cmp_ge_u32 {sCB}, 4
          s_cbranch_scc1 L_proK""")
    a(f"""v_min_u32 v9, 39, {vL}
          s_mul_i32 {t0}, {sW4}, 320
          v_lshl_add_u32 v9, v9, 3, {t0}""")
    mod_dma(sP4)
    a(f"""s_waitcnt lgkmcnt(0)
          s_load_dword {sTAG}, {WS}, 0
          global_load_dwordx2 v[12:13], v9, {CC}""")
    mod_dma_issue()
    a("s_barrier")
    x_dma()
    stamp(0)
    w_dma_patterns(PAT)
    sil, wr = mod_reads(56, 76)
    a("s_waitcnt vmcnt(15)")
    unpack("v56", "v57", "v12"); unpack("v58", "v59", "v13")
    for i in range(4): a(f"v_mul_f32 v{60+i}, {hex(f2u(-math.log2(math.e)))}, v{56+i}")
    for i in range(4): a(f"v_exp_f32 v{60+i}, v{60+i}")
    for i in range(4): a(f"v_add_f32 v{60+i}, 1.0, v{60+i}")
    for i in range(4): a(f"v_rcp_f32 v{60+i}, v{60+i}")
    for i in range(4): a(f"v_mul_f32 v{60+i}, v{56+i}, v{60+i}")
    a(f"""v_cvt_pk_bf16_f32 v12, v60, v61
          v_cvt_pk_bf16_f32 v13, v62, v63
          v_add_u32 v9, {L_SIL}, v9
          ds_write_b64 v9, v[12:13]
          s_waitcnt lgkmcnt(0)
          s_mul_i32 {sTAG}, {sTAG}, 1664525
          s_add_u32 {sTAG}, {sTAG}, 1013904223""")
    a(sil)
    a("s_waitcnt vmcnt(10)")
    stamp(20)
    a(wr)
    mod_finish(56, 76, 96, sP4, C_P0, "L_xw0", True)
    stamp(21)
    a("s_waitcnt vmcnt(1)\ns_branch L_ln")
    a.label("L_xw0")
    a("s_waitcnt vmcnt(0)\ns_branch L_ln")
    a.label("L_proK")
    a(f"""s_waitcnt lgkmcnt(0)
          s_load_dword {sTAG}, {WS}, 0
          s_barrier""")
    x_dma()
    a(f"""s_bitcmp1_b32 {sCB}, 0
          s_cselect_b64 {T0}, {WV}, {WK}
          v_lshlrev_b32 v10, 4, {vL}
          s_mul_i32 {t0}, {sW4}, 7""")
    for i in range(7):
        a(f"""s_add_u32 {t1}, {t0}, {i}
              s_min_u32 {t1}, {t1}, 24
              s_lshl_b32 {t1}, {t1}, 10
              s_add_u32 m0, {t1}, {L_WKV}
              v_add_u32 v11, {t1}, v10
              global_load_lds_dwordx4 v11, {T0}""")
    stamp(0)
    w_dma_patterns(PAT)
    a(f"""s_waitcnt lgkmcnt(0)
          s_mul_i32 {sTAG}, {sTAG}, 1664525
          s_add_u32 {sTAG}, {sTAG}, 1013904223
          s_waitcnt vmcnt(7)
          s_branch L_ln""")
    a.label("L_proQ")
    a(f"""s_setprio 1
          s_mul_i32 {t0}, {sBLK}, 10240
          s_mul_i32 {t1}, {sW4}, 2560
          s_add_u32 {t0}, {t0}, {t1}
          v_min_u32 v9, 19, {vL}
          v_lshl_add_u32 v9, v9, 7, {t0}
          s_lshr_b32 {t0}, s2, 3
          s_mul_i32 {t0}, {t0}, 25600
          s_mul_i32 {t1}, {sW4}, 6400
          s_add_u32 {t0}, {t0}, {t1}
          v_min_u32 v10, 49, {vL}
          v_lshl_add_u32 v10, v10, 7, {t0}
          s_waitcnt lgkmcnt(0)
          global_load_dword v12, v9, {X}
          s_load_dword {sTAG}, {WS}, 0
          s_barrier""")
    x_dma()
    a(f"global_load_dword v13, v10, {WQ}")
    stamp(0)
    w_dma_patterns(PAT)
    a(f"""s_waitcnt lgkmcnt(0)
          s_mul_i32 {sTAG}, {sTAG}, 1664525
          s_add_u32 {sTAG}, {sTAG}, 1013904223
          s_waitcnt vmcnt(1)""")

XR, NR, KVA, KVW, AS = 16, 56, 136, 144, 184
def layernorm1():
    a.label("L_ln")
    stamp(1)
    a(f"v_lshrrev_b32 v6, 2, {vN}")
    swz("v4", "v6", "v5")
    a(f"""v_xor_b32 v4, v4, {vG}
          v_lshlrev_b32 v4, 4, v4
          v_lshl_add_u32 v4, {vN}, 6, v4
          s_mul_i32 {t0}, {sW}, 10240
          v_add_u32 v4, {t0}, v4""")
    for s in range(10): a(f"ds_read_b128 {vr(XR+4*s,4)}, v4 offset:{L_W + 1024*s}")
    for i in range(4): a(f"v_mov_b32 v{136+i}, 0x3f803f80")
    a(f"s_lshl_b32 {t3}, {sW}, 1\ns_waitcnt lgkmcnt(0)")
    w_unit(WQ, t3)
    for s in range(10):
        c1, c2 = ("0", "0") if s == 0 else ("v[140:143]", "v[144:147]")
        a(f"v_mfma_f32_16x16x32_bf16 v[140:143], v[136:139], {vr(XR+4*s,4)}, {c1}")
        a(f"v_mfma_f32_16x16x32_bf16 v[144:147], {vr(XR+4*s,4)}, {vr(XR+4*s,4)}, {c2}")
        unpack(vr(NR+8*s), vr(NR+8*s+1), vr(XR+4*s)); unpack(vr(NR+8*s+2), vr(NR+8*s+3), vr(XR+4*s+1))
    a(f"""v_and_b32 v4, 3, {vN}
          v_cmp_eq_u32 {MK_A}, v6, {vG}
          s_lshl_b32 {t0}, {sW}, 7
          s_add_u32 {t0}, {t0}, {L_LN}
          v_lshl_add_u32 v6, {vN}, 3, {t0}
          v_cmp_eq_u32 vcc, 1, v4
          v_cmp_eq_u32 {T1}, 2, v4
          v_cmp_eq_u32 {T2}, 3, v4
          v_cndmask_b32 v141, v144, v145, vcc
          v_cndmask_b32 v141, v141, v146, {T1}
          v_cndmask_b32 v141, v141, v147, {T2}
          s_mov_b64 exec, {MK_A}
          ds_write_b64 v6, v[140:141]
          s_mov_b64 exec, -1
          s_lshl_b32 {t0}, {sW4}, 7
          s_add_u32 {t0}, {t0}, {L_LN}
          v_lshl_add_u32 v6, {vN}, 3, {t0}
          s_add_u32 {t3}, {t3}, 1""")
    w_unit(WQ, t3)
    for s in range(10):
        unpack(vr(NR+8*s+4), vr(NR+8*s+5), vr(XR+4*s+2)); unpack(vr(NR+8*s+6), vr(NR+8*s+7), vr(XR+4*s+3))
    a(f"""s_waitcnt vmcnt(10) lgkmcnt(0)
          s_barrier
          ds_read_b64 v[8:9], v6
          ds_read_b64 v[10:11], v6 offset:512
          s_cmp_eq_u32 {sWH}, 0
          s_cbranch_scc1 L_noprep
          s_add_u32 {t3}, {sW4}, 16""")
    w_unit(WQ, t3)
    a(f"""v_mov_b32 v12, -1
          v_mov_b32 v13, -1
          v_mov_b32 v14, -1
          v_mov_b32 v15, -1
          s_lshl_b32 {t0}, {sRB}, 2
          s_add_u32 {t0}, {t0}, {sW4}
          s_mul_i32 {t0}, {t0}, 20480
          s_mul_i32 {t1}, {sCB}, 2560
          s_add_u32 {t0}, {t0}, {t1}
          s_add_u32 {t0}, {t0}, {WS_OX}
          v_lshl_add_u32 v7, {vL}, 4, {t0}
          global_store_dwordx4 v7, v[12:15], {WS} sc1
          global_store_dwordx4 v7, v[12:15], {WS} offset:1024 sc1
          global_store_dwordx4 v7, v[12:15], {WS} offset:1536 sc1
          s_lshl_b32 {t0}, {sRB}, 1
          s_and_b32 {t1}, {sW4}, 1
          s_add_u32 {t0}, {t0}, {t1}
          s_mul_i32 {t1}, {t0}, 1280
          s_mul_i32 {t2}, {sCB}, 160
          s_add_u32 {t1}, {t1}, {t2}
          s_lshl_b32 {t2}, {t1}, 1
          s_add_u32 {t1}, {t1}, {WS_H2}
          s_add_u32 {t2}, {t2}, {WS_BASE - 160}
          v_min_u32 v4, 29, {vL}
          v_mov_b32 v5, {t1}
          v_mov_b32 v7, {t2}
          v_cmp_gt_u32 vcc, 10, v4
          s_lshl_b32 {t0}, {sP8}, 6
          s_add_u32 {t0}, {t0}, {WS_ACT}
          v_cndmask_b32 v5, v7, v5, vcc
          v_lshl_add_u32 v5, v4, 4, v5
          v_mov_b32 v7, {t0}
          s_cmp_ge_u32 {sW4}, 2
          s_cselect_b64 vcc, -1, 0
          v_cndmask_b32 v5, v5, v7, vcc
          global_store_dwordx4 v5, v[12:15], {WS} sc1""")
    a.label("L_noprep")
    a(f"""s_waitcnt lgkmcnt(0)
          v_pk_add_f32 v[8:9], v[8:9], v[10:11]
          v_mul_f32 v8, {hex(f2u(-1/640))}, v8
          v_mul_f32 v9, {hex(f2u(1/640))}, v9
          v_fma_f32 v9, -v8, v8, v9
          v_max_f32 v9, 0, v9
          v_add_f32 v9, {hex(f2u(1e-5))}, v9
          v_rsq_f32 v10, v9
          v_lshrrev_b32 v4, 2, {vN}
          v_mul_f32 v6, v8, v10
          v_lshl_add_u32 v4, {vG}, 3, v4
          v_mul_u32_u24 v9, 40, v4
          v_and_b32 v4, 3, {vN}
          v_lshlrev_b32 v4, 3, v4
          s_bitcmp1_b32 {sCB}, 1
          s_cselect_b64 vcc, -1, 0
          v_cndmask_b32 v4, v4, 32, vcc
          s_mul_i32 {t0}, {sWH}, 12800
          s_add_u32 {t0}, {t0}, {L_WKV}
          v_add3_u32 v9, v9, v4, {t0}""")
    for s in range(10):
        for j in range(2): a(f"ds_read_b64_tr_b16 {vr(KVW+4*s+2*j,2)}, v9 offset:{s*1280 + j*160}")
        for i in range(4):
            r = NR + 8*s + 2*i
            a(f"v_pk_fma_f32 {vr(r,2)}, {vr(r,2)}, v[10:11], v[6:7] op_sel_hi:[1,0,0]")

QAC, QW = 56, 76
def wq_reads(s):
    r = QW + 20 * (s % 7)
    return "\n".join(f"ds_read_b64_tr_b16 {vr(r+4*t+2*j,2)}, v8 offset:{s*5120 + j*2560 + 8*t}" for t in range(5) for j in range(2))
def as_reads(s):
    r = (184, 200, 232)[s % 3]
    return "\n".join([f"ds_read_b128 {vr(r,4)}, v10 offset:{2560 + s*128}", f"ds_read_b128 {vr(r+8,4)}, v10 offset:{s*128}",
                      f"ds_read_b128 {vr(r+4,4)}, v10 offset:{2560 + s*128 + 16}", f"ds_read_b128 {vr(r+12,4)}, v10 offset:{s*128 + 16}"])

def qkv():
    a(f"""v_mul_u32_u24 v8, 40, {vL}
          s_mul_i32 {t0}, {sWH}, 51200
          v_add_u32 v8, {t0}, v8
          s_mul_i32 {t0}, {sWH}, 1280
          s_add_u32 {t0}, {t0}, {L_MODV}
          v_lshl_add_u32 v10, {vG}, 5, {t0}
          s_lshl_b32 {t0}, {sW4}, 10
          s_add_u32 {t0}, {t0}, {L_R2 + 20480}
          v_lshl_add_u32 v9, {vL}, 4, {t0}
          s_and_b32 {t1}, {sW4}, 1
          v_lshl_add_u32 v7, {t1}, 4, {vN}
          s_lshr_b32 {t0}, {sW4}, 1
          v_lshrrev_b32 v4, 1, {vG}
          v_and_b32 v5, 1, {vG}
          s_mov_b64 {MK_A}, -1
          s_mov_b64 {MK_B}, 0
          v_mov_b32 v12, 0x3f803f80
          v_mov_b32 v13, 0x3f803f80
          s_bitcmp1_b32 {sCB}, 0
          s_cbranch_scc1 L_kvaV
          s_bitcmp1_b32 {sCB}, 1
          s_cbranch_scc1 L_kvaKr
          s_lshl_b32 {t0}, {t0}, 10
          v_lshl_add_u32 v11, v4, 9, {t0}
          v_lshl_add_u32 v11, v7, 4, v11
          v_lshl_add_u32 v11, v5, 3, v11
          s_branch L_kvaE""")
    a.label("L_kvaKr")
    a(f"""s_lshl_b32 {t0}, {t0}, 3
          s_add_u32 {t0}, {t0}, 2048
          v_lshl_add_u32 v11, v7, 4, {t0}
          v_lshlrev_b32 v4, 3, {vN}
          v_add_u32 v4, 2560, v4
          s_mov_b64 {MK_B}, 0x30000
          s_mov_b64 {MK_A}, 0x3ffff
          v_cndmask_b32 v11, v11, v4, {MK_B}
          v_mov_b32 v13, 0x3f80
          s_branch L_kvaE""")
    a.label("L_kvaV")
    a(f"""s_mul_i32 {t0}, {sW4}, 672
          s_add_u32 {t0}, {t0}, 2688
          v_mul_u32_u24 v11, 336, v4
          v_lshl_add_u32 v11, {vN}, 4, v11
          v_lshl_add_u32 v11, v5, 3, v11
          v_add_u32 v11, {t0}, v11
          s_bitcmp1_b32 {sCB}, 1
          s_cbranch_scc0 L_kvaE
          v_add_u32 v11, 256, v11
          v_cmp_ge_u32 {MK_A}, 4, {vN}
          v_cmp_eq_u32 {MK_B}, 4, {vN}""")
    a.label("L_kvaE")
    a(f"""s_mul_i32 {t0}, {sRB}, {KVREC}
          s_add_u32 {t0}, {t0}, {WS_KV}
          v_add_u32 v11, {t0}, v11
          s_lshl_b32 {t0}, {sBLK}, 7
          s_lshl_b32 {t1}, {sW4}, 2
          s_add_u32 {t0}, {t0}, {t1}
          s_add_u32 {t0}, {t0}, {WS_KVF}
          v_mov_b32 v229, {t0}
          v_mov_b32 v230, {sTAG}""")
    stamp(2)
    a(f"""s_cmp_ge_u32 {sW}, 5
          s_cbranch_scc1 L_modtouch
          v_lshl_add_u32 v14, {sW}, 6, {vL}
          v_lshrrev_b32 v4, 2, v14
          v_lshlrev_b32 v4, 7, v4
          v_and_b32 v5, 3, v14
          v_lshl_add_u32 v4, v5, 4, v4
          v_add_u32 v4, {WS_MODG}, v4
          v_lshlrev_b32 v5, 4, v14
          v_add_u32 v5, {L_MODV}, v5
          v_cmp_le_u32 vcc, 160, v14
          v_cndmask_b32 v14, 0, 1.0, vcc""")
    poll(f"global_load_dwordx4 v[16:19], v4, {WS} sc1",
         f"v_cmp_ne_u32 vcc, {sTAG}, v17\nv_cmp_ne_u32 {T0}, {sTAG}, v19\ns_or_b64 vcc, vcc, {T0}")
    unpack("v20", "v21", "v16"); unpack("v22", "v23", "v18")
    a("""v_pk_add_f32 v[20:21], v[20:21], v[14:15] op_sel_hi:[1,0]
         v_pk_add_f32 v[22:23], v[22:23], v[14:15] op_sel_hi:[1,0]
         v_cvt_pk_bf16_f32 v16, v20, v21
         v_cvt_pk_bf16_f32 v18, v22, v23""")
    unpack("v20", "v21", "v16"); unpack("v22", "v23", "v18")
    a("ds_write_b128 v5, v[20:23]")
    a.label("L_modtouch")
    a("s_waitcnt vmcnt(0) lgkmcnt(0)\ns_barrier")
    stamp(3)
    a(as_reads(0)); a(as_reads(1))
    a(f"""s_add_u32 {sSOFF}, {sP4}, 128
          s_cmp_lt_u32 {sCB}, 4
          s_cselect_b32 {sCG}, {sWH}, 0
          s_cmp_lt_u32 {sSOFF}, 240
          s_cselect_b32 {sCG}, {sCG}, 0
          s_cmp_eq_u32 {sCG}, 0
          s_cbranch_scc1 L_nom2
          v_mov_b32 v14, v10""")
    mod_dma(sSOFF)
    mod_dma_issue()
    a("v_mov_b32 v10, v14")
    a.label("L_nom2")
    a(f"s_bitcmp1_b32 {sCB}, 0\ns_cbranch_scc1 L_hV")
    for typ in "KV":
        if typ == "V": a.label("L_hV")
        for s in range(10):
            r, h = (184, 200, 232)[s % 3], XR + 4 * s
            if s < 8: a(as_reads(s + 2))
            left = 8 if s < 8 else (4 if s == 8 else 0)
            for half in range(2):
                a(f"s_waitcnt lgkmcnt({left + 2 - 2*half})")
                for i in (2*half, 2*half + 1):
                    a(f"v_pk_fma_f32 {vr(NR+8*s+2*i,2)}, {vr(NR+8*s+2*i,2)}, {vr(r+2*i,2)}, {vr(r+8+2*i,2)}")
                if half == 0 and s > 0:
                    A, B = vr(KVW+4*(s-1), 4), vr(h-4, 4)
                    if typ == "V": A, B = B, A
                    a(f"v_mfma_f32_16x16x32_bf16 {vr(KVA,4)}, {A}, {B}, {'0' if s == 1 else vr(KVA,4)}")
                for i in (2*half, 2*half + 1):
                    a(f"v_cvt_pk_bf16_f32 {vr(h+i)}, {vr(NR+8*s+2*i)}, {vr(NR+8*s+2*i+1)}")
        A, B = vr(KVW+36, 4), vr(XR+36, 4)
        if typ == "V": A, B = B, A
        a(f"v_mfma_f32_16x16x32_bf16 {vr(KVA,4)}, {A}, {B}, {vr(KVA,4)}")
        if typ == "K": a("s_branch L_hdone")
    a.label("L_hdone")
    stamp(4)
    a(f"""s_cmp_eq_u32 {sWH}, 0
          s_cbranch_scc1 L_kvA
          ds_write_b128 v9, {vr(KVA,4)}
          s_waitcnt lgkmcnt(0)
          s_barrier""")
    a(wq_reads(0))
    a("s_branch L_kvE")
    a.label("L_kvA")
    a(wq_reads(0))
    a(f"""s_barrier
          ds_read_b128 v[140:143], v9
          s_waitcnt lgkmcnt(0)
          v_pk_add_f32 {vr(KVA,2)}, {vr(KVA,2)}, v[140:141]
          v_pk_add_f32 {vr(KVA+2,2)}, {vr(KVA+2,2)}, v[142:143]
          v_cvt_pk_bf16_f32 v14, {vr(KVA)}, {vr(KVA+1)}
          v_cvt_pk_bf16_f32 v15, {vr(KVA+2)}, {vr(KVA+3)}
          v_cndmask_b32 v14, v14, v12, {MK_B}
          v_cndmask_b32 v15, v15, v13, {MK_B}
          s_cmp_lt_u32 {sCB}, 4
          s_cbranch_scc1 L_kvE
          s_mov_b64 exec, {MK_A}
          global_store_dwordx2 v11, v[14:15], {WS} sc1
          s_mov_b64 exec, -1""")
    a.label("L_kvE")
    stamp(26)
    for s in range(10):
        if s < 9: a(wq_reads(s + 1))
        a(f"s_waitcnt lgkmcnt({10 if s < 9 else 0})")
        for t in range(5):
            a(f"v_mfma_f32_16x16x32_bf16 {vr(QAC+4*t,4)}, {vr(QW+20*(s%7)+4*t,4)}, {vr(XR+4*s,4)}, {'0' if s == 0 else vr(QAC+4*t,4)}")
        if s == 4:
            a(f"""s_cmp_lg_u32 {sWH}, 0
                  s_cbranch_scc1 L_noflag
                  s_waitcnt vmcnt(0)
                  s_mov_b64 exec, 1
                  global_store_dword v229, v230, {WS} sc1
                  s_mov_b64 exec, -1""")
            stamp(5)
            a.label("L_noflag")
    stamp(27)
    a(f"""s_lshl_b32 {t0}, {sW4}, 11
          s_add_u32 {t0}, {t0}, {L_R2}
          v_lshl_add_u32 v4, {vL}, 4, {t0}
          s_mul_i32 {t0}, {sW4}, 3072
          s_add_u32 {t0}, {t0}, {L_R2 + 8192}
          v_lshl_add_u32 v5, {vL}, 4, {t0}
          s_lshr_b32 {t0}, {sW4}, 1
          s_mul_i32 {t0}, {t0}, 5120
          v_mul_u32_u24 v6, 1280, {vG}
          v_add_u32 v6, {t0}, v6
          v_lshl_add_u32 v9, v7, 4, v6
          v_lshl_add_u32 v10, v7, 3, v6
          s_mov_b32 {lo(T1)}, {hex(f2u(math.log2(math.e) / math.sqrt(20)))}
          s_cmp_lg_u32 {sWH}, 0
          s_cbranch_scc1 L_ex1""")
    for kh, (keep, send) in enumerate((((0, 1, 4), (2, 3)), ((2, 3), (0, 1, 4)))):
        if kh: a.label("L_ex1")
        mine, other = ("v4", "v5") if kh == 0 else ("v5", "v4")
        for i, t in enumerate(send): a(f"ds_write_b128 {mine}, {vr(QAC+4*t,4)} offset:{1024*i}")
        a("s_waitcnt lgkmcnt(0)\ns_barrier")
        for i in range(len(keep)): a(f"ds_read_b128 {vr(76+4*i,4)}, {other} offset:{1024*i}")
        for i, t in enumerate(keep):
            r = QAC + 4 * t
            a(f"""s_waitcnt lgkmcnt({len(keep)-1-i})
                  v_pk_add_f32 {vr(r,2)}, {vr(r,2)}, {vr(76+4*i,2)}
                  v_pk_add_f32 {vr(r+2,2)}, {vr(r+2,2)}, {vr(78+4*i,2)}
                  v_pk_mul_f32 {vr(r,2)}, {vr(r,2)}, {T1} op_sel_hi:[1,0]
                  v_pk_mul_f32 {vr(r+2,2)}, {vr(r+2,2)}, {T1} op_sel_hi:[1,0]
                  v_cvt_pk_bf16_f32 {vr(88+2*i)}, {vr(r)}, {vr(r+1)}
                  v_cvt_pk_bf16_f32 {vr(89+2*i)}, {vr(r+2)}, {vr(r+3)}""")
        a(f"ds_write_b128 v9, v[88:91] offset:{L_W + 512*kh}")
        if not kh: a(f"ds_write_b64 v10, v[92:93] offset:{L_W + 1024}\ns_branch L_exd")
    a.label("L_exd")

QA, QB, KVB, SB, OA = 16, 32, 40, 96, 160
vKA, vKB, vV, vIDX = "v8", "v9", "v10", "v11"
def kvreg(p):
    b = KVB + 28 * p
    return dict(KA=(b, b + 4), KB=b + 8, V=((b + 12, b + 16), (b + 20, b + 24)))
def ld_ka(p, T, so): return f"buffer_load_dwordx4 {vr(kvreg(p)['KA'][T],4)}, {vKA}, {SRD}, {so} offen offset:{1024*T} sc1"
def ld_kb(p, so): return f"buffer_load_dwordx4 {vr(kvreg(p)['KB'],4)}, {vKB}, {SRD}, {so} offen sc1"
def ld_v(p, T, j, so): return f"buffer_load_dwordx4 {vr(kvreg(p)['V'][T][j],4)}, {vV}, {SRD}, {so} offen offset:{1344*T + 672*j} sc1"
def q8(p, T, j): return f"v_mfma_f32_32x32x8bf16_1k {vr(SB+16*j,16)}, {vr(kvreg(p)['KB']+2*T,2)}, {vr(QB+2*j,2)}, 0"
def q16(p, T, j): return f"v_mfma_f32_32x32x16_bf16 {vr(SB+16*j,16)}, {vr(kvreg(p)['KA'][T],4)}, {vr(QA+4*j,4)}, {vr(SB+16*j,16)}"
def pv(p, T, j, h): return f"v_smfmac_f32_32x32x32_bf16 {vr(OA+16*j,16)}, {vr(kvreg(p)['V'][T][h],4)}, {vr(SB+16*j+8*h,8)}, {vIDX}"

def tile(p, s, pre=(), mid=(), qk=True):
    T, j = s // 4, s % 4
    X_ = SB + 16 * j
    e = lambda i: f"v_exp_f32 {vr(X_+i)}, {vr(X_+i)}"
    pp, pT, pj = (p, (s - 1) // 4, (s - 1) % 4) if s else (1 - p, 1, 3)
    np_, nT, nj = (p, (s + 2) // 4, (s + 2) % 4) if s < 6 else (1 - p, 0, s - 6)
    a("\n".join([e(0), e(1), pv(pp, pT, pj, 1)] + list(pre) + [e(2), e(3), e(4), e(5), q8(np_, nT, nj) if qk else "", e(6), e(7), e(8), e(9)] +
                list(mid) + [pv(p, T, j, 0), e(10), e(11), e(12), e(13), q16(np_, nT, nj) if qk else "", e(14), e(15)]))

def attn_zero():
    for i in range(64): a(f"v_mov_b32 {vr(OA+i)}, 0")
    for i in range(8): a(f"v_mov_b32 {vr(SB+56+i)}, 0")
    for i in range(4): a(f"v_mov_b32 {vr(kvreg(1)['V'][1][1]+i)}, 0")

vAX, vAL, vALO, vOX, vOX2 = "v12", "v13", "v14", "v15", "v231"
def attention():
    a(f"""v_lshlrev_b32 {vKA}, 4, {vL}
          v_min_u32 {vKB}, 32, {vL}
          v_lshlrev_b32 {vKB}, 4, {vKB}
          v_add_u32 {vKB}, 2048, {vKB}
          v_lshrrev_b32 v4, 5, {vL}
          v_and_b32 v5, 31, {vL}
          v_mul_u32_u24 {vV}, 336, v4
          v_lshl_add_u32 {vV}, v5, 4, {vV}
          v_add_u32 {vV}, 2688, {vV}
          v_mov_b32 v6, 0x40000000
          v_cmp_gt_u32 vcc, 21, v5
          v_mov_b32 {vIDX}, 0xdddddddd
          s_add_u32 s48, {lo(WS)}, {WS_KV}
          v_cndmask_b32 {vV}, v6, {vV}, vcc
          s_addc_u32 s49, {hi(WS)}, 0
          s_mov_b32 s50, {32*KVREC}
          s_mov_b32 s51, 0x20000
          s_mov_b32 {sPASS}, 0
          s_mov_b32 {sGEN}, 0
          v_add_u32 {vAX}, {L_AX}, {vKA}
          s_lshl_b32 {t0}, {sW4}, 2
          s_add_u32 {t0}, {t0}, {L_AL}
          v_lshl_add_u32 {vAL}, v5, 4, {t0}
          s_lshl_b32 {t0}, {sW4}, 9
          s_add_u32 {t0}, {t0}, {L_AL}
          v_lshl_add_u32 {vALO}, v5, 4, {t0}
          s_lshl_b32 {t0}, {sRB}, 1
          s_add_u32 {t0}, {t0}, {sWH}
          s_mul_i32 {t1}, {t0}, 40960
          s_mul_i32 {t2}, {sCB}, 2560
          s_add_u32 {t1}, {t1}, {t2}
          s_lshr_b32 {t2}, {sW4}, 1
          s_mul_i32 {t2}, {t2}, 1280
          s_add_u32 {t1}, {t1}, {t2}
          s_add_u32 {t1}, {t1}, {WS_OX}
          v_and_b32 v6, 1, {vG}
          v_mul_u32_u24 v6, 20480, v6
          v_lshl_add_u32 v6, {vN}, 4, v6
          s_and_b32 {t2}, {sW4}, 1
          s_lshl_b32 {t3}, {t2}, 3
          s_add_u32 {t3}, {t3}, {t1}
          v_add_u32 {vOX2}, {t3}, v6
          s_mul_i32 {t2}, {t2}, 768
          s_add_u32 {t1}, {t1}, {t2}
          v_lshl_add_u32 v6, v4, 8, v6
          v_add_u32 {vOX}, {t1}, v6""")
    for j in range(8): a(f"v_mov_b32 {vr(QB+j)}, 0")
    attn_zero()
    a(f"""s_mul_i32 {t0}, {sWH}, 5120
          v_lshl_add_u32 v4, {vL}, 4, {t0}
          v_lshl_add_u32 v5, {vL}, 3, {t0}
          s_waitcnt lgkmcnt(0)
          s_barrier""")
    for j in range(4):
        a(f"""s_add_u32 {t0}, {sW4}, {j}
              s_and_b32 {t0}, {t0}, 3
              s_mul_i32 {t1}, {t0}, 1280
              v_add_u32 v6, {t1}, v4
              v_add_u32 v7, {t1}, v5
              ds_read_b128 {vr(QA+4*j,4)}, v6 offset:{L_W}
              s_mov_b64 exec, {MK_LO}
              ds_read_b64 {vr(QB+2*j,2)}, v7 offset:{L_W + 1024}
              s_mov_b64 exec, -1""")
        if j: a(f"s_mul_i32 {(sSEND1, sSEND2, sSEND3)[j-1]}, {t0}, 9216")
    stamp(28)
    a(f"""s_cmp_lg_u32 {sWH}, 0
          s_cbranch_scc1 L_kvB
          v_and_b32 v5, 31, {vL}
          v_lshrrev_b32 v4, 2, v5
          v_and_b32 v6, 3, v5
          v_lshl_add_u32 v4, v4, 3, v6
          s_lshl_b32 {t0}, {sW4}, 13
          s_add_u32 {t0}, {t0}, {WS_KVF + 512}
          v_lshl_add_u32 v4, v4, 7, {t0}""")
    poll(f"global_load_dwordx4 v[96:99], v4, {WS} sc1",
         f"""v_xor_b32 v96, {sTAG}, v96
             v_xor_b32 v97, {sTAG}, v97
             v_xor_b32 v98, {sTAG}, v98
             v_xor_b32 v99, {sTAG}, v99
             v_or3_b32 v96, v96, v97, v98
             v_or_b32 v96, v96, v99
             v_cmp_ne_u32 vcc, 0, v96""")
    a("s_waitcnt lgkmcnt(0)\ns_barrier\ns_branch L_attn")
    a.label("L_kvB")
    a(f"s_cmp_eq_u32 {sCG}, 0\ns_cbranch_scc1 L_kvB2")
    sil, wr = mod_reads(96, 116)
    a(sil); a("s_waitcnt vmcnt(0)"); a(wr)
    a("s_waitcnt lgkmcnt(0)\ns_barrier")
    mod_finish(96, 116, 136, sSOFF, C_P1, "L_attn", False)
    a("s_branch L_attn")
    a.label("L_kvB2")
    a("s_waitcnt lgkmcnt(0)\ns_barrier")
    a.label("L_attn")
    stamp(6)
    a(f"""s_mul_i32 {sSOFF}, {sW4}, {8*KVREC}
          s_add_u32 {t1}, {sSOFF}, {KVREC}""")
    a("\n".join([ld_ka(0, 0, sSOFF), ld_kb(0, sSOFF), ld_v(0, 0, 0, sSOFF), ld_v(0, 0, 1, sSOFF), ld_ka(0, 1, sSOFF),
                 ld_v(0, 1, 0, sSOFF), ld_v(0, 1, 1, sSOFF), ld_ka(1, 0, t1), ld_v(1, 0, 0, t1), ld_v(1, 0, 1, t1), ld_ka(1, 1, t1), ld_kb(1, t1)]))
    a(f"""s_mov_b32 {sLOOP}, 0
          s_add_u32 {t2}, {t1}, {KVREC}
          s_waitcnt vmcnt(10)""")
    a("\n".join([q8(0, 0, 0), q16(0, 0, 0), q8(0, 0, 1), q16(0, 0, 1)]))
    a("s_waitcnt vmcnt(7)\ns_nop 8")
    a(".p2align 6")
    a.label("L_loop")
    for p in range(2):
        for s in range(8):
            pre, mid = [], []
            if s == 1: pre = [ld_v(1 - p, 1, 0, t1), ld_v(1 - p, 1, 1, t1)]
            if s == 2: pre = [ld_ka(p, 0, t2)]
            if s == 4: mid = ["s_waitcnt vmcnt(8)"]
            if s == 5: pre = [ld_v(p, 0, 0, t2), ld_v(p, 0, 1, t2)]
            if s == 6: pre = ["s_waitcnt vmcnt(5)", ld_ka(p, 1, t2), ld_kb(p, t2)]
            if s == 7:
                pre = [f"s_mov_b32 {t1}, {t2}", f"s_add_u32 {t2}, {t2}, {KVREC}"]
                if p == 1: pre += [f"s_add_u32 {sLOOP}, {sLOOP}, 1", f"s_cmp_lt_u32 {sLOOP}, 3"]
            tile(p, s, pre, mid)
    a("s_cbranch_scc1 L_loop")
    for s in range(6):
        tile(0, s, [ld_v(1, 1, 0, t1), ld_v(1, 1, 1, t1)] if s == 1 else [], ["s_waitcnt vmcnt(7)"] if s == 4 else [])
    a(f"""s_waitcnt vmcnt(0)
          s_or_b32 {t0}, {sWH}, {sPASS}
          s_cmp_lg_u32 {t0}, 0
          s_cbranch_scc1 L_now2""")
    for st in range(5):
        a(f"""s_and_b32 {t3}, {sRB}, 3
              s_add_u32 {t3}, {t3}, {st}
              s_cmp_ge_u32 {t3}, 5
              s_cselect_b32 {t4}, 5, 0
              s_sub_u32 {t3}, {t3}, {t4}
              s_mul_i32 {t4}, {sW4}, 5
              s_add_u32 {t3}, {t3}, {t4}""")
        w_unit(WO, t3)
    a(f"""s_cmp_ge_u32 {sP8}, 216
          s_cbranch_scc1 L_pf2
          s_bitcmp1_b32 {sW4}, 0
          s_cselect_b64 {T0}, {WU}, {WG}
          s_mul_i32 {t0}, {sCB}, 80
          s_lshr_b32 {t1}, {sW4}, 1
          s_mul_i32 {t1}, {t1}, 40
          s_add_u32 {t0}, {t0}, {t1}
          v_min_u32 v4, 39, {vL}
          v_add_u32 v4, {t0}, v4
          v_mul_u32_u24 v4, 3456, v4
          s_lshl_b32 {t0}, {sP8}, 4
          v_add_u32 v4, {t0}, v4
          global_load_dword v236, v4, {T0}
          s_branch L_now2""")
    a.label("L_pf2")
    a(f"""s_and_b32 {t0}, {sCB}, 3
          s_lshl_b32 {t0}, {t0}, 2
          s_add_u32 {t0}, {t0}, {sW4}
          s_mul_i32 {t0}, {t0}, 108
          v_min_u32 v4, 53, {vL}
          v_add_u32 v4, {t0}, v4
          v_mul_u32_u24 v4, 1280, v4
          s_sub_u32 {t0}, {sP8}, 216
          s_lshl_b32 {t0}, {t0}, 5
          v_add_u32 v4, {t0}, v4
          v_add_u32 v6, {54*1280}, v4
          global_load_dword v236, v4, {WD}
          global_load_dword v237, v6, {WD}""")
    a.label("L_now2")
    tile(0, 6); tile(0, 7)
    for s in range(8):
        pre = []
        if s == 5: pre = [f"v_mov_b32 v232, {L_CNT + C_ADONE}", "ds_read_b32 v233, v232"]
        tile(1, s, pre, qk=s < 6)
    a(pv(1, 1, 3, 1))
    stamp(7)
    a(f"""s_waitcnt lgkmcnt(0)
          v_readfirstlane_b32 {t5}, v233
          s_lshl_b32 {t4}, {sWH}, 2
          s_cmp_ge_u32 {t5}, {t4}
          s_cbranch_scc1 L_axfree""")
    lds_wait(4, "v232", "v233", sleep=2)
    a.label("L_axfree")
    for j in (1, 2, 3):
        a(f"v_add_u32 v232, {(sSEND1, sSEND2, sSEND3)[j-1]}, {vAX}")
        for r in range(3): a(f"ds_write_b128 v232, {vr(OA+16*j+4*r,4)} offset:{3072*(j-1) + 1024*r}")
        if j == 2:
            a(f"s_not_b64 exec, {MK_LO}")
            for jj in range(4):
                a(f"""s_add_u32 {t0}, {sW4}, {jj}
                      s_and_b32 {t0}, {t0}, 3
                      s_lshl_b32 {t0}, {t0}, 9
                      v_add_u32 v232, {t0}, {vAL}
                      ds_write_b32 v232, {vr(OA+16*jj+8)}""")
            a("s_mov_b64 exec, -1")
    a(f"""s_add_u32 {t4}, {t4}, {L_CNT + C_GA}
          s_add_u32 {sGEN}, {sGEN}, 4
          s_mul_i32 {t0}, {sW4}, 9216
          v_add_u32 v232, {t0}, {vAX}""")
    lds_signal(t4, "v234", "v235")
    stamp(23)
    lds_wait(sGEN, "v234", "v235")
    stamp(24)
    P = SB
    a(f"""ds_read_b128 {vr(P+44,4)}, {vALO}
          ds_read_b128 {vr(P+36,4)}, {vAX} offset:{L_AL - L_AX}
          ds_read_b128 {vr(P+40,4)}, {vAX} offset:{L_AL - L_AX + 1024}""")
    for r in range(3):
        for jj in range(3): a(f"ds_read_b128 {vr(P+12*jj+4*r,4)}, v232 offset:{3072*jj + 1024*r}")
    a("s_waitcnt lgkmcnt(9)")
    for k in (44, 36, 40):
        a(f"v_pk_add_f32 {vr(P+k,2)}, {vr(P+k,2)}, {vr(P+k+2,2)}\nv_add_f32 {vr(P+k)}, {vr(P+k)}, {vr(P+k+1)}")
    lo_ = f2u(2.0 ** -60); span = f2u(2.0 ** 60) - lo_
    a(f"""v_rcp_f32 {vr(P+46)}, {vr(P+44)}
          v_subrev_u32 {vr(P+36)}, {hex(lo_)}, {vr(P+36)}
          v_subrev_u32 {vr(P+40)}, {hex(lo_)}, {vr(P+40)}
          v_max_u32 {vr(P+36)}, {vr(P+36)}, {vr(P+40)}
          v_cmp_lt_u32 vcc, {hex(span)}, {vr(P+36)}""")
    if OPT["force_slow"]: a("s_mov_b64 vcc, -1")
    a(f"""s_cbranch_vccz L_fin
          s_cmp_eq_u32 {sPASS}, 0
          s_cbranch_scc1 L_slow""")
    a.label("L_fin")
    R = P + 48
    for i in range(6):
        if i % 2 == 0: a(f"s_waitcnt lgkmcnt({6 - 3*(i//2)})")
        a(f"""v_pk_add_f32 {vr(OA+2*i,2)}, {vr(OA+2*i,2)}, {vr(P+2*i,2)}
              v_pk_add_f32 {vr(P+12+2*i,2)}, {vr(P+12+2*i,2)}, {vr(P+24+2*i,2)}
              v_pk_add_f32 {vr(OA+2*i,2)}, {vr(OA+2*i,2)}, {vr(P+12+2*i,2)}
              v_pk_mul_f32 {vr(OA+2*i,2)}, {vr(OA+2*i,2)}, {vr(P+46,2)} op_sel_hi:[1,0]
              v_cvt_pk_bf16_f32 {vr(R+i)}, {vr(OA+2*i)}, {vr(OA+2*i+1)}""")
        if i % 2 == 0: a(f"v_min_u32 {vr(R+i)}, -2, {vr(R+i)}")
        if i == 4: a(f"v_permlane32_swap_b32 {vr(R)}, {vr(R+2)}\nv_permlane32_swap_b32 {vr(R+1)}, {vr(R+3)}")
    a(f"""s_bitcmp1_b32 {sW4}, 0
          s_cbranch_scc1 L_finodd
          global_store_dwordx4 {vOX}, {vr(R,4)}, {WS} sc1
          s_mov_b64 exec, {MK_LO}
          global_store_dwordx2 {vOX2}, {vr(R+4,2)}, {WS} offset:512 sc1
          s_branch L_fine""")
    a.label("L_finodd")
    a(f"""v_permlane32_swap_b32 {vr(R)}, {vr(R+4)}
          v_permlane32_swap_b32 {vr(R+1)}, {vr(R+5)}
          v_cndmask_b32 {vr(R+4)}, {vr(R)}, {vr(R+4)}, {MK_LO}
          v_cndmask_b32 {vr(R+5)}, {vr(R+1)}, {vr(R+5)}, {MK_LO}
          global_store_dwordx4 {vOX}, {vr(R+2,4)}, {WS} sc1
          s_mov_b64 exec, {MK_LO}
          global_store_dwordx2 {vOX2}, {vr(R,2)}, {WS} offset:512 sc1""")
    a.label("L_fine")
    a("s_mov_b64 exec, -1")
    stamp(8)
    a(f"s_cmp_lg_u32 {sWH}, 0\ns_cbranch_scc1 L_ffn")

def slow_path():
    a.label("L_slow")
    a(f"""s_waitcnt vmcnt(0) lgkmcnt(0)
          s_mov_b32 {sPASS}, 1
          s_mul_i32 {sSOFF}, {sW4}, {8*KVREC}
          s_mov_b32 {sLOOP}, 0""")
    for j in range(4): a(f"v_mov_b32 {vr(OA+j)}, 0xff800000")
    a.label("L_mx")
    a("\n".join([ld_ka(0, 0, sSOFF), ld_ka(0, 1, sSOFF), ld_kb(0, sSOFF), "s_waitcnt vmcnt(0)"]))
    for T in range(2):
        for j in range(4): a(q8(0, T, j) + "\n" + q16(0, T, j))
        for j in range(4):
            for i in range(8): a(f"v_max3_f32 {vr(OA+j)}, {vr(OA+j)}, {vr(SB+16*j+2*i)}, {vr(SB+16*j+2*i+1)}")
    a(f"""s_add_u32 {sSOFF}, {sSOFF}, {KVREC}
          s_add_u32 {sLOOP}, {sLOOP}, 1
          s_cmp_lt_u32 {sLOOP}, 8
          s_cbranch_scc1 L_mx""")
    for j in range(4):
        a(f"""v_mov_b32 v4, {vr(OA+j)}
              v_permlane32_swap_b32 v4, {vr(OA+j)}
              v_max_f32 {vr(OA+j)}, v4, {vr(OA+j)}
              s_add_u32 {t0}, {sW4}, {j}
              s_and_b32 {t0}, {t0}, 3
              s_lshl_b32 {t0}, {t0}, 9
              v_add_u32 {vr(OA+4+j)}, {t0}, {vAL}
              ds_write_b32 {vr(OA+4+j)}, {vr(OA+j)} offset:2048""")
    a(f"s_add_u32 {sGEN}, {sGEN}, 4")
    lds_signal(t4, "v234", "v235")
    lds_wait(sGEN, "v234", "v235")
    a(f"s_lshl_b32 {t0}, {sW4}, 2")
    for j in range(4):
        a(f"v_subrev_u32 {vr(OA+4+j)}, {t0}, {vr(OA+4+j)}\nds_read_b128 {vr(SB+4*j,4)}, {vr(OA+4+j)} offset:2048")
    a(f"s_waitcnt lgkmcnt(0)\ns_not_b64 exec, {MK_LO}")
    for j in range(4):
        m = SB + 4 * j
        a(f"""v_max3_f32 {vr(m)}, {vr(m)}, {vr(m+1)}, {vr(m+2)}
              v_max_f32 {vr(m)}, {vr(m)}, {vr(m+3)}
              v_xor_b32 {vr(m)}, 0x80000000, {vr(m)}
              v_and_b32 {vr(m+1)}, 0xffff0000, {vr(m)}
              v_sub_f32 {vr(m)}, {vr(m)}, {vr(m+1)}
              v_and_b32 {vr(m+2)}, 0xffff0000, {vr(m)}
              v_sub_f32 {vr(m)}, {vr(m)}, {vr(m+2)}
              v_lshrrev_b32 {vr(m+1)}, 16, {vr(m+1)}
              v_or_b32 {vr(QB+2*j)}, {vr(m+1)}, {vr(m+2)}
              v_lshrrev_b32 {vr(QB+2*j+1)}, 16, {vr(m)}""")
    a("s_mov_b64 exec, -1")
    attn_zero()
    a("s_branch L_attn")

def allreduce_g(regs, tmp, op="v_add_f32"):
    for swap in ("v_permlane32_swap_b32", "v_permlane16_swap_b32"):
        for i, r in enumerate(regs): a(f"v_mov_b32 {vr(tmp+i)}, {vr(r)}")
        for i, r in enumerate(regs): a(f"{swap} {vr(tmp+i)}, {vr(r)}")
        for i, r in enumerate(regs): a(f"{op} {vr(r)}, {vr(tmp+i)}, {vr(r)}")

def row_allreduce(regs, op):
    for k in (8, 4, 2, 1):
        for r in regs: a(f"{op}_dpp {vr(r)}, {vr(r)}, {vr(r)} row_ror:{k} row_mask:0xf bank_mask:0xf")

OF, OAC, OT, OW = 16, 56, 76, 116
def outproj():
    lds_signal(L_CNT + C_ADONE, "v8", "v9")
    a(f"""v_min_u32 v14, 19, {vL}
          s_mul_i32 {t0}, {sCB}, 20
          v_add_u32 v15, {t0}, v14
          v_lshlrev_b32 v6, 3, v15
          v_lshrrev_b32 v4, 2, v15
          v_and_b32 v15, 3, v15
          v_lshlrev_b32 v4, 7, v4
          v_lshl_add_u32 v4, v15, 4, v4
          v_add_u32 v4, {WS_MODG + 80*128}, v4
          v_add_u32 v8, 5120, v4
          v_add_u32 v9, 10240, v4
          v_add_u32 v10, 15360, v4
          v_lshlrev_b32 v14, 4, v14
          v_add_u32 v14, {L_VEC}, v14""")
    for k in range(3):
        a(f"""v_add_u32 v15, {64*k}, {vL}
              v_min_u32 v15, 159, v15
              v_lshlrev_b32 {vr(11+k)}, 3, v15
              v_lshrrev_b32 {vr(70+k)}, 2, v15
              v_and_b32 v15, 3, v15
              v_lshlrev_b32 {vr(70+k)}, 7, {vr(70+k)}
              v_lshl_add_u32 {vr(70+k)}, v15, 4, {vr(70+k)}
              v_add_u32 {vr(70+k)}, {WS_MODG + 120*128}, {vr(70+k)}
              v_add_u32 {vr(73+k)}, 5120, {vr(70+k)}
              global_load_dwordx2 {vr(56+2*k,2)}, {vr(11+k)}, {WR}""")
    a(f"""global_load_dwordx2 v[62:63], v6, {WR}
          s_lshl_b32 {t0}, {sRB}, 10
          s_add_u32 {t0}, {t0}, {WS_KVF}
          v_and_b32 v15, 7, {vL}
          v_lshl_add_u32 v76, v15, 7, {t0}""")
    lds = [f"global_load_dwordx4 {vr(16+4*i,4)}, {vr(r)}, {WS} sc1" for i, r in enumerate((4, 8, 9, 10, 70, 71, 72, 73, 74, 75))]
    lds.append(f"global_load_dword v77, v76, {WS} sc1")
    bad = ["v_min_u32 v78, v77, v77\nv_max_u32 v79, v77, v77"]
    bad += [f"v_min3_u32 v78, v78, {vr(17+4*i)}, {vr(19+4*i)}\nv_max3_u32 v79, v79, {vr(17+4*i)}, {vr(19+4*i)}" for i in range(10)]
    bad += [f"v_xor_b32 v78, {sTAG}, v78\nv_xor_b32 v79, {sTAG}, v79\nv_or_b32 v78, v78, v79\nv_cmp_ne_u32 vcc, 0, v78"]
    poll("\n".join(lds), "\n".join(bad), sleep=4)
    def unp4(dst, r0, r1): unpack(vr(dst), vr(dst+1), vr(r0)); unpack(vr(dst+2), vr(dst+3), vr(r1))
    def plus1(r, t):
        a(f"""v_pk_add_f32 {vr(r,2)}, {vr(r,2)}, 1.0 op_sel_hi:[1,0]
              v_pk_add_f32 {vr(r+2,2)}, {vr(r+2,2)}, 1.0 op_sel_hi:[1,0]
              v_cvt_pk_bf16_f32 {vr(t)}, {vr(r)}, {vr(r+1)}
              v_cvt_pk_bf16_f32 {vr(t+1)}, {vr(r+2)}, {vr(r+3)}""")
        unp4(r, t, t + 1)
    unp4(80, 16, 18); unp4(84, 24, 26); plus1(84, 64); unp4(88, 20, 22); unp4(92, 28, 30); unp4(96, 62, 63)
    a("v_pk_mul_f32 v[96:97], v[96:97], v[84:85]\nv_pk_mul_f32 v[98:99], v[98:99], v[86:87]")
    for i in range(5): a(f"ds_write_b128 v14, {vr(80+4*i,4)} offset:{320*i}")
    lds_signal(L_CNT + C_WO, "v4", "v5")
    a("v_mov_b32 v100, 0\nv_mov_b32 v101, 0")
    for k in range(3):
        unp4(104, 32 + 4*k, 34 + 4*k); unp4(108, 44 + 4*k, 46 + 4*k); plus1(108, 64); unp4(112, 56 + 2*k, 57 + 2*k)
        if k == 2: a(f"s_mov_b64 exec, {MK_LO}")
        for i in range(4): a(f"v_fmac_f32 v100, {vr(108+i)}, {vr(112+i)}\nv_fmac_f32 v101, {vr(104+i)}, {vr(112+i)}")
    a("s_mov_b64 exec, -1")
    row_allreduce((100, 101), "v_add_f32")
    allreduce_g((100, 101), 102)
    sTT, sKH = sSEND1, sSEND2
    a(f"""v_readfirstlane_b32 {sSA}, v100
          v_readfirstlane_b32 {sC0}, v101
          s_and_b32 {sTT}, {sW4}, 1
          s_lshr_b32 {sKH}, {sW4}, 1
          v_mul_u32_u24 v8, 40, {vL}
          s_mul_i32 {t0}, {sKH}, 51200
          v_add_u32 v8, {t0}, v8
          v_lshlrev_b32 v9, 4, {vL}
          s_mov_b32 {sCG}, 0
          s_mov_b32 {sGEN}, 0""")
    lds_wait(4, "v4", "v5", sleep=2)
    def wo_reads(s, r):
        return "\n".join(f"ds_read_b64_tr_b16 {vr(r+4*t+2*j,2)}, v8 offset:{s*5120 + j*2560 + 8*t}" for t in range(5) for j in range(2))
    for s in range(7): a(wo_reads(s, OW + 20*s))
    lds_signal(L_CNT + C_WC, "v4", "v5")
    lds_wait(4, "v4", "v5", sleep=2)
    a(f"""v_lshrrev_b32 v4, 1, {vL}
          v_and_b32 v5, 1, {vL}
          s_cmp_ge_u32 {sP8}, 216
          s_cbranch_scc1 L_fd2
          s_mul_i32 {t0}, {sW4}, 160
          v_add_u32 v4, {t0}, v4
          v_mul_u32_u24 v4, 3456, v4
          s_lshl_b32 {t0}, {sP8}, 4
          v_add_u32 v4, {t0}, v4
          v_cmp_eq_u32 vcc, 1, v5
          v_mov_b32 v6, {lo(WG)}
          v_mov_b32 v7, {hi(WG)}
          v_mov_b32 v10, {lo(WU)}
          v_mov_b32 v11, {hi(WU)}
          v_cndmask_b32 v6, v6, v10, vcc
          v_cndmask_b32 v7, v7, v11, vcc
          v_add_co_u32 v6, vcc, v6, v4
          s_mul_i32 {t2}, {sW4}, 5120
          v_addc_co_u32 v7, vcc, 0, v7, vcc""")
    for s in range(5):
        a(f"s_add_u32 m0, {t2}, {L_W + 1024*s}\nglobal_load_lds_dwordx4 v[6:7], off")
        if s < 4: a(f"v_add_co_u32 v6, vcc, {32*3456}, v6\nv_addc_co_u32 v7, vcc, 0, v7, vcc")
        if s % 2: a("s_waitcnt vmcnt(0)")
    a("s_branch L_fde")
    a.label("L_fd2")
    a(f"""s_mul_i32 {t0}, {sW4}, 14
          s_min_u32 {t0}, {t0}, 40
          s_mul_i32 {t0}, {t0}, 40960
          s_sub_u32 {t1}, {sP8}, 216
          s_lshl_b32 {t1}, {t1}, 5
          s_add_u32 {t0}, {t0}, {t1}
          v_mul_u32_u24 v4, 1280, v4
          v_lshl_add_u32 v4, v5, 4, v4
          v_add_u32 v4, {t0}, v4
          s_mul_i32 {t1}, {sTT}, 14336
          s_mul_i32 {t2}, {sKH}, 51200
          s_add_u32 {t2}, {t2}, {t1}""")
    for s in range(14):
        a(f"s_add_u32 m0, {t2}, {L_W + 1024*s}\nglobal_load_lds_dwordx4 v4, {WD}")
        if s < 13: a("v_add_u32 v4, 40960, v4")
        if s % 4 == 3: a("s_waitcnt vmcnt(0)")
    a.label("L_fde")
    a("s_waitcnt vmcnt(0)")
    lds_signal(L_CNT + C_FF, "v4", "v5")
    if OPT.get("lowprio", 1): a("s_setprio 0")
    stamp(29)
    a.label("L_op")
    a(wo_reads(7, OT)); a(wo_reads(8, OT + 20))
    a(f"""s_lshl_b32 {sCAND}, {sRB}, 1
          s_add_u32 {sCAND}, {sCAND}, {sCG}
          s_lshl_b32 {t1}, {sCAND}, 1
          s_add_u32 {t1}, {t1}, {sTT}
          s_mul_i32 {t2}, {t1}, 20480
          s_mul_i32 {t3}, {sKH}, 10240
          s_add_u32 {t2}, {t2}, {t3}
          s_add_u32 {t2}, {t2}, {WS_OX + 4096}
          s_add_u32 {lo(OB0)}, {lo(WS)}, {t2}
          s_addc_u32 {hi(OB0)}, {hi(WS)}, 0
          s_add_u32 {lo(OB1)}, {lo(OB0)}, 0x2000
          s_addc_u32 {hi(OB1)}, {hi(OB0)}, 0
          s_lshl_b32 {t2}, {t1}, 4
          v_add_u32 v11, {t2}, {vN}
          v_mul_u32_u24 v11, 1280, v11
          v_mul_u32_u24 v14, 40, {vG}
          s_mul_i32 {t2}, {sCB}, 160
          s_mul_i32 {t3}, {sKH}, 24
          s_add_u32 {t2}, {t2}, {t3}
          v_add_u32 v14, {t2}, v14
          v_add_u32 v11, v14, v11
          s_lshl_b32 {t3}, {sKH}, 4
          v_subrev_u32 v10, {t3}, v11
          global_load_dwordx2 v[4:5], v11, {X}
          global_load_dwordx2 v[6:7], v11, {X} offset:8
          global_load_dwordx2 v[12:13], v10, {X} offset:16
          s_lshl_b32 {t2}, {t1}, 12
          s_lshl_b32 {t3}, {sCB}, 9
          s_add_u32 {t2}, {t2}, {t3}
          s_lshl_b32 {t3}, {sKH}, 8
          s_add_u32 {t2}, {t2}, {t3}
          s_add_u32 {sSTS}, {t2}, {WS_ST}
          s_lshl_b32 {t2}, {sCAND}, 13
          s_add_u32 {sSTL}, {t2}, {WS_ST + 4096}
          v_mul_u32_u24 v15, 80, {vG}
          s_mul_i32 {t0}, {sKH}, 48
          s_add_u32 {t0}, {t0}, {L_VEC}
          v_add_u32 v15, {t0}, v15
          s_lshl_b32 {t4}, {sTT}, 2
          s_add_u32 {t4}, {t4}, {L_CNT + C_PAIR}
          s_add_u32 {sGEN}, {sGEN}, 2
          s_lshl_b32 {t3}, {sCG}, 2
          v_mov_b32 v56, {L_CNT + C_BPUB}""")
    lds_wait(t3, "v56", "v57", sleep=3)
    a("s_waitcnt vmcnt(0)")
    stamp(9)
    order = [7, 0, 1, 2, 3, 4, 5, 6, 8, 9]
    def o_load(s): return f"global_load_dwordx4 {vr(OF+4*s,4)}, v9, {OB0 if s < 8 else OB1} offset:{1024*(s%8) - 4096} sc1"
    for s in order: a(o_load(s))
    a(f"s_mov_b32 {sSPIN}, {OPT['spin']}")
    GA, AV, EX, X1, S1, G = 16, 28, 40, 76, 88, 96
    retry = []
    for i, s in enumerate(order):
        a(f"s_waitcnt vmcnt({9-i})" + (" lgkmcnt(6)" if s == 9 else ""))
        a.label(f"L_oc{s}")
        a(f"""v_max_u32 v10, {vr(OF+4*s)}, {vr(OF+4*s+2)}
              v_cmp_eq_u32 vcc, -1, v10
              s_cbranch_vccnz L_or{s}""")
        a.label(f"L_ob{s}")
        w = {7: OT, 8: OT + 20, 9: OT}.get(s, OW + 20*s)
        for t in range(5):
            a(f"v_mfma_f32_16x16x32_bf16 {vr(OAC+4*t,4)}, {vr(w+4*t,4)}, {vr(OF+4*s,4)}, {'0' if i == 0 else vr(OAC+4*t,4)}")
        if s == 0: a(wo_reads(9, OT))
        if s == 6:
            for arr, r in ((0, GA), (4, AV)):
                for k in range(3): a(f"ds_read_b128 {vr(r+4*k,4)}, v15 offset:{320*arr + 16*k}")
        retry.append(f"""L_or{s}:
              s_sub_u32 {sSPIN}, {sSPIN}, 1
              s_cbranch_scc1 L_ob{s}
              {o_load(s)}
              s_waitcnt vmcnt(0)
              s_branch L_oc{s}""")
    stamp(10)
    a(f"""s_mul_i32 {t0}, {sW4}, 3072
          s_add_u32 {t0}, {t0}, {L_OXC}
          v_add_u32 v10, {t0}, v9
          s_xor_b32 {t0}, {sW4}, 2
          s_mul_i32 {t0}, {t0}, 3072
          s_add_u32 {t0}, {t0}, {L_OXC}
          v_add_u32 v104, {t0}, v9
          s_cmp_lg_u32 {sKH}, 0
          s_cbranch_scc1 L_oe1""")
    for kh, (keep, send) in enumerate((((0, 1, 2), (3, 4)), ((3, 4), (0, 1, 2)))):
        nk = len(keep)
        if kh: a.label("L_oe1")
        for i, t in enumerate(send): a(f"ds_write_b128 v10, {vr(OAC+4*t,4)} offset:{1024*i}")
        lds_signal(t4, "v106", "v107")
        for i, r in enumerate((4, 6, 12)[:nk]):
            unpack(vr(X1+4*i), vr(X1+4*i+1), vr(r)); unpack(vr(X1+4*i+2), vr(X1+4*i+3), vr(r+1))
        for i, t in enumerate(keep):
            for h in range(2):
                x = X1 + 4*i + 2*h
                a(f"v_pk_fma_f32 {vr(x,2)}, {vr(OAC+4*t+2*h,2)}, {vr(GA+4*i+2*h,2)}, {vr(x,2)}")
        lds_wait(sGEN, "v106", "v107")
        for i in range(nk): a(f"ds_read_b128 {vr(EX+4*i,4)}, v104 offset:{1024*i}")
        for i in range(nk):
            a(f"s_waitcnt lgkmcnt({nk-1-i})")
            for h in range(2):
                x = X1 + 4*i + 2*h
                a(f"v_pk_fma_f32 {vr(x,2)}, {vr(EX+4*i+2*h,2)}, {vr(GA+4*i+2*h,2)}, {vr(x,2)}")
                if i == 0 and h == 0:
                    a(f"""v_pk_mul_f32 {vr(S1+2,2)}, {vr(x,2)}, {vr(x,2)}
                          v_pk_mul_f32 {vr(S1+4,2)}, {vr(x,2)}, {vr(AV,2)}""")
                else:
                    a(f"""v_pk_add_f32 {vr(S1,2)}, {vr(S1 if (i, h) != (0, 1) else X1,2)}, {vr(x,2)}
                          v_pk_fma_f32 {vr(S1+2,2)}, {vr(x,2)}, {vr(x,2)}, {vr(S1+2,2)}
                          v_pk_fma_f32 {vr(S1+4,2)}, {vr(x,2)}, {vr(AV+4*i+2*h,2)}, {vr(S1+4,2)}""")
        if not kh: a("s_branch L_oe2")
    a.label("L_oe2")
    a(f"""v_add_f32 {vr(G)}, {vr(S1)}, {vr(S1+1)}
          v_add_f32 {vr(G+1)}, {vr(S1+2)}, {vr(S1+3)}
          v_add_f32 {vr(G+2)}, {vr(S1+4)}, {vr(S1+5)}
          v_mov_b32 {vr(G+3)}, {sTAG}
          v_add_u32 v10, {sSTS}, v9""")
    allreduce_g((G, G + 1, G + 2), S1)
    a(f"""s_mov_b64 exec, 0xffff
          global_store_dwordx4 v10, {vr(G,4)}, {WS} sc1
          s_mov_b64 exec, -1""")
    stamp(11)
    VQ = (56, 60, 64, 68, 72, 100, 104, 108, 112)
    def ve(arr, i): return VQ[3 * (arr - 1) + i // 2] + 2 * (i % 2)
    for arr in (1, 2, 3):
        for k in range(3): a(f"ds_read_b128 {vr(VQ[3*(arr-1)+k],4)}, v15 offset:{320*arr + 16*k}")
    a(f"""v_lshlrev_b32 v13, 10, {vG}
          v_lshl_add_u32 v13, {vN}, 4, v13
          v_add_u32 v13, {sSTL}, v13
          s_mul_i32 {t1}, {sCAND}, 1280
          v_add_u32 v14, {t1}, v14
          v_lshlrev_b32 v12, 1, v14
          v_add_u32 v12, {WS_BASE}, v12
          v_add_u32 v14, {WS_H2}, v14
          s_lshl_b32 {t2}, {sCAND}, 7
          s_add_u32 {t2}, {t2}, {WS_WIN}
          v_add_u32 v4, {t2}, v9
          v_mov_b32 v54, 0
          v_mov_b32 v55, {sTAG}
          s_mov_b32 {lo(T2)}, 0xffff0000
          s_mov_b32 {hi(T2)}, 0xffff0000
          s_cmp_lg_u32 {sTT}, 0
          s_cselect_b64 {T1}, -1, 0""")
    ST = 16
    lds = [f"global_load_dwordx4 {vr(ST+16*u+4*i,4)}, v13, {WS} offset:{4096*(u-1) + 256*i} sc1" for u in range(2) for i in range(4)]
    bad = [f"v_min_u32 v5, {vr(ST+3)}, {vr(ST+7)}\nv_max_u32 v6, {vr(ST+3)}, {vr(ST+7)}"]
    bad += [f"v_min3_u32 v5, v5, {vr(ST+3+8*i)}, {vr(ST+7+8*i)}\nv_max3_u32 v6, v6, {vr(ST+3+8*i)}, {vr(ST+7+8*i)}" for i in range(1, 4)]
    bad += [f"v_xor_b32 v5, {sTAG}, v5\nv_xor_b32 v6, {sTAG}, v6\nv_or_b32 v5, v5, v6\nv_cmp_ne_u32 vcc, 0, v5"]
    poll("\n".join(lds), "\n".join(bad))
    stamp(12)
    for u in range(2):
        b = ST + 16 * u
        a(f"""v_pk_add_f32 {vr(b,2)}, {vr(b,2)}, {vr(b+4,2)}
              v_pk_add_f32 {vr(b+8,2)}, {vr(b+8,2)}, {vr(b+12,2)}
              v_add_f32 {vr(b+2)}, {vr(b+2)}, {vr(b+6)}
              v_add_f32 {vr(b+10)}, {vr(b+10)}, {vr(b+14)}
              v_pk_add_f32 {vr(b,2)}, {vr(b,2)}, {vr(b+8,2)}
              v_add_f32 {vr(b+2)}, {vr(b+2)}, {vr(b+10)}""")
    allreduce_g((ST, ST + 1, ST + 2, ST + 16, ST + 17, ST + 18), S1)
    B2 = (ST, ST + 16)
    for txt in (f"v_mul_f32 #0, {hex(f2u(-1/640))}, #0", f"v_mul_f32 #1, {hex(f2u(1/640))}, #1", "v_fma_f32 #1, -#0, #0, #1",
                "v_max_f32 #1, 0, #1", f"v_add_f32 #1, {hex(f2u(1e-5))}, #1", "v_rsq_f32 #1, #1",
                f"v_fma_f32 #2, #0, {sSA}, #2", f"v_fma_f32 #2, #2, #1, {sC0}"):
        for b in B2: a(txt.replace("#0", vr(b)).replace("#1", vr(b+1)).replace("#2", vr(b+2)))
    a(f"""v_max_f32 v52, {vr(ST+2)}, {vr(ST+18)}
          v_cndmask_b32 v5, {vr(ST+2)}, {vr(ST+18)}, {T2}
          v_cndmask_b32 {vr(ST+4)}, {vr(ST+1)}, {vr(ST+17)}, {T1}""")
    row_allreduce((52,), "v_max_f32")
    a(f"""v_cmp_eq_f32 vcc, v5, v52
          v_cndmask_b32 {vr(ST+6)}, {vr(ST)}, {vr(ST+16)}, {T1}
          s_ff1_i32_b32 {sWINT}, vcc_lo
          s_and_b32 {sWINT}, {sWINT}, 31
          s_or_b32 {t1}, {sCB}, {sW4}
          s_cmp_lg_u32 {t1}, 0
          s_cbranch_scc1 L_nowin
          s_lshl_b32 {t1}, {sCAND}, 5
          s_add_u32 {t1}, {t1}, {sWINT}
          v_mov_b32 v53, {t1}
          s_mov_b64 exec, 0xff
          global_store_dwordx4 v4, v[52:55], {WS} sc1
          s_mov_b64 exec, -1""")
    a.label("L_nowin")
    HP, OP = 88, 94
    a(f"""v_mul_f32 {vr(ST+6)}, {vr(ST+6)}, {vr(ST+4)}
          s_lshl_b32 {t1}, {sTT}, 4
          s_sub_u32 {t1}, {sWINT}, {t1}
          v_cmp_eq_u32 {MK_A}, {t1}, {vN}
          s_waitcnt lgkmcnt(0)""")
    for i in range(6):
        x, h = X1 + 2*i, 48 + 2*(i % 2)
        a(f"""v_pk_fma_f32 {vr(h,2)}, {vr(x,2)}, {vr(ST+4,2)}, {vr(ST+6,2)} op_sel_hi:[1,0,0]
              v_pk_fma_f32 {vr(h,2)}, {vr(h,2)}, {vr(ve(1,i),2)}, {vr(ve(2,i),2)}
              v_pk_fma_f32 {vr(x,2)}, {vr(h,2)}, {vr(ve(3,i),2)}, {vr(x,2)}
              v_cvt_pk_bf16_f32 {vr(HP+i)}, {vr(h)}, {vr(h+1)}
              v_cvt_pk_bf16_f32 {vr(OP+i)}, {vr(x)}, {vr(x+1)}""")
        if i % 2 == 0: a(f"v_min_u32 {vr(HP+i)}, -2, {vr(HP+i)}\nv_min_u32 {vr(x)}, -2, {vr(x)}")
    a(f"""s_and_saveexec_b64 {T0}, {MK_A}
          s_cbranch_execz L_nocand
          global_store_dwordx2 v14, {vr(HP,2)}, {WS} sc1
          global_store_dwordx2 v14, {vr(HP+2,2)}, {WS} offset:8 sc1
          s_cmp_lg_u32 {sKH}, 0
          s_cbranch_scc1 L_cand2
          global_store_dwordx2 v14, {vr(HP+4,2)}, {WS} offset:16 sc1
          global_store_dwordx4 v12, {vr(X1+8,4)}, {WS} offset:32 sc1""")
    a.label("L_cand2")
    a(f"""global_store_dwordx4 v12, {vr(X1,4)}, {WS} sc1
          global_store_dwordx4 v12, {vr(X1+4,4)}, {WS} offset:16 sc1""")
    a.label("L_nocand")
    a(f"""s_not_b64 exec, {MK_A}
          s_cmp_eq_u32 {sCG}, 0
          s_cbranch_scc1 L_nobar
          s_barrier""")
    a.label("L_nobar")
    a(f"""global_store_dwordx2 v11, {vr(OP,2)}, {OUT}
          global_store_dwordx2 v11, {vr(OP+2,2)}, {OUT} offset:8
          s_cmp_lg_u32 {sKH}, 0
          s_cbranch_scc1 L_o2
          global_store_dwordx2 v11, {vr(OP+4,2)}, {OUT} offset:16""")
    a.label("L_o2")
    a("s_mov_b64 exec, -1")
    if OPT["stamps"]:
        a(f"s_cmp_lg_u32 {sCG}, 0\ns_cbranch_scc1 L_st13")
        stamp(30)
        a.label("L_st13")
    stamp(13)
    a(f"""s_add_u32 {sCG}, {sCG}, 1
          s_cmp_lt_u32 {sCG}, 2
          s_cbranch_scc1 L_op""")
    endpgm()
    for r in retry: a(r)

def find_winner():
    a(f"v_lshlrev_b32 v8, 7, {vL}\nv_add_u32 v8, {WS_WIN}, v8")
    poll(f"global_load_dwordx4 v[4:7], v8, {WS} sc1", f"v_cmp_ne_u32 vcc, {sTAG}, v7", sleep=1)
    a("v_mov_b32 v9, v4")
    row_allreduce((9,), "v_max_f32")
    allreduce_g((9,), 10, "v_max_f32")
    a(f"""v_cmp_eq_f32 vcc, v4, v9
          s_ff1_i32_b64 {t3}, vcc
          s_and_b32 {t3}, {t3}, 63
          v_readlane_b32 {sWINT}, v5, {t3}
          v_readlane_b32 {sWINR}, v4, {t3}""")

def ffn():
    FW, FA = 16, 96
    a.label("L_ffn")
    lds_signal(L_CNT + C_BPUB, "v4", "v5")
    a(f"""v_lshlrev_b32 v14, 8, {vG}
          v_lshl_add_u32 v14, {vN}, 3, v14
          v_mov_b32 v4, {L_CNT + C_FF}
          s_cmp_ge_u32 {sP8}, 216
          s_cbranch_scc1 L_ffn2
          s_cmp_lg_u32 {sW4}, 0
          s_cbranch_scc1 L_end""")
    lds_wait(4, "v4", "v5", sleep=2)
    for s in range(20):
        a(f"ds_read_b64_tr_b16 {vr(FW+4*s,2)}, v14 offset:{1024*s}\nds_read_b64_tr_b16 {vr(FW+4*s+2,2)}, v14 offset:{1024*s+128}")
    a("s_barrier")
    stamp(14)
    find_winner()
    stamp(15)
    a(f"""s_mul_i32 {t0}, {t3}, 1280
          s_add_u32 {t0}, {t0}, {WS_H2}
          v_lshl_add_u32 v8, {vG}, 4, {t0}
          s_lshl_b32 {t0}, {sP8}, 6
          s_add_u32 {t0}, {t0}, {WS_ACT}
          v_lshl_add_u32 v9, {vG}, 3, {t0}
          s_mov_b64 exec, {MK_N0}""")
    def maxchain(n):
        regs = [FA + 2*i for i in range(2 * n)]
        out = [f"v_max_u32 v10, {vr(regs[0])}, {vr(regs[1])}"]
        out += [f"v_max3_u32 v10, v10, {vr(regs[i])}, {vr(regs[i+1])}" for i in range(2, 2 * n, 2)]
        return "\n".join(out + ["v_cmp_eq_u32 vcc, -1, v10"])
    poll("\n".join(f"global_load_dwordx4 {vr(FA+4*s,4)}, v8, {WS} offset:{64*s} sc1" for s in range(20)), maxchain(20))
    a("s_mov_b64 exec, -1\ns_waitcnt lgkmcnt(0)")
    for s in range(20):
        d = 176 + 4 * (s % 2)
        a(f"v_mfma_f32_16x16x32_bf16 {vr(d,4)}, {vr(FW+4*s,4)}, {vr(FA+4*s,4)}, {'0' if s < 2 else vr(d,4)}")
    a("v_pk_add_f32 v[176:177], v[176:177], v[180:181]\nv_pk_add_f32 v[178:179], v[178:179], v[182:183]")
    for i in range(4): a(f"v_mov_b32 {vr(180+i)}, {vr(176+i)}")
    for i in range(4): a(f"v_permlane32_swap_b32 {vr(176+i)}, {vr(180+i)}")
    for i in range(4): a(f"v_mul_f32 {vr(184+i)}, {hex(f2u(-math.log2(math.e)))}, {vr(176+i)}")
    for i in range(4): a(f"v_exp_f32 {vr(184+i)}, {vr(184+i)}")
    for i in range(4): a(f"v_add_f32 {vr(184+i)}, 1.0, {vr(184+i)}")
    for i in range(4): a(f"v_rcp_f32 {vr(184+i)}, {vr(184+i)}")
    for i in range(4): a(f"v_mul_f32 {vr(176+i)}, {vr(176+i)}, {vr(180+i)}")
    for i in range(4): a(f"v_mul_f32 {vr(176+i)}, {vr(176+i)}, {vr(184+i)}")
    a(f"""v_cvt_pk_bf16_f32 v12, v176, v177
          v_cvt_pk_bf16_f32 v13, v178, v179
          v_min_u32 v12, -2, v12
          s_mov_b64 exec, 0x10001
          global_store_dwordx2 v9, v[12:13], {WS} sc1
          s_mov_b64 exec, -1""")
    stamp(16)
    a(f"""s_cmp_lg_u32 s2, 0
          s_cbranch_scc1 L_end
          v_mov_b32 v4, 0
          v_mov_b32 v5, {sTAG}
          s_mov_b64 exec, 1
          global_store_dword v4, v5, {WS}""")
    endpgm()
    a.label("L_ffn2")
    sQ, sS0 = sSEND1, sSEND2
    a(f"""s_sub_u32 {sQ}, {sP8}, 216
          s_mul_i32 {sS0}, {sW4}, 14
          s_min_u32 {sS0}, {sS0}, 40
          s_and_b32 {t1}, {sW4}, 1
          s_mul_i32 {t1}, {t1}, 14336
          s_lshr_b32 {t2}, {sW4}, 1
          s_mul_i32 {t2}, {t2}, 51200
          s_add_u32 {t2}, {t2}, {t1}
          v_add_u32 v14, {t2}, v14
          s_lshl_b32 {t0}, {sQ}, 7
          s_add_u32 {t0}, {t0}, {WS_MODG + 200*128}
          v_lshl_add_u32 v12, {vG}, 4, {t0}""")
    lds_wait(4, "v4", "v5", sleep=2)
    for s in range(14):
        a(f"ds_read_b64_tr_b16 {vr(FW+4*s,2)}, v14 offset:{1024*s}\nds_read_b64_tr_b16 {vr(FW+4*s+2,2)}, v14 offset:{1024*s+128}")
    a(f"""s_waitcnt lgkmcnt(0)
          s_cmp_lg_u32 {sW4}, 3
          s_cbranch_scc1 L_f2full""")
    for i in range(8): a(f"v_mov_b32 {vr(FW+i)}, 0")
    a.label("L_f2full")
    a("s_barrier")
    stamp(14)
    find_winner()
    stamp(15)
    a(f"""global_load_dwordx4 v[188:191], v12, {WS} sc1
          s_lshl_b32 {t0}, {sW4}, 4
          v_add_u32 v8, {t0}, {vN}
          v_lshlrev_b32 v9, 2, v8
          ds_bpermute_b32 v10, v9, v5
          v_cmp_ne_u32 {MK_A}, {t3}, v8
          v_mul_u32_u24 v8, 2560, v8
          s_lshl_b32 {t0}, {sQ}, 6
          s_add_u32 {t0}, {t0}, {WS_BASE}
          v_lshl_add_u32 v9, {vG}, 4, {t0}
          v_add_u32 v8, v9, v8
          s_mul_i32 {t0}, {t3}, 2560
          v_add_u32 v9, {t0}, v9
          s_lshl_b32 {t0}, {sQ}, 5
          v_lshl_add_u32 v11, {vG}, 3, {t0}
          s_waitcnt lgkmcnt(0)
          v_and_b32 v10, 2047, v10
          v_mul_u32_u24 v10, 1280, v10
          v_add_u32 v15, v11, v10
          s_and_b32 {sWINT}, {sWINT}, 2047
          s_mul_i32 {t0}, {sWINT}, 1280
          v_add_u32 v11, {t0}, v11""")
    poll(f"global_load_dwordx4 v[196:199], v8, {WS} sc1\nglobal_load_dwordx4 v[200:203], v9, {WS} sc1",
         "v_max_u32 v10, v196, v200\nv_cmp_eq_u32 vcc, -1, v10")
    unpack("v192", "v193", "v188"); unpack("v194", "v195", "v190")
    a(f"""v_cvt_pk_bf16_f32 v12, v196, v197
          v_cvt_pk_bf16_f32 v13, v198, v199
          s_mov_b64 exec, {MK_A}
          global_store_dwordx2 v15, v[12:13], {OUT}
          s_mov_b64 exec, -1
          v_mov_b32 v204, {sWINR}
          v_mul_f32 v204, {hex(f2u(-math.log2(math.e)))}, v204
          v_exp_f32 v204, v204
          s_lshl_b32 {t0}, {sS0}, 8
          s_add_u32 {t0}, {t0}, {WS_ACT}
          v_add_f32 v204, 1.0, v204
          v_rcp_f32 v204, v204
          v_lshl_add_u32 v8, {vG}, 6, {t0}
          v_pk_mul_f32 v[192:193], v[192:193], v[204:205] op_sel_hi:[1,0]
          v_pk_mul_f32 v[194:195], v[194:195], v[204:205] op_sel_hi:[1,0]
          s_lshl_b32 {t0}, {sW4}, 6
          s_add_u32 {t0}, {t0}, {L_YP}
          v_lshl_add_u32 v9, {vG}, 4, {t0}
          s_mov_b64 exec, {MK_N0}""")
    poll("\n".join(f"global_load_dwordx4 {vr(FA+4*s,4)}, v8, {WS} offset:{256*s} sc1" for s in range(14)), maxchain(14))
    a("s_mov_b64 exec, -1")
    stamp(16)
    for s in range(14):
        d = 176 + 4 * (s % 2)
        a(f"v_mfma_f32_16x16x32_bf16 {vr(d,4)}, {vr(FW+4*s,4)}, {vr(FA+4*s,4)}, {'0' if s < 2 else vr(d,4)}")
    a(f"""v_pk_add_f32 v[176:177], v[176:177], v[180:181]
          v_pk_add_f32 v[178:179], v[178:179], v[182:183]
          s_cmp_eq_u32 {sW4}, 0
          s_cbranch_scc1 L_f2fin
          s_mov_b64 exec, {MK_N0}
          ds_write_b128 v9, v[176:179]
          s_mov_b64 exec, -1""")
    lds_signal(L_CNT + C_Y, "v4", "v5")
    endpgm()
    a.label("L_f2fin")
    a(f"v_mov_b32 v4, {L_CNT + C_Y}")
    lds_wait(3, "v4", "v5")
    a(f"""ds_read_b128 v[180:183], v9 offset:64
          ds_read_b128 v[184:187], v9 offset:128
          ds_read_b128 v[188:191], v9 offset:192
          s_waitcnt lgkmcnt(0)
          v_pk_add_f32 v[176:177], v[176:177], v[180:181]
          v_pk_add_f32 v[178:179], v[178:179], v[182:183]
          v_pk_add_f32 v[184:185], v[184:185], v[188:189]
          v_pk_add_f32 v[186:187], v[186:187], v[190:191]
          v_pk_add_f32 v[176:177], v[176:177], v[184:185]
          v_pk_add_f32 v[178:179], v[178:179], v[186:187]
          v_pk_fma_f32 v[200:201], v[176:177], v[192:193], v[200:201]
          v_pk_fma_f32 v[202:203], v[178:179], v[194:195], v[202:203]
          v_cvt_pk_bf16_f32 v12, v200, v201
          v_cvt_pk_bf16_f32 v13, v202, v203
          s_mov_b64 exec, {MK_N0}
          global_store_dwordx2 v11, v[12:13], {OUT}
          s_mov_b64 exec, -1""")
    stamp(17)
    a.label("L_end")
    endpgm()
    a.label("L_exit")
    a("s_endpgm")

def build(**opt):
    global a
    OPT.update(opt)
    a.lines.clear(); _uid[0] = 0
    prologue(); layernorm1(); qkv(); attention(); outproj(); ffn(); slow_path()
    rep = []
    lines, nn = insert_nops(a.lines, rep)
    errs = check_waits(lines)
    head = open(f"cdna_kernels/{NAME}.s.ref").read().split("; Override launch")[0]
    out = head + f"; @launch grid=(256,1,1) block=(512,1,1) lds={LDS_BYTES}\n"
    out += f""".amdgcn_target "amdgcn-amd-amdhsa--gfx950"
.text
.globl {NAME}_kernel
.p2align 8
.type {NAME}_kernel,@function
{NAME}_kernel:
"""
    out += "\n".join(l if l.endswith(":") or l.startswith(".") else "    " + l for l in lines)
    out += f"""
.section .rodata,"a"
.p2align 6
.amdhsa_kernel {NAME}_kernel
  .amdhsa_next_free_vgpr 256
  .amdhsa_next_free_sgpr 100
  .amdhsa_accum_offset 256
  .amdhsa_group_segment_fixed_size 0
  .amdhsa_kernarg_size 120
  .amdhsa_user_sgpr_count 2
  .amdhsa_user_sgpr_kernarg_segment_ptr 1
  .amdhsa_system_sgpr_workgroup_id_x 1
  .amdhsa_float_denorm_mode_32 3
.end_amdhsa_kernel
"""
    return out, rep, errs

if __name__ == "__main__":
    opts = {}
    path = f"cdna_kernels/{NAME}.s"
    for arg in sys.argv[1:]:
        if arg.startswith("-o"): path = arg[2:]
        else:
            k, _, v = arg.partition("="); opts[k] = int(v) if v else True
    out, rep, errs = build(**opts)
    open(path, "w").write(out)
    print(f"{path}: {out.count(chr(10))} lines, {len(rep)} nop sites, {sum(r[0] for r in rep)} states")
    if opts.get("verbose"):
        for r in rep: print("  nop", r)
    for e in errs: print("WAIT ERROR:", e)
```

```python
import sys, math, struct
from asmlib import Asm, insert_nops, check_waits

NAME = "adaLN_cond__grouped_kv_mqa__moe_arch_mod__prompt"
OPT = dict(stamps=False, force_slow=False, spin=1 << 17)

def f2u(x): return struct.unpack("<I", struct.pack("<f", x))[0]

WS_MODG = 0x1000
WS_KVF  = 0x9000
WS_XF   = 0x20000
WS_KV   = 0x40000
KVREC   = 5376
WS_OX   = 0x80000
WS_ST   = 0x300000
WS_WIN  = 0x380000
WS_H2   = 0x384000
WS_BASE = 0x3A0000
WS_ACT  = 0x3D0000
ASH = 7
WS_DBG  = 0x1000000
L_W    = 0
L_WKV  = 102400
L_R2   = 128000
L_MODV = 152576
L_MISC = 157696
L_SIL  = L_MISC
L_P0P  = L_MISC + 1280
L_LN   = L_MISC + 1536
L_CNT  = L_MISC + 2560
L_VEC  = L_MISC + 2816
L_YP   = L_MISC + 4608
L_AX   = L_WKV
L_AL   = L_WKV + 36864
L_AM   = L_AL + 2048
L_OXC  = L_AM + 2048
LDS_BYTES = 163840
assert L_OXC + 12288 <= L_MISC and L_YP + 256 <= LDS_BYTES
C_P0, C_GA, C_GB, C_ADONE, C_WO, C_PAIR, C_Y, C_P1, C_WC, C_BRD, C_KVS, C_KVR = 0, 4, 8, 12, 16, 20, 36, 40, 44, 48, 52, 56
L_Q = (L_MODV, L_WKV + 20480)
PAT = 232

X, WQ, WK, WV, WO, WR, WG, WU, WD, CC, WM, OUT, DBG, WS = (f"s[{i}:{i+1}]" for i in (8, 10, 12, 14, 16, 20, 22, 24, 26, 28, 30, 32, 34, 36))
def lo(p): return "s" + p[2:].split(":")[0]
def hi(p): return "s" + p[2:-1].split(":")[1]
sW, sW4, sWH, sRB, sCB, sTAG, sPASS, sGEN, sCG, sSPIN = (f"s{i}" for i in range(38, 48))
SRD = "s[48:51]"
T0, T1, T2 = "s[52:53]", "s[54:55]", "s[56:57]"
t0, t1, t2, t3, t4, t5 = (f"s{i}" for i in range(58, 64))
sSA, sC0, sWINR, sWINT, sSOFF, sLOOP, sTT, sKH, sGC, sBLK = (f"s{i}" for i in range(64, 74))
sP4, sP8 = "s82", "s83"
MK_N0, MK_LO, MK_A, MK_B = "s[74:75]", "s[76:77]", "s[78:79]", "s[80:81]"
OB0, OB1 = "s[84:85]", "s[86:87]"
sSTS, sSTL, sCAND, sLOCAL = "s88", "s89", "s90", "s91"
sNXT, sM2, sFR = "s92", "s93", "s97"
sST = 94
vL, vN, vG = "v1", "v2", "v3"
def vr(a, n=1): return f"v{a}" if n == 1 else f"v[{a}:{a+n-1}]"

a = Asm()
_uid = [0]
def uid(p):
    _uid[0] += 1; return f"{p}_{_uid[0]}"

def stamp(i):
    if not OPT["stamps"]: return
    if OPT.get("light") and i not in (31, 6, 7, 17): return
    a(f"""{"s_memtime" if OPT.get("clk") else "s_memrealtime"} s[{sST}:{sST+1}]
          s_waitcnt lgkmcnt(0)
          v_writelane_b32 v0, s{sST}, {i}""")

def endpgm():
    if OPT["stamps"]:
        a(f"""s_mov_b64 exec, -1
              v_lshl_add_u32 v4, {vL}, 2, s{sST+2}
              global_store_dword v4, v0, {WS}""")
    if OPT.get("dbgstamps"):
        for wg, wave, base, ids in ((0, 0, 0, (31, 21, 3, 6, 7, 10, 12, 13)), (128, 4, 32, (31, 0, 6, 7, 8, 15, 16, 17))):
            L = uid("L_dbg")
            a(f"""s_cmp_lg_u32 s2, {wg}
                  s_cbranch_scc1 {L}
                  s_cmp_lg_u32 {sW}, {wave}
                  s_cbranch_scc1 {L}
                  v_mov_b32 v4, 0""")
            for i, k in enumerate(ids):
                a(f"""v_readlane_b32 {t0}, v0, {k}
                      s_and_b32 {t0}, {t0}, 0xfffff
                      v_mov_b32 v5, {t0}
                      global_store_dword v4, v5, {DBG} offset:{base + 4*i}""")
            a.label(L)
    a("s_endpgm")

def base_add(dst, src, off):
    a(f"s_add_u32 {lo(dst)}, {lo(src)}, {off}\ns_addc_u32 {hi(dst)}, {hi(src)}, 0")

def lds_signal(cnt, va, vb):
    a(f"""v_mov_b32 {va}, {cnt}
          v_mov_b32 {vb}, 1
          s_waitcnt lgkmcnt(0)
          s_mov_b64 exec, 1
          ds_add_u32 {va}, {vb} 
          s_mov_b64 exec, -1""")

def lds_wait(target, va, vb, sleep=0):
    L, E = uid("L_lw"), uid("L_lwe")
    a(f"s_mov_b32 {sSPIN}, {OPT['spin'] * 8}")
    a.label(L)
    a(f"""ds_read_b32 {vb}, {va}
          s_waitcnt lgkmcnt(0)
          v_readfirstlane_b32 {t5}, {vb}
          s_cmp_ge_u32 {t5}, {target}
          s_cbranch_scc1 {E}""")
    if sleep: a(f"s_sleep {sleep}")
    a(f"s_sub_u32 {sSPIN}, {sSPIN}, 1\ns_cbranch_scc0 {L}")
    a.label(E)

def poll(loads, bad, sleep=0, issued=False, first_wait=None):
    L, E, F = uid("L_pl"), uid("L_ple"), uid("L_plf")
    a(f"s_mov_b32 {sSPIN}, {OPT['spin']}")
    if issued: a(f"s_waitcnt vmcnt({first_wait or 0})\ns_branch {F}")
    a.label(L)
    a(loads)
    a("s_waitcnt vmcnt(0)")
    if issued: a.label(F)
    a(bad)
    a(f"s_cbranch_vccz {E}")
    if sleep: a(f"s_sleep {sleep}")
    a(f"s_sub_u32 {sSPIN}, {sSPIN}, 1\ns_cbranch_scc0 {L}")
    a.label(E)

def peer_store(stores):
    G, E = uid("L_psg"), uid("L_pse")
    a(f"s_cmp_eq_u32 {sLOCAL}, 0\ns_cbranch_scc1 {G}")
    a(stores.replace(" @", ""))
    a(f"s_branch {E}")
    a.label(G)
    a(stores.replace(" @", " sc1"))
    a.label(E)

def unpack(dlo, dhi, src):
    a(f"v_lshlrev_b32 {dlo}, 16, {src}\nv_and_b32 {dhi}, 0xffff0000, {src}")

def w_dma_patterns(dst):
    for i in range(5):
        d = vr(dst + i)
        a(f"""v_add_u32 v4, {64*i}, {vL}
              v_mul_u32_u24 v5, 6554, v4
              v_lshrrev_b32 v5, 16, v5
              v_mul_u32_u24 v6, 10, v5
              v_sub_u32 v6, v4, v6
              v_and_b32 v7, 12, v5
              v_lshlrev_b32 v7, 1, v7
              v_and_or_b32 v7, v5, 3, v7
              v_lshrrev_b32 v5, 2, v5
              v_and_or_b32 v7, v5, 4, v7
              v_mul_u32_u24 v7, 1280, v7
              v_lshl_add_u32 {d}, v6, 4, v7""")

def w_unit_base(src, unit, base, lds):
    a(f"""s_mul_i32 {t0}, {unit}, 40960
          s_mul_i32 {t1}, {sCB}, 160
          s_add_u32 {t0}, {t0}, {t1}
          s_add_u32 {lo(base)}, {lo(src)}, {t0}
          s_addc_u32 {hi(base)}, {hi(src)}, 0
          s_mul_i32 {lds}, {unit}, 5120""")
def w_piece(base, lds, k):
    return f"s_add_u32 m0, {lds}, {L_W + k*1024}\ns_nop 0\nglobal_load_lds_dwordx4 {vr(PAT + k % 5)}, {base}"

def mod_dma(slice_):
    a(f"""v_lshrrev_b32 v10, 1, {vL}
          s_mul_i32 {t1}, {sW4}, 160
          v_add_u32 v10, {t1}, v10
          v_mul_u32_u24 v10, 7680, v10
          v_and_b32 v11, 1, {vL}
          v_lshl_add_u32 v10, v11, 4, v10
          s_lshl_b32 {t1}, {slice_}, 5
          v_add_u32 v10, {t1}, v10
          s_mul_i32 {t2}, {sW4}, 5120
          s_add_u32 {t2}, {t2}, {L_WKV}""")
def mod_dma_issue(rot=True):
    for i in range(5):
        a(f"""s_add_u32 {t0}, {sCB if rot else 0}, {i}
              s_cmp_ge_u32 {t0}, 5
              s_cselect_b32 {t1}, 5, 0
              s_sub_u32 {t0}, {t0}, {t1}
              s_lshl_b32 {t1}, {t0}, 10
              s_mul_i32 {t0}, {t0}, 245760
              s_add_u32 m0, {t2}, {t1}
              v_add_u32 v11, {t0}, v10
              global_load_lds_dwordx4 v11, {WM}""")

def mod_reads(S, W):
    a(f"""s_mul_i32 {t0}, {sW4}, 320
          s_add_u32 {t0}, {t0}, {L_SIL}
          v_lshl_add_u32 v4, {vG}, 4, {t0}
          v_lshlrev_b32 v5, 8, {vG}
          v_lshl_add_u32 v5, {vN}, 3, v5
          s_mul_i32 {t0}, {sW4}, 5120
          s_add_u32 {t0}, {t0}, {L_WKV}
          v_add_u32 v5, {t0}, v5""")
    sil = [f"ds_read_b128 {vr(S+4*i,4)}, v4 offset:{64*i}" for i in range(5)]
    wr = [f"ds_read_b64_tr_b16 {vr(W+4*i+2*j,2)}, v5 offset:{1024*i+128*j}" for i in range(5) for j in range(2)]
    return "\n".join(sil), "\n".join(wr)

def mod_finish(S, W, D, slice_, cnt, done, counted, scale0):
    for i in range(5):
        if counted: a(f"s_waitcnt lgkmcnt({8-2*i})")
        a(f"v_mfma_f32_16x16x32_bf16 {vr(D,4)}, {vr(W+4*i,4)}, {vr(S+4*i,4)}, {'0' if i == 0 else vr(D,4)}")
    fin = uid("L_mf")
    a(f"""s_lshl_b32 {t0}, {sW4}, 6
          s_add_u32 {t0}, {t0}, {L_P0P}
          v_lshl_add_u32 v6, {vG}, 4, {t0}
          s_cmp_eq_u32 {sW4}, 0
          s_cbranch_scc1 {fin}
          ds_write_b128 v6, {vr(D,4)}""")
    lds_signal(L_CNT + cnt, "v4", "v5")
    a(f"s_branch {done}")
    a.label(fin)
    a(f"""v_mov_b32 v4, {L_CNT + cnt}
          s_lshl_b32 {t0}, {slice_}, 7
          s_add_u32 {t0}, {t0}, {WS_MODG}
          v_lshl_add_u32 v7, {vG}, 4, {t0}
          v_lshl_add_u32 v7, {vN}, 6, v7
          v_mov_b32 {vr(S+13)}, {sTAG}
          v_mov_b32 {vr(S+15)}, {sTAG}""")
    lds_wait(3, "v4", "v5")
    a(f"""ds_read_b128 {vr(S,4)}, v6 offset:64
          ds_read_b128 {vr(S+4,4)}, v6 offset:128
          ds_read_b128 {vr(S+8,4)}, v6 offset:192
          s_mov_b32 {lo(T0)}, 0x00030003
          s_mov_b32 {hi(T0)}, 0x00030003
          s_sub_u32 {t0}, {slice_}, {scale0}
          s_cmp_lt_u32 {t0}, 40
          s_waitcnt lgkmcnt(0)
          v_pk_add_f32 {vr(D,2)}, {vr(D,2)}, {vr(S,2)}
          v_pk_add_f32 {vr(D+2,2)}, {vr(D+2,2)}, {vr(S+2,2)}
          v_pk_add_f32 {vr(S+4,2)}, {vr(S+4,2)}, {vr(S+8,2)}
          v_pk_add_f32 {vr(S+6,2)}, {vr(S+6,2)}, {vr(S+10,2)}
          v_pk_add_f32 {vr(D,2)}, {vr(D,2)}, {vr(S+4,2)}
          v_pk_add_f32 {vr(D+2,2)}, {vr(D+2,2)}, {vr(S+6,2)}
          v_cvt_pk_bf16_f32 {vr(S+12)}, {vr(D)}, {vr(D+1)}
          v_cvt_pk_bf16_f32 {vr(S+14)}, {vr(D+2)}, {vr(D+3)}
          s_cbranch_scc0 {fin}_s""")
    unpack(vr(D), vr(D+1), vr(S+12)); unpack(vr(D+2), vr(D+3), vr(S+14))
    a(f"""v_pk_add_f32 {vr(D,2)}, {vr(D,2)}, 1.0 op_sel_hi:[1,0]
          v_pk_add_f32 {vr(D+2,2)}, {vr(D+2,2)}, 1.0 op_sel_hi:[1,0]
          v_cvt_pk_bf16_f32 {vr(S+12)}, {vr(D)}, {vr(D+1)}
          v_cvt_pk_bf16_f32 {vr(S+14)}, {vr(D+2)}, {vr(D+3)}""")
    a.label(fin + "_s")
    a(f"""s_mov_b64 exec, {T0}
          global_store_dwordx4 v7, {vr(S+12,4)}, {WS} sc1
          s_mov_b64 exec, -1""")

def x_dma():
    a(f"s_mul_i32 {t2}, {sW}, 10240")
    for s in range(10):
        a(f"s_add_u32 m0, {t2}, {L_W + 960*s}\nglobal_load_lds_dwordx4 v8, {X} offset:{64*s}")

def swz(dst, q, tmp):
    a(f"""v_lshrrev_b32 {dst}, 1, {q}
          v_xor_b32 {tmp}, {q}, {dst}
          v_and_b32 {tmp}, 1, {tmp}
          v_lshl_or_b32 {dst}, {tmp}, 1, {dst}""")

XR, NR, KVA, KVW = 16, 56, 136, 144
A_XRD, A_LNW, A_LNR, A_KVW, A_PO1, A_PO2 = (f"v{i}" for i in range(184, 190))
def prologue():
    a(f"""s_cmp_ge_u32 s2, 256
          s_cbranch_scc1 L_exit
          s_load_dwordx16 s[8:23], s[0:1], 0
          s_load_dwordx8 s[24:31], s[0:1], 64
          s_load_dwordx4 s[32:35], s[0:1], 96
          s_load_dwordx2 s[36:37], s[0:1], 112
          v_and_b32 {vL}, 63, v0
          v_lshrrev_b32 v4, 6, v0
          v_and_b32 {vN}, 15, v0
          v_readfirstlane_b32 {sW}, v4
          v_lshrrev_b32 {vG}, 4, {vL}
          s_and_b32 {t0}, s2, 7
          s_lshr_b32 {t1}, s2, 3
          s_and_b32 {sCB}, {t1}, 7
          s_lshr_b32 {t1}, {t1}, 3
          s_lshl_b32 {t2}, {t0}, 2
          s_add_u32 {sRB}, {t2}, {t1}
          s_lshl_b32 {t3}, {t1}, 5
          s_add_u32 {t3}, {t3}, {t2}
          s_add_u32 {sP4}, {t3}, {sCB}
          s_lshl_b32 {sP8}, {t0}, 3
          s_or_b32 {sP8}, {sP8}, {sCB}
          s_and_b32 {t2}, s2, 0xc0
          s_or_b32 {sP8}, {sP8}, {t2}
          s_and_b32 {sW4}, {sW}, 3
          s_lshr_b32 {sWH}, {sW}, 2
          s_and_b32 {sTT}, {sW}, 1
          s_lshr_b32 {sKH}, {sW4}, 1
          s_lshl_b32 {sBLK}, {sRB}, 3
          s_add_u32 {sBLK}, {sBLK}, {sCB}
          v_min_u32 v9, 19, {vL}
          s_lshl_b32 {t0}, {sRB}, 6
          s_lshl_b32 {t1}, {sWH}, 5
          s_add_u32 {t0}, {t0}, {t1}
          s_lshl_b32 {t1}, {sTT}, 4
          s_add_u32 {t0}, {t0}, {t1}
          v_lshrrev_b32 v8, 2, {vL}
          v_add_u32 v8, {t0}, v8
          v_mul_u32_u24 v8, 1280, v8""")
    swz("v4", vG, "v5")
    a(f"""v_xor_b32 v4, v4, {vL}
          v_and_b32 v4, 3, v4
          s_mul_i32 {t1}, {sKH}, 640
          v_lshl_add_u32 v8, v4, 4, v8
          v_add_u32 v8, {t1}, v8""")
    if OPT["stamps"]:
        a(f"""s_lshl_b32 s{sST+2}, s2, 3
              s_add_u32 s{sST+2}, s{sST+2}, {sW}
              s_lshl_b32 s{sST+2}, s{sST+2}, 8
              s_add_u32 s{sST+2}, s{sST+2}, {WS_DBG}
              v_mov_b32 v0, 0""")
        stamp(31)
    a(f"""s_cmp_lg_u32 {sWH}, 0
          s_cbranch_scc1 L_proQ
          s_setprio 2
          v_mov_b32 v4, 0
          v_lshlrev_b32 v5, 2, {vN}
          v_add_u32 v5, {L_CNT}, v5
          ds_write_b32 v5, v4
          s_mul_i32 {t0}, {sCB}, 80
          s_mul_i32 {t1}, {sW4}, 20
          s_add_u32 {t0}, {t0}, {t1}
          v_add_u32 v9, {t0}, v9
          v_mul_u32_u24 v9, 7680, v9
          s_lshl_b32 {t3}, {t3}, 5
          v_add_u32 v9, {t3}, v9
          v_min_u32 v102, 39, {vL}
          s_mul_i32 {t0}, {sW4}, 320
          v_lshl_add_u32 v102, v102, 3, {t0}""")
    mod_dma(sP4)
    a(f"""s_waitcnt lgkmcnt(0)
          global_load_dword v103, v9, {WM}
          s_load_dword {sTAG}, {WS}, 0
          s_cmp_ge_u32 {sCB}, 4
          s_cbranch_scc1 L_proK
          global_load_dwordx2 v[100:101], v102, {CC}""")
    if OPT.get("mfirst"): mod_dma_issue(False)
    a("s_barrier")
    if not OPT.get("mfirst"): mod_dma_issue(False)
    a("s_branch L_prox")
    a.label("L_proK")
    a("s_barrier\ns_branch L_prox")
    a.label("L_proQ")
    a(f"""s_setprio 1
          s_mul_i32 {t0}, {sBLK}, 10240
          s_mul_i32 {t1}, {sW4}, 2560
          s_add_u32 {t0}, {t0}, {t1}
          v_lshl_add_u32 v9, v9, 7, {t0}
          s_waitcnt lgkmcnt(0)
          global_load_dword v103, v9, {X}
          s_load_dword {sTAG}, {WS}, 0
          s_barrier""")
    a.label("L_prox")
    x_dma()
    a(f"""s_cmp_eq_u32 {sWH}, 0
          s_cbranch_scc1 L_setup
          s_cmp_lt_u32 {sCB}, 4
          s_cbranch_scc1 L_nowkv
          s_bitcmp1_b32 {sCB}, 0
          s_cselect_b64 {T0}, {WV}, {WK}
          v_lshlrev_b32 v10, 4, {vL}
          s_mul_i32 {t0}, {sW4}, 7""")
    for i in range(7):
        a(f"""s_add_u32 {t1}, {t0}, {i}
              s_min_u32 {t1}, {t1}, 24
              s_lshl_b32 {t1}, {t1}, 10
              s_add_u32 m0, {t1}, {L_WKV}
              v_add_u32 v11, {t1}, v10
              global_load_lds_dwordx4 v11, {T0}""")
    a.label("L_nowkv")
    a(f"""s_lshr_b32 {t0}, s2, 3
          s_mul_i32 {t0}, {t0}, 25600
          s_mul_i32 {t1}, {sW4}, 6400
          s_add_u32 {t0}, {t0}, {t1}
          v_min_u32 v10, 49, {vL}
          v_lshl_add_u32 v10, v10, 7, {t0}
          global_load_dword v190, v10, {WQ}
          s_and_b32 {t0}, {sCB}, 3
          s_lshl_b32 {t0}, {t0}, 2
          s_add_u32 {t0}, {t0}, {sW4}
          s_mul_i32 {t0}, {t0}, 384
          s_min_u32 {t0}, {t0}, {KVREC - 384}
          s_mul_i32 {t1}, {sRB}, {KVREC}
          s_add_u32 {t0}, {t0}, {t1}
          s_add_u32 {t0}, {t0}, {WS_KV}
          v_lshl_add_u32 v9, {vL}, 7, {t0}
          s_lshl_b32 {t0}, {sBLK}, 7
          s_add_u32 {t0}, {t0}, {WS_KVF}
          v_mov_b32 v10, {t0}
          v_cmp_gt_u32 vcc, 3, {vL}
          v_cndmask_b32 v9, v10, v9, vcc
          global_load_dword v191, v9, {WS} sc1""")
    a.label("L_setup")
    stamp(0)
    setup()
    a(f"""s_waitcnt lgkmcnt(0)
          s_mul_i32 {sTAG}, {sTAG}, 1664525
          s_add_u32 {sTAG}, {sTAG}, 1013904223
          v_mov_b32 v238, {sTAG}
          s_cmp_lg_u32 {sWH}, 0
          s_cbranch_scc1 L_xwQ
          s_cmp_ge_u32 {sCB}, 4
          s_cbranch_scc1 L_xw0""")
    sil, wr = mod_reads(56, 76)
    a("s_waitcnt vmcnt(15)")
    unpack("v56", "v57", "v100"); unpack("v58", "v59", "v101")
    for i in range(4): a(f"v_mul_f32 v{60+i}, {hex(f2u(-math.log2(math.e)))}, v{56+i}")
    for i in range(4): a(f"v_exp_f32 v{60+i}, v{60+i}")
    for i in range(4): a(f"v_add_f32 v{60+i}, 1.0, v{60+i}")
    for i in range(4): a(f"v_rcp_f32 v{60+i}, v{60+i}")
    for i in range(4): a(f"v_mul_f32 v{60+i}, v{56+i}, v{60+i}")
    a(f"""v_cvt_pk_bf16_f32 v100, v60, v61
          v_cvt_pk_bf16_f32 v101, v62, v63
          v_add_u32 v102, {L_SIL}, v102
          ds_write_b64 v102, v[100:101]
          s_waitcnt lgkmcnt(0)""")
    a(sil)
    a("s_waitcnt vmcnt(10)")
    stamp(20)
    a(wr)
    mod_finish(56, 76, 96, sP4, C_P0, "L_xw0", True, 40)
    stamp(21)
    a("s_waitcnt vmcnt(1)\ns_branch L_ln")
    a.label("L_xwQ")
    a(f"""s_waitcnt vmcnt(9)
          s_cmp_ge_u32 {sCB}, 4
          s_cbranch_scc1 L_ln
          s_waitcnt vmcnt(2)
          s_branch L_ln""")
    a.label("L_xw0")
    a("s_waitcnt vmcnt(0)")

def setup():
    w_dma_patterns(PAT)
    a(f"""v_cmp_eq_u32 {MK_N0}, 0, {vN}
          s_mov_b32 {lo(MK_LO)}, -1
          s_mov_b32 {hi(MK_LO)}, 0
          s_lshl_b32 {sGC}, {sWH}, 2
          s_add_u32 {sGC}, {sGC}, {L_CNT + C_GA}
          s_getreg_b32 {sLOCAL}, hwreg(HW_REG_XCC_ID)
          v_mov_b32 v239, {sLOCAL}
          s_and_b32 {t0}, s2, 7
          s_lshl_b32 {t0}, {t0}, 2
          s_and_b32 {t1}, {sCB}, 3
          s_or_b32 {t0}, {t0}, {t1}
          s_and_b32 {t1}, s2, 0xe0
          s_or_b32 {sFR}, {t0}, {t1}""")
    attn_setup()
    a(f"v_lshrrev_b32 v6, 2, {vN}")
    swz("v4", "v6", "v5")
    a(f"""v_xor_b32 v4, v4, {vG}
          v_lshlrev_b32 v4, 4, v4
          v_lshl_add_u32 v4, {vN}, 6, v4
          s_mul_i32 {t0}, {sW}, 10240
          v_add_u32 {A_XRD}, {t0}, v4
          v_cmp_eq_u32 {OB0}, v6, {vG}
          s_lshl_b32 {t0}, {sW}, 7
          s_add_u32 {t0}, {t0}, {L_LN}
          v_lshl_add_u32 {A_LNW}, {vN}, 3, {t0}
          s_lshl_b32 {t1}, {sKH}, 8
          s_sub_u32 {t0}, {t0}, {t1}
          v_lshl_add_u32 {A_LNR}, {vN}, 3, {t0}
          v_lshl_add_u32 v4, {vG}, 3, v6
          v_mul_u32_u24 v5, 40, v4
          v_and_b32 v4, 3, {vN}
          v_cmp_eq_u32 {OB1}, 1, v4
          v_cmp_eq_u32 {T1}, 2, v4
          v_cmp_eq_u32 {T2}, 3, v4
          v_lshlrev_b32 v4, 3, v4
          s_bitcmp1_b32 {sCB}, 1
          s_cselect_b64 vcc, -1, 0
          v_cndmask_b32 v4, v4, 32, vcc
          s_mul_i32 {t0}, {sKH}, 12800
          s_add_u32 {t0}, {t0}, {L_WKV}
          v_add3_u32 {A_KVW}, v5, v4, {t0}
          v_mul_u32_u24 v8, 40, {vL}
          s_mul_i32 {t0}, {sKH}, 51200
          v_add_u32 v8, {t0}, v8
          s_mul_i32 {t0}, {sKH}, 1280
          s_add_u32 {t0}, {t0}, {L_MODV}
          v_lshl_add_u32 v10, {vG}, 5, {t0}
          s_lshl_b32 {t0}, {sWH}, 10
          s_add_u32 {t0}, {t0}, 2048
          s_mul_i32 {t0}, {t0}, {sTT}
          s_lshl_b32 {t1}, {sWH}, 12
          s_add_u32 {t0}, {t0}, {t1}
          s_lshl_b32 {t1}, {sKH}, 10
          s_add_u32 {t0}, {t0}, {t1}
          s_add_u32 {t0}, {t0}, {L_R2 + 10240}
          v_add_u32 v9, {t0}, {vKA}
          v_lshl_add_u32 v4, {sW}, 6, {vL}
          v_lshrrev_b32 v14, 2, v4
          v_lshlrev_b32 v14, 7, v14
          v_and_b32 v5, 3, v4
          v_lshl_add_u32 v14, v5, 4, v14
          v_add_u32 v14, {WS_MODG}, v14
          v_lshlrev_b32 v15, 4, v4
          v_add_u32 v15, {L_MODV}, v15
          v_mov_b64 v[188:189], 0
          v_mov_b32 v11, 0
          v_mov_b32 v237, 0
          s_cmp_eq_u32 {sWH}, 0
          s_cbranch_scc1 L_setupE""")
    a(f"""v_lshl_add_u32 v7, {sTT}, 4, {vN}
          v_lshrrev_b32 v4, 1, {vG}
          v_and_b32 v5, 1, {vG}
          s_mov_b64 {MK_A}, -1
          s_mov_b64 {MK_B}, 0
          v_mov_b32 v12, 0x3f803f80
          v_mov_b32 v13, 0x3f803f80
          s_bitcmp1_b32 {sCB}, 0
          s_cbranch_scc1 L_kvaV
          s_bitcmp1_b32 {sCB}, 1
          s_cbranch_scc1 L_kvaKr
          s_lshl_b32 {t0}, {sKH}, 10
          v_lshl_add_u32 v11, v4, 9, {t0}
          v_lshl_add_u32 v11, v7, 4, v11
          v_lshl_add_u32 v11, v5, 3, v11
          s_branch L_kvaE""")
    a.label("L_kvaKr")
    a(f"""s_lshl_b32 {t0}, {sKH}, 3
          s_add_u32 {t0}, {t0}, 2048
          v_lshl_add_u32 v11, v7, 4, {t0}
          v_lshlrev_b32 v4, 3, {vN}
          v_add_u32 v4, 2560, v4
          s_mov_b64 {MK_B}, 0x30000
          s_mov_b64 {MK_A}, 0x3ffff
          v_cndmask_b32 v11, v11, v4, {MK_B}
          v_mov_b32 v13, 0x3f80
          s_branch L_kvaE""")
    a.label("L_kvaV")
    a(f"""s_mul_i32 {t0}, {sW4}, 672
          s_add_u32 {t0}, {t0}, 2688
          v_mul_u32_u24 v11, 336, v4
          v_lshl_add_u32 v11, {vN}, 4, v11
          v_lshl_add_u32 v11, v5, 3, v11
          v_add_u32 v11, {t0}, v11
          s_bitcmp1_b32 {sCB}, 1
          s_cbranch_scc0 L_kvaE
          v_add_u32 v11, 256, v11
          v_cmp_ge_u32 {MK_A}, 4, {vN}
          v_cmp_eq_u32 {MK_B}, 4, {vN}""")
    a.label("L_kvaE")
    a(f"""s_mul_i32 {t0}, {sRB}, {KVREC}
          s_add_u32 {t0}, {t0}, {WS_KV}
          v_add_u32 v11, {t0}, v11
          s_lshl_b32 {t0}, {sBLK}, 7
          s_add_u32 {t0}, {t0}, {WS_KVF}
          v_lshl_add_u32 v237, {vL}, 3, {t0}
          s_lshl_b32 {t0}, {sRB}, 2
          s_add_u32 {t0}, {t0}, {sW4}
          s_mul_i32 {t0}, {t0}, 20480
          s_mul_i32 {t1}, {sCB}, 2560
          s_add_u32 {t0}, {t0}, {t1}
          s_add_u32 {t0}, {t0}, {WS_OX}
          v_add_u32 {A_PO1}, {t0}, {vKA}
          s_lshl_b32 {t0}, {sRB}, 1
          s_add_u32 {t0}, {t0}, {sTT}
          s_mul_i32 {t1}, {t0}, 1280
          s_mul_i32 {t2}, {sCB}, 160
          s_add_u32 {t1}, {t1}, {t2}
          s_lshl_b32 {t2}, {t1}, 1
          s_add_u32 {t1}, {t1}, {WS_H2}
          s_add_u32 {t2}, {t2}, {WS_BASE - 160}
          v_min_u32 v4, 29, {vL}
          v_mov_b32 v5, {t1}
          v_mov_b32 v6, {t2}
          v_cmp_gt_u32 vcc, 10, v4
          s_lshl_b32 {t0}, {sP8}, {ASH}
          s_add_u32 {t0}, {t0}, {WS_ACT}
          v_cndmask_b32 v5, v6, v5, vcc
          v_lshl_add_u32 v5, v4, 4, v5
          v_mov_b32 v6, {t0}
          s_cmp_lg_u32 {sKH}, 0
          s_cselect_b64 vcc, -1, 0
          v_cndmask_b32 {A_PO2}, v5, v6, vcc
          v_mov_b32 v192, -1
          v_mov_b32 v193, -1
          v_mov_b32 v194, -1
          v_mov_b32 v195, -1""")
    a.label("L_setupE")
    for i in range(4): a(f"v_mov_b32 v{136+i}, 0x3f803f80")

def layernorm1():
    a.label("L_ln")
    stamp(1)
    for s in range(10): a(f"ds_read_b128 {vr(XR+4*s,4)}, {A_XRD} offset:{L_W + 1024*s}")
    a(f"s_lshl_b32 {t3}, {sW}, 1")
    w_unit_base(WQ, t3, T0, t2)
    for s in range(10):
        c1, c2 = ("0", "0") if s == 0 else ("v[140:143]", "v[144:147]")
        a(f"s_waitcnt lgkmcnt({9-s})")
        a(f"v_mfma_f32_16x16x32_bf16 v[140:143], v[136:139], {vr(XR+4*s,4)}, {c1}")
        a(f"v_mfma_f32_16x16x32_bf16 v[144:147], {vr(XR+4*s,4)}, {vr(XR+4*s,4)}, {c2}")
        unpack(vr(NR+8*s), vr(NR+8*s+1), vr(XR+4*s))
        if s >= 5: a(w_piece(T0, t2, s - 5))
    for s in range(3): unpack(vr(NR+8*s+2), vr(NR+8*s+3), vr(XR+4*s+1))
    base_add(T0, T0, 40960)
    a(f"""v_cndmask_b32 v141, v144, v145, {OB1}
          v_cndmask_b32 v141, v141, v146, {T1}
          v_cndmask_b32 v141, v141, v147, {T2}
          s_mov_b64 exec, {OB0}
          ds_write_b64 {A_LNW}, v[140:141]
          s_mov_b64 exec, -1""")
    for s in range(3, 10): unpack(vr(NR+8*s+2), vr(NR+8*s+3), vr(XR+4*s+1))
    a(f"""s_waitcnt vmcnt(7) lgkmcnt(0)
          s_barrier
          ds_read_b64 v[4:5], {A_LNR}
          ds_read_b64 v[6:7], {A_LNR} offset:256""")
    for s in range(10):
        unpack(vr(NR+8*s+4), vr(NR+8*s+5), vr(XR+4*s+2)); unpack(vr(NR+8*s+6), vr(NR+8*s+7), vr(XR+4*s+3))
        if s % 2: a(w_piece(T0, t2, 5 + s // 2))
    a(f"""s_waitcnt lgkmcnt(0)
          v_pk_add_f32 v[4:5], v[4:5], v[6:7]
          v_mul_f32 v4, {hex(f2u(-1/640))}, v4
          v_mul_f32 v5, {hex(f2u(1/640))}, v5
          v_fma_f32 v5, -v4, v4, v5
          v_max_f32 v5, 0, v5
          v_add_f32 v5, {hex(f2u(1e-5))}, v5
          v_rsq_f32 v6, v5
          s_add_u32 {t3}, {sW4}, 16
          v_mul_f32 v4, v4, v6""")
    w_unit_base(WQ, t3, T0, t2)
    a(f"s_cmp_eq_u32 {sWH}, 0\ns_cbranch_scc1 L_nrmA")
    for grp in "BA":
        if grp == "A": a.label("L_nrmA")
        for s in range(10):
            for j in range(2): a(f"ds_read_b64_tr_b16 {vr(KVW+4*s+2*j,2)}, {A_KVW} offset:{s*1280 + j*160}")
            for i in range(4):
                r = NR + 8*s + 2*i
                a(f"v_pk_fma_f32 {vr(r,2)}, {vr(r,2)}, v[6:7], v[4:5] op_sel_hi:[1,0,0]")
            if grp == "B":
                if s < 5: a(w_piece(T0, t2, s))
                elif s < 8: a(f"global_store_dwordx4 {A_PO1}, v[192:195], {WS} offset:{(0, 1024, 1536)[s-5]} sc1")
                elif s == 8: a(f"global_store_dwordx4 {A_PO2}, v[192:195], {WS} sc1")
        if grp == "B": a("s_branch L_nrmE")
    a.label("L_nrmE")

QAC, QW = 96, (56, 76, 116)
def wq_read(k):
    s, t = divmod(k, 5)
    return "\n".join(f"ds_read_b64_tr_b16 {vr(QW[s % 3]+4*t+2*j,2)}, v8 offset:{s*5120 + j*2560 + 8*t}" for j in range(2))
def as_reads(s):
    r = (184, 200, 216)[s % 3]
    return "\n".join([f"ds_read_b128 {vr(r,4)}, v10 offset:{2560 + s*128}", f"ds_read_b128 {vr(r+8,4)}, v10 offset:{s*128}",
                      f"ds_read_b128 {vr(r+4,4)}, v10 offset:{2560 + s*128 + 16}", f"ds_read_b128 {vr(r+12,4)}, v10 offset:{s*128 + 16}"])
def group_sync(va, vb):
    a(f"s_add_u32 {sGEN}, {sGEN}, 4")
    lds_signal(sGC, va, vb)
    return lambda: lds_wait(sGEN, va, vb)

QD = 7
def qkv():
    stamp(2)
    a(f"s_cmp_ge_u32 {sW}, 5\ns_cbranch_scc1 L_modok")
    poll(f"global_load_dwordx4 v[16:19], v14, {WS} sc1",
         f"v_cmp_ne_u32 vcc, {sTAG}, v17\nv_cmp_ne_u32 {T0}, {sTAG}, v19\ns_or_b64 vcc, vcc, {T0}")
    unpack("v20", "v21", "v16"); unpack("v22", "v23", "v18")
    a("ds_write_b128 v15, v[20:23]")
    a.label("L_modok")
    a("s_waitcnt vmcnt(0) lgkmcnt(0)\ns_barrier")
    stamp(3)
    a(as_reads(0)); a(as_reads(1))
    a(f"""s_cmp_lg_u32 {sW}, 7
          s_cbranch_scc1 L_noxf
          s_lshl_b32 {t0}, {sBLK}, 7
          s_add_u32 {t0}, {t0}, {WS_XF}
          v_lshl_add_u32 v4, {vL}, 3, {t0}
          s_mov_b64 exec, 0xffff
          global_store_dwordx2 v4, v[238:239], {WS} sc1
          s_mov_b64 exec, -1""")
    a.label("L_noxf")
    a(f"""s_add_u32 {sM2}, {sP4}, 128
          s_cmp_lt_u32 {sCB}, 4
          s_cselect_b32 {sCG}, {sWH}, 0
          s_cmp_lt_u32 {sM2}, 240
          s_cselect_b32 {sCG}, {sCG}, 0
          s_cmp_eq_u32 {sCG}, 0
          s_cbranch_scc1 L_nom2
          v_mov_b32 v14, v10""")
    mod_dma(sM2)
    mod_dma_issue()
    a("v_mov_b32 v10, v14")
    a.label("L_nom2")
    a(f"s_bitcmp1_b32 {sCB}, 0\ns_cbranch_scc1 L_hV")
    for typ in "KV":
        if typ == "V": a.label("L_hV")
        for s in range(10):
            r, h = (184, 200, 216)[s % 3], XR + 4 * s
            if s < 8: a(as_reads(s + 2))
            a(f"s_waitcnt lgkmcnt({8 if s < 8 else (4 if s == 8 else 0)})")
            for i in range(4):
                a(f"v_pk_fma_f32 {vr(NR+8*s+2*i,2)}, {vr(NR+8*s+2*i,2)}, {vr(r+2*i,2)}, {vr(r+8+2*i,2)}")
                if i == 1 and s > 0:
                    A, B = vr(KVW+4*(s-1), 4), vr(h-4, 4)
                    if typ == "V": A, B = B, A
                    a(f"v_mfma_f32_16x16x32_bf16 {vr(KVA,4)}, {A}, {B}, {'0' if s == 1 else vr(KVA,4)}")
            for i in range(4):
                a(f"v_cvt_pk_bf16_f32 {vr(h+i)}, {vr(NR+8*s+2*i)}, {vr(NR+8*s+2*i+1)}")
        A, B = vr(KVW+36, 4), vr(XR+36, 4)
        if typ == "V": A, B = B, A
        a(f"v_mfma_f32_16x16x32_bf16 {vr(KVA,4)}, {A}, {B}, {vr(KVA,4)}")
        if typ == "K": a("s_branch L_hdone")
    a.label("L_hdone")
    stamp(4)
    a(f"""s_mul_i32 {t2}, {sWH}, 10240
          s_add_u32 {t2}, {t2}, {L_R2}
          s_lshl_b32 {t0}, {sTT}, 11
          s_mul_i32 {t1}, {sTT}, 3072
          s_add_u32 {t1}, {t1}, 4096
          s_cmp_eq_u32 {sKH}, 0
          s_cselect_b32 {t3}, {t0}, {t1}
          s_cselect_b32 {t1}, {t1}, {t0}
          ds_write_b128 v9, {vr(KVA,4)}
          s_add_u32 {t3}, {t3}, {t2}
          s_add_u32 {t1}, {t1}, {t2}
          v_add_u32 v4, {t3}, {vKA}
          v_add_u32 v5, {t1}, {vKA}
          s_cmp_lg_u32 {sWH}, 0
          s_cbranch_scc1 L_kvB""")
    for k in range(QD): a(wq_read(k))
    a(f"s_waitcnt lgkmcnt({2*QD})\ns_barrier\ns_branch L_kvE")
    a.label("L_kvB")
    a(f"""s_waitcnt lgkmcnt(0)
          s_barrier
          s_cmp_lt_u32 {sCB}, 4
          s_cbranch_scc1 L_kvB2
          s_setprio 3
          ds_read_b128 v[136:139], v4
          ds_read_b128 v[140:143], v4 offset:1024
          s_waitcnt lgkmcnt(0)
          v_pk_add_f32 v[136:137], v[136:137], v[140:141]
          v_pk_add_f32 v[138:139], v[138:139], v[142:143]
          v_cvt_pk_bf16_f32 v14, v136, v137
          v_cvt_pk_bf16_f32 v15, v138, v139
          v_cndmask_b32 v14, v14, v12, {MK_B}
          v_cndmask_b32 v15, v15, v13, {MK_B}
          s_mov_b64 exec, {MK_A}
          global_store_dwordx2 v11, v[14:15], {WS} sc1
          s_mov_b64 exec, 1
          v_mov_b32 v12, {L_CNT + C_KVS}
          v_mov_b32 v13, 1""")
    stamp(37)
    a(f"""s_waitcnt vmcnt(0)
          ds_add_rtn_u32 v13, v12, v13
          s_waitcnt lgkmcnt(0)
          v_readfirstlane_b32 {t0}, v13
          s_mov_b64 exec, 0xffff
          s_cmp_lg_u32 {t0}, 3
          s_cbranch_scc1 L_nokf
          global_store_dwordx2 v237, v[238:239], {WS} sc1""")
    a.label("L_nokf")
    a("s_mov_b64 exec, -1\ns_setprio 1")
    stamp(5)
    a.label("L_kvB2")
    for k in range(QD): a(wq_read(k))
    a.label("L_kvE")
    stamp(26)
    for k in range(50):
        s, t = divmod(k, 5)
        if k % 2 == 0: a(f"s_waitcnt lgkmcnt({2 * min(QD - 2, 48 - k)})")
        a(f"v_mfma_f32_16x16x32_bf16 {vr(QAC+4*t,4)}, {vr(QW[s % 3]+4*t,4)}, {vr(XR+4*s,4)}, {'0' if s == 0 else vr(QAC+4*t,4)}")
        if k + QD < 50: a(wq_read(k + QD))
    stamp(27)
    a(f"""s_mul_i32 {sNXT}, {sWH}, {L_Q[0] - L_Q[1]}
          s_sub_u32 {sNXT}, {L_Q[0]}, {sNXT}
          v_mul_u32_u24 v6, 1280, {vG}
          v_add_u32 v6, {sNXT}, v6
          v_lshl_add_u32 v7, {sTT}, 4, {vN}
          v_lshl_add_u32 v9, v7, 4, v6
          v_lshl_add_u32 v10, v7, 3, v6
          s_mov_b32 {lo(T1)}, {hex(f2u(math.log2(math.e) / math.sqrt(20)))}
          s_cmp_lg_u32 {sKH}, 0
          s_cbranch_scc1 L_ex1""")
    for kh, (keep, send) in enumerate((((0, 1, 4), (2, 3)), ((2, 3), (0, 1, 4)))):
        if kh: a.label("L_ex1")
        for i, t in enumerate(send): a(f"ds_write_b128 v4, {vr(QAC+4*t,4)} offset:{1024*i}")
        wait = group_sync("v11", "v12")
        attn_zero()
        wait()
        for i in range(len(keep)): a(f"ds_read_b128 {vr(116+4*i,4)}, v5 offset:{1024*i}")
        for i, t in enumerate(keep):
            r = QAC + 4 * t
            a(f"""s_waitcnt lgkmcnt({len(keep)-1-i})
                  v_pk_add_f32 {vr(r,2)}, {vr(r,2)}, {vr(116+4*i,2)}
                  v_pk_add_f32 {vr(r+2,2)}, {vr(r+2,2)}, {vr(118+4*i,2)}
                  v_pk_mul_f32 {vr(r,2)}, {vr(r,2)}, {T1} op_sel_hi:[1,0]
                  v_pk_mul_f32 {vr(r+2,2)}, {vr(r+2,2)}, {T1} op_sel_hi:[1,0]
                  v_cvt_pk_bf16_f32 {vr(128+2*i)}, {vr(r)}, {vr(r+1)}
                  v_cvt_pk_bf16_f32 {vr(129+2*i)}, {vr(r+2)}, {vr(r+3)}""")
        a(f"ds_write_b128 v9, v[128:131] offset:{512*kh}")
        if not kh: a(f"ds_write_b64 v10, v[132:133] offset:1024\ns_branch L_exd")
    a.label("L_exd")

QA, QB, KVB, SB, OA = 16, 32, 40, 96, 160
vKA, vKB, vV, vIDX, vALO, vOX, vOX2, vAXL = (f"v{i}" for i in range(240, 248))
VSEND, VLW = 248, 252
def kvreg(p):
    b = KVB + 28 * p
    return dict(KA=(b, b + 4), KB=b + 8, V=((b + 12, b + 16), (b + 20, b + 24)))
def ld_ka(p, T, so): return f"buffer_load_dwordx4 {vr(kvreg(p)['KA'][T],4)}, {vKA}, {SRD}, {so} offen offset:{1024*T} sc1"
def ld_kb(p, so): return f"buffer_load_dwordx4 {vr(kvreg(p)['KB'],4)}, {vKB}, {SRD}, {so} offen sc1"
def ld_v(p, T, j, so): return f"buffer_load_dwordx4 {vr(kvreg(p)['V'][T][j],4)}, {vV}, {SRD}, {so} offen offset:{1344*T + 672*j} sc1"
def q8(p, T, j): return f"v_mfma_f32_32x32x8bf16_1k {vr(SB+16*j,16)}, {vr(kvreg(p)['KB']+2*T,2)}, {vr(QB+2*j,2)}, 0"
def q16(p, T, j): return f"v_mfma_f32_32x32x16_bf16 {vr(SB+16*j,16)}, {vr(kvreg(p)['KA'][T],4)}, {vr(QA+4*j,4)}, {vr(SB+16*j,16)}"
def pv(p, T, j, h): return f"v_smfmac_f32_32x32x32_bf16 {vr(OA+16*j,16)}, {vr(kvreg(p)['V'][T][h],4)}, {vr(SB+16*j+8*h,8)}, {vIDX}"

def tile(p, s, pre=(), mid=(), qk=True):
    T, j = s // 4, s % 4
    X_ = SB + 16 * j
    e = lambda i: f"v_exp_f32 {vr(X_+i)}, {vr(X_+i)}"
    pp, pT, pj = (p, (s - 1) // 4, (s - 1) % 4) if s else (1 - p, 1, 3)
    np_, nT, nj = (p, (s + 2) // 4, (s + 2) % 4) if s < 6 else (1 - p, 0, s - 6)
    a("\n".join([e(0), e(1), pv(pp, pT, pj, 1)] + list(pre) + [e(2), e(3), e(4), e(5), q8(np_, nT, nj) if qk else "", e(6), e(7), e(8), e(9)] +
                list(mid) + [pv(p, T, j, 0), e(10), e(11), e(12), e(13), q16(np_, nT, nj) if qk else "", e(14), e(15)]))

def attn_zero():
    z = kvreg(1)['V'][1][1]
    for i in range(4): a(f"v_mov_b32 {vr(z+i)}, 0")
    for d in (SB + 48, OA, OA + 16, OA + 32, OA + 48):
        a(f"v_mfma_f32_32x32x8bf16_1k {vr(d,16)}, {vr(z,2)}, {vr(z,2)}, 0")

def attn_setup():
    a(f"""v_lshlrev_b32 {vKA}, 4, {vL}
          v_min_u32 {vKB}, 32, {vL}
          v_lshlrev_b32 {vKB}, 4, {vKB}
          v_add_u32 {vKB}, 2048, {vKB}
          v_lshrrev_b32 v4, 5, {vL}
          v_and_b32 v5, 31, {vL}
          v_mul_u32_u24 {vV}, 336, v4
          v_lshl_add_u32 {vV}, v5, 4, {vV}
          v_add_u32 {vV}, 2688, {vV}
          v_mov_b32 v6, 0x40000000
          v_cmp_gt_u32 vcc, 21, v5
          v_mov_b32 {vIDX}, 0xdddddddd
          s_add_u32 s48, {lo(WS)}, {WS_KV}
          v_cndmask_b32 {vV}, v6, {vV}, vcc
          s_addc_u32 s49, {hi(WS)}, 0
          s_mov_b32 s50, {32*KVREC}
          s_mov_b32 s51, 0x20000
          s_mov_b32 {sPASS}, 0
          s_mov_b32 {sGEN}, 0
          v_add_u32 {vAXL}, {L_AL}, {vKA}
          s_lshl_b32 {t0}, {sW4}, 2
          s_add_u32 {t0}, {t0}, {L_AL + 2048}
          v_lshl_add_u32 v14, v5, 4, {t0}
          v_lshlrev_b32 v6, 11, v4
          v_sub_u32 v14, v14, v6
          s_lshl_b32 {t0}, {sW4}, 9
          s_add_u32 {t0}, {t0}, {L_AL}
          v_lshl_add_u32 {vALO}, v5, 4, {t0}
          s_lshl_b32 {t0}, {sRB}, 1
          s_add_u32 {t0}, {t0}, {sWH}
          s_mul_i32 {t1}, {t0}, 40960
          s_mul_i32 {t2}, {sCB}, 2560
          s_add_u32 {t1}, {t1}, {t2}
          s_lshr_b32 {t2}, {sW4}, 1
          s_mul_i32 {t2}, {t2}, 1280
          s_add_u32 {t1}, {t1}, {t2}
          s_add_u32 {t1}, {t1}, {WS_OX}
          v_and_b32 v6, 1, {vG}
          v_mul_u32_u24 v6, 20480, v6
          v_lshl_add_u32 v6, {vN}, 4, v6
          s_and_b32 {t2}, {sW4}, 1
          s_lshl_b32 {t3}, {t2}, 3
          s_add_u32 {t3}, {t3}, {t1}
          v_add_u32 {vOX2}, {t3}, v6
          s_mul_i32 {t2}, {t2}, 768
          s_add_u32 {t1}, {t1}, {t2}
          v_lshl_add_u32 v6, v4, 8, v6
          v_add_u32 {vOX}, {t1}, v6""")
    for j in range(4):
        a(f"""s_add_u32 {t0}, {sW4}, {j + 1}
              s_and_b32 {t0}, {t0}, 3
              s_mul_i32 {t1}, {t0}, 9216
              s_add_u32 {t1}, {t1}, {L_AX}
              v_add_u32 {vr(VSEND+j)}, {t1}, {vKA}
              s_lshl_b32 {t1}, {t0}, 9
              v_add_u32 {vr(VLW+j)}, {t1}, v14""")

def kv_first_loads():
    a(f"""s_mul_i32 {sSOFF}, {sW4}, {8*KVREC}
          s_add_u32 {sNXT}, {sSOFF}, {KVREC}""")
    a("\n".join([ld_ka(0, 0, sSOFF), ld_kb(0, sSOFF), ld_v(0, 0, 0, sSOFF), ld_v(0, 0, 1, sSOFF), ld_ka(0, 1, sSOFF),
                 ld_v(0, 1, 0, sSOFF), ld_v(0, 1, 1, sSOFF), ld_ka(1, 0, sNXT), ld_v(1, 0, 0, sNXT), ld_v(1, 0, 1, sNXT), ld_ka(1, 1, sNXT), ld_kb(1, sNXT)]))

def kv_poll_addr():
    a(f"""s_lshl_b32 {t0}, {sRB}, 10
          s_add_u32 {t0}, {t0}, {WS_XF}
          v_and_b32 v7, 7, {vL}
          v_lshl_add_u32 v7, v7, 7, {t0}
          v_lshrrev_b32 v6, 2, {vL}
          v_and_b32 v13, 3, {vL}
          v_lshl_add_u32 v6, v6, 3, v13
          s_lshl_b32 {t0}, {sW4}, 13
          s_add_u32 {t0}, {t0}, {WS_KVF + 512}
          v_lshl_add_u32 v6, v6, 7, {t0}
          v_cndmask_b32 v6, v7, v6, {MK_LO}""")
def poll_lanes(load, tagreg, sleep=0):
    L, E = uid("L_pm"), uid("L_pme")
    a(f"s_mov_b32 {sSPIN}, {OPT['spin']}")
    a.label(L)
    a(f"""{load}
          s_waitcnt vmcnt(0)
          v_cmp_ne_u32 vcc, {sTAG}, {tagreg}
          s_cbranch_vccz {E}
          s_mov_b64 exec, vcc""")
    if sleep: a(f"s_sleep {sleep}")
    a(f"s_sub_u32 {sSPIN}, {sSPIN}, 1\ns_cbranch_scc0 {L}")
    a.label(E)
    a("s_mov_b64 exec, -1")
def kv_ready(grp):
    if grp == "A":
        for _ in range(OPT.get("kvdelay", 0)): a("s_sleep 4")
        poll_lanes(f"global_load_dwordx2 v[140:141], v6, {WS} sc1", "v140", OPT.get("kvsleep", 0))
        stamp(28)
        kv_first_loads()
        a(f"""v_cmp_ne_u32 vcc, {sLOCAL}, v141
              s_cmp_eq_u32 vcc_hi, 0
              s_cselect_b32 {sLOCAL}, {0 if OPT.get("nolocal") else 1}, 0
              s_lshl_b32 {t0}, {sLOCAL}, 8
              s_add_u32 {t0}, {t0}, 1
              v_mov_b32 v142, {L_CNT + C_KVR}
              v_mov_b32 v143, {t0}
              s_mov_b64 exec, 1
              ds_add_u32 v142, v143
              s_mov_b64 exec, -1""")
    else:
        L = uid("L_kr")
        a(f"v_mov_b32 v142, {L_CNT + C_KVR}\ns_mov_b32 {sSPIN}, {OPT['spin'] * 8}")
        a.label(L)
        a(f"""ds_read_b32 v143, v142
              s_waitcnt lgkmcnt(0)
              v_readfirstlane_b32 {t5}, v143
              s_bitcmp1_b32 {t5}, 2
              s_cbranch_scc1 {L}_e
              s_sleep 1
              s_sub_u32 {sSPIN}, {sSPIN}, 1
              s_cbranch_scc0 {L}""")
        a.label(L + "_e")
        a(f"s_lshr_b32 {sLOCAL}, {t5}, 10")
        stamp(28)
        kv_first_loads()

def touch_addr(grp):
    a(f"""s_lshr_b32 {t0}, s2, 3
          s_lshl_b32 {t0}, {t0}, 2
          s_add_u32 {t0}, {t0}, {sW4}
          s_mov_b64 {OB0}, {WG}
          s_mov_b64 {OB1}, {WU}""")
    if grp == "B":
        a(f"""s_mul_i32 {t1}, {t0}, 6400
              v_min_u32 v8, 49, {vL}
              v_lshl_add_u32 v8, v8, 7, {t1}
              v_min_u32 v9, 9, {vL}
              v_lshlrev_b32 v9, 7, v9
              v_mov_b32 v10, 0
              v_mov_b32 v11, 0
              v_mov_b32 v12, 0""")
        if OPT.get("notouch") == 2: a("v_mov_b32 v8, 0\nv_mov_b32 v9, 0")
        return
    a(f"""s_and_b32 {t1}, s2, 7
          s_sub_u32 {t2}, {t1}, 3
          s_add_u32 {t3}, {t1}, 5
          s_cmp_lt_u32 {t1}, 3
          s_cselect_b32 {t2}, {t3}, {t2}
          s_cmp_gt_u32 {t1}, 4
          s_cselect_b32 {t3}, {t2}, {t3}
          s_sub_u32 {t3}, {t3}, {t2}
          s_lshl_b32 {t2}, {t2}, 7
          s_lshl_b32 {t3}, {t3}, 7
          s_mul_i32 {t0}, {t0}, 27
          v_min_u32 v12, 26, {vL}
          v_add_u32 v12, {t0}, v12
          v_and_b32 v5, 1, v12
          v_lshrrev_b32 v12, 1, v12
          v_mul_u32_u24 v12, 1280, v12
          v_mad_u32_u24 v12, v5, {t3}, v12
          v_add_u32 v12, {t2}, v12
          s_mul_i32 {t0}, {sCB}, 80
          s_mul_i32 {t1}, {sW4}, 20
          s_add_u32 {t0}, {t0}, {t1}
          v_min_u32 v10, 19, {vL}
          v_add_u32 v10, {t0}, v10
          v_mul_u32_u24 v10, 3456, v10
          s_lshl_b32 {t0}, {sP8}, 4
          v_add_u32 v10, {t0}, v10
          s_cmp_lt_u32 {sP8}, 216
          s_cselect_b64 {T1}, -1, 0
          v_cndmask_b32 v10, 0, v10, {T1}
          v_mov_b32 v11, v10""")
    if OPT.get("notouch"): a("v_mov_b32 v10, 0\nv_mov_b32 v11, 0\nv_mov_b32 v12, 0")

def attention():
    wait = group_sync("v134", "v135")
    kv_poll_addr()
    for j in range(4): a(f"v_mov_b64 {vr(QB+2*j,2)}, 0")
    a(f"""v_add_u32 v4, {sNXT}, {vKA}
          v_lshl_add_u32 v5, {vL}, 3, {sNXT}""")
    for j in range(4):
        a(f"""s_add_u32 {t0}, {sW4}, {j + 1}
              s_and_b32 {t0}, {t0}, 3
              s_mul_i32 {t1}, {t0}, 1280
              v_add_u32 {vr(8+j)}, {t1}, v4
              v_add_u32 {vr(12+j)}, {t1}, v5""")
    wait()
    for j in range(4): a(f"ds_read_b128 {vr(QA+4*j,4)}, {vr(8+j)}")
    a(f"s_mov_b64 exec, {MK_LO}")
    for j in range(4): a(f"ds_read_b64 {vr(QB+2*j,2)}, {vr(12+j)} offset:1024")
    a(f"""s_mov_b64 exec, -1
          s_cmp_lg_u32 {sWH}, 0
          s_cbranch_scc1 L_goB""")
    touch_addr("A")
    kv_ready("A")
    a("s_branch L_go")
    a.label("L_goB")
    a("s_setprio 3")
    touch_addr("B")
    kv_ready("B")
    a(f"global_load_dword v228, v8, {WO}\nglobal_load_dword v229, v9, {WR}")
    a(f"s_cmp_eq_u32 {sCG}, 0\ns_cbranch_scc1 L_nom3")
    sil, wr = mod_reads(96, 116)
    a(sil); a("s_waitcnt vmcnt(14)"); a(wr)
    a("s_waitcnt lgkmcnt(0)")
    mod_finish(96, 116, 136, sM2, C_P1, "L_nom3", False, 160)
    a.label("L_nom3")
    a(f"s_setprio 1\ns_waitcnt vmcnt(9) lgkmcnt(0)")
    a("s_branch L_go2")
    a.label("L_attn")
    kv_first_loads()
    a.label("L_go")
    a("s_waitcnt vmcnt(7) lgkmcnt(0)")
    a.label("L_go2")
    stamp(6)
    if OPT.get("alone"): a(f"s_cmp_lg_u32 {sWH}, 0\ns_cbranch_scc1 L_end")
    a("\n".join([q8(0, 0, 0), q16(0, 0, 0), q8(0, 0, 1), q16(0, 0, 1)]))
    a(f"""s_mov_b32 {sLOOP}, 0
          s_mov_b32 {t1}, {sNXT}
          s_add_u32 {t2}, {t1}, {KVREC}""")
    lds_signal(L_CNT + C_BRD, "v4", "v5")
    a("s_nop 0")
    a(".p2align 6")
    a.label("L_loop")
    LP = OPT.get("lp", 0)
    for p in range(2):
        for s in range(8):
            pre, mid = [], []
            touch = [f"global_load_dword v230, v10, {OB0}"] if p == 0 else []
            rot = ["v_mov_b32 v10, v11", "v_mov_b32 v11, v12", f"s_mov_b64 {OB0}, {OB1}", f"s_mov_b64 {OB1}, {WD}"] if p == 0 else []
            adv = [f"s_mov_b32 {t1}, {t2}", f"s_add_u32 {t2}, {t2}, {KVREC}"]
            if p == 1: adv += [f"s_add_u32 {sLOOP}, {sLOOP}, 1", f"s_cmp_lt_u32 {sLOOP}, 3"]
            if LP == 0:
                if s == 1: pre = [ld_v(1 - p, 1, 0, t1), ld_v(1 - p, 1, 1, t1)]
                if s == 2: pre = [ld_ka(p, 0, t2)]
                if s == 4: mid = [f"s_waitcnt vmcnt({8 + p})"]
                if s == 5: pre = [ld_v(p, 0, 0, t2), ld_v(p, 0, 1, t2)]
                if s == 6: pre = [f"s_waitcnt vmcnt({5 + p})", ld_ka(p, 1, t2), ld_kb(p, t2)] + touch; mid = rot
                if s == 7: pre = adv
            if LP == 1:
                if s == 1: pre = [ld_v(1 - p, 1, 0, t1), ld_v(1 - p, 1, 1, t1)]
                if s == 4: mid = [f"s_waitcnt vmcnt({7 + p})"]
                if s == 6: pre = [f"s_waitcnt vmcnt({2 + p})", ld_ka(p, 0, t2), ld_v(p, 0, 0, t2), ld_v(p, 0, 1, t2), ld_ka(p, 1, t2), ld_kb(p, t2)] + touch + adv + rot
            if LP == 9:
                if s == 4: mid = ["s_waitcnt vmcnt(0)"]
                if s == 7: pre = adv
            if LP == 8:
                if s == 4: mid = ["s_waitcnt vmcnt(0)"]
                if s == 6: pre = [ld_v(1 - p, 1, 0, t1), ld_v(1 - p, 1, 1, t1), ld_ka(p, 0, t2), ld_v(p, 0, 0, t2), ld_v(p, 0, 1, t2), ld_ka(p, 1, t2), ld_kb(p, t2)] + adv
            if LP == 7:
                one = {0: ld_v(1 - p, 1, 0, t1), 1: ld_v(1 - p, 1, 1, t1), 2: ld_ka(p, 0, t2), 4: ld_v(p, 0, 0, t2), 5: ld_v(p, 0, 1, t2), 6: ld_kb(p, t2), 7: ld_ka(p, 1, t2)}
                if s in one: pre = [one[s]]
                if s == 4: mid = ["s_waitcnt vmcnt(6)"]
                if s == 6: pre = ["s_waitcnt vmcnt(5)"] + pre
                if s == 7: pre += adv
            tile(p, s, pre, mid)
    a("s_cbranch_scc1 L_loop")
    for s in range(6):
        pre = [ld_v(1, 1, 0, t1), ld_v(1, 1, 1, t1)] if s == 1 else []
        if s == 3:
            pre = [f"s_cmp_eq_u32 {sWH}, 0", f"s_cselect_b32 {t0}, {L_CNT + C_BRD}, {t3}", f"s_cselect_b32 {t3}, 8, 4", f"v_mov_b32 v224, {t0}", "ds_read_b32 v225, v224"]
        if s == 2: pre = [f"s_mov_b32 {t3}, {L_CNT + C_ADONE}"]
        tile(0, s, pre, ["s_waitcnt vmcnt(7)"] if s == 4 else [])
    def sends(j):
        out = [f"ds_write_b128 {vr(VSEND+j)}, {vr(OA+16*j+4*r,4)} offset:{3072*j + 1024*r}" for r in range(3)] if j < 3 else []
        return out + [f"ds_write_b32 {vr(VLW+j)}, {vr(OA+16*j+8)}"]
    a(f"""s_waitcnt vmcnt(0) lgkmcnt(0)
          v_readfirstlane_b32 {t5}, v225
          s_cmp_ge_u32 {t5}, {t3}
          s_cbranch_scc1 L_free""")
    if not OPT.get("diag"): lds_wait(t3, "v224", "v225", sleep=2)
    a.label("L_free")
    a(f"""s_add_u32 {sGEN}, {sGEN}, 4
          v_mov_b32 v226, {sGC}
          v_mov_b32 v227, 1
          s_or_b32 {t0}, {sWH}, {sPASS}
          s_cmp_lg_u32 {t0}, 0
          s_cbranch_scc1 L_lastB""")
    if OPT.get("diag") == 1: a("s_branch L_lastB")
    a(f"""s_mul_i32 {t0}, {sW4}, {5*40960}
          s_mul_i32 {t1}, {sCB}, 160
          s_add_u32 {t0}, {t0}, {t1}
          s_add_u32 {lo(T0)}, {lo(WO)}, {t0}
          s_addc_u32 {hi(T0)}, {hi(WO)}, 0
          s_mul_i32 {t2}, {sW4}, 25600""")
    for var in "AB":
        if var == "B": a.label("L_lastB")
        k = 0
        for p, s in [(0, 6), (0, 7)] + [(1, s) for s in range(8)]:
            dma = [[], [], []]
            if var == "A":
                for slot in range(3 if (s % 2 == 0) else 2):
                    dma[slot] = [f"s_add_u32 m0, {t2}, {L_W + 1024*k}", "s_nop 0", f"global_load_lds_dwordx4 {vr(PAT + k%5)}, {T0}"]
                    if k % 5 == 4: dma[slot] += [f"s_add_u32 {lo(T0)}, {lo(T0)}, 40960", f"s_addc_u32 {hi(T0)}, {hi(T0)}, 0"]
                    k += 1
            pre = sends(s - 6) if (p == 1 and s >= 6) else []
            a("\n".join(dma[2]))
            tile(p, s, pre + dma[0], dma[1], qk=not (p == 1 and s >= 6))
        if var == "A": a("s_branch L_lastE")
    a.label("L_lastE")
    a(pv(1, 1, 3, 1))
    a("\n".join(sends(2) + sends(3)))
    stamp(7)
    if OPT.get("diag"): a(f"s_mov_b64 exec, 1\nv_mov_b32 v4, 0\nv_mov_b32 v5, {sTAG}\nglobal_store_dword v4, v5, {WS}\ns_branch L_end")
    a("""s_waitcnt lgkmcnt(0)
         s_mov_b64 exec, 1
         ds_add_u32 v226, v227
         s_mov_b64 exec, -1""")
    stamp(23)
    lds_wait(sGEN, "v226", "v227")
    stamp(24)
    P = SB
    a(f"""ds_read_b128 {vr(P+44,4)}, {vALO}
          ds_read_b128 {vr(P+36,4)}, {vAXL}
          ds_read_b128 {vr(P+40,4)}, {vAXL} offset:1024""")
    for r in range(3):
        for jj in range(3): a(f"ds_read_b128 {vr(P+12*jj+4*r,4)}, {vr(VSEND+3)} offset:{3072*jj + 1024*r}")
    a("s_waitcnt lgkmcnt(9)")
    for k in (44, 36, 40):
        a(f"v_pk_add_f32 {vr(P+k,2)}, {vr(P+k,2)}, {vr(P+k+2,2)}\nv_add_f32 {vr(P+k)}, {vr(P+k)}, {vr(P+k+1)}")
    lo_ = f2u(2.0 ** -60); span = f2u(2.0 ** 60) - lo_
    a(f"""v_rcp_f32 {vr(P+46)}, {vr(P+44)}
          v_subrev_u32 {vr(P+36)}, {hex(lo_)}, {vr(P+36)}
          v_subrev_u32 {vr(P+40)}, {hex(lo_)}, {vr(P+40)}
          v_max_u32 {vr(P+36)}, {vr(P+36)}, {vr(P+40)}
          v_cmp_lt_u32 vcc, {hex(span)}, {vr(P+36)}""")
    if OPT["force_slow"]: a("s_mov_b64 vcc, -1")
    a(f"""s_cbranch_vccz L_fin
          s_cmp_eq_u32 {sPASS}, 0
          s_cbranch_scc1 L_slow""")
    a.label("L_fin")
    R = P + 48
    for i in range(6):
        if i % 2 == 0: a(f"s_waitcnt lgkmcnt({6 - 3*(i//2)})")
        a(f"""v_pk_add_f32 {vr(OA+48+2*i,2)}, {vr(OA+48+2*i,2)}, {vr(P+2*i,2)}
              v_pk_add_f32 {vr(P+12+2*i,2)}, {vr(P+12+2*i,2)}, {vr(P+24+2*i,2)}
              v_pk_add_f32 {vr(OA+48+2*i,2)}, {vr(OA+48+2*i,2)}, {vr(P+12+2*i,2)}
              v_pk_mul_f32 {vr(OA+48+2*i,2)}, {vr(OA+48+2*i,2)}, {vr(P+46,2)} op_sel_hi:[1,0]
              v_cvt_pk_bf16_f32 {vr(R+i)}, {vr(OA+48+2*i)}, {vr(OA+48+2*i+1)}""")
        if i % 2 == 0: a(f"v_min_u32 {vr(R+i)}, -2, {vr(R+i)}")
        if i == 4: a(f"v_permlane32_swap_b32 {vr(R)}, {vr(R+2)}\nv_permlane32_swap_b32 {vr(R+1)}, {vr(R+3)}")
    a(f"s_bitcmp1_b32 {sW4}, 0\ns_cbranch_scc1 L_finodd")
    peer_store(f"""global_store_dwordx4 {vOX}, {vr(R,4)}, {WS} @
                   s_mov_b64 exec, {MK_LO}
                   global_store_dwordx2 {vOX2}, {vr(R+4,2)}, {WS} offset:512 @""")
    a("s_branch L_fine")
    a.label("L_finodd")
    a(f"""v_permlane32_swap_b32 {vr(R)}, {vr(R+4)}
          v_permlane32_swap_b32 {vr(R+1)}, {vr(R+5)}
          v_cndmask_b32 {vr(R+4)}, {vr(R)}, {vr(R+4)}, {MK_LO}
          v_cndmask_b32 {vr(R+5)}, {vr(R+1)}, {vr(R+5)}, {MK_LO}""")
    peer_store(f"""global_store_dwordx4 {vOX}, {vr(R+2,4)}, {WS} @
                   s_mov_b64 exec, {MK_LO}
                   global_store_dwordx2 {vOX2}, {vr(R,2)}, {WS} offset:512 @""")
    a.label("L_fine")
    a("s_mov_b64 exec, -1")
    stamp(8)
    a(f"s_cmp_lg_u32 {sWH}, 0\ns_cbranch_scc1 L_ffn")

def slow_path():
    a.label("L_slow")
    a(f"""s_waitcnt vmcnt(0) lgkmcnt(0)
          s_mov_b32 {sPASS}, 1
          s_mul_i32 {sSOFF}, {sW4}, {8*KVREC}
          s_mov_b32 {sLOOP}, 0""")
    for j in range(4): a(f"v_mov_b32 {vr(OA+j)}, 0xff800000")
    a.label("L_mx")
    a("\n".join([ld_ka(0, 0, sSOFF), ld_ka(0, 1, sSOFF), ld_kb(0, sSOFF), "s_waitcnt vmcnt(0)"]))
    for T in range(2):
        for j in range(4): a(q8(0, T, j) + "\n" + q16(0, T, j))
        for j in range(4):
            for i in range(8): a(f"v_max3_f32 {vr(OA+j)}, {vr(OA+j)}, {vr(SB+16*j+2*i)}, {vr(SB+16*j+2*i+1)}")
    a(f"""s_add_u32 {sSOFF}, {sSOFF}, {KVREC}
          s_add_u32 {sLOOP}, {sLOOP}, 1
          s_cmp_lt_u32 {sLOOP}, 8
          s_cbranch_scc1 L_mx""")
    for j in range(4):
        a(f"""v_mov_b32 v4, {vr(OA+j)}
              v_permlane32_swap_b32 v4, {vr(OA+j)}
              v_max_f32 {vr(OA+j)}, v4, {vr(OA+j)}
              v_lshrrev_b32 v4, 5, {vL}
              v_lshl_add_u32 {vr(OA+4+j)}, v4, 11, {vr(VLW+j)}
              ds_write_b32 {vr(OA+4+j)}, {vr(OA+j)}""")
    a(f"s_add_u32 {sGEN}, {sGEN}, 4")
    lds_signal(sGC, "v226", "v227")
    lds_wait(sGEN, "v226", "v227")
    a(f"s_lshl_b32 {t0}, {sW4}, 2")
    for j in range(4):
        a(f"v_subrev_u32 {vr(OA+4+j)}, {t0}, {vr(OA+4+j)}\nds_read_b128 {vr(SB+4*j,4)}, {vr(OA+4+j)}")
    a(f"s_add_u32 {sGEN}, {sGEN}, 4")
    lds_signal(sGC, "v226", "v227")
    lds_wait(sGEN, "v226", "v227")
    a(f"s_not_b64 exec, {MK_LO}")
    for j in range(4):
        m = SB + 4 * j
        a(f"""v_max3_f32 {vr(m)}, {vr(m)}, {vr(m+1)}, {vr(m+2)}
              v_max_f32 {vr(m)}, {vr(m)}, {vr(m+3)}
              v_xor_b32 {vr(m)}, 0x80000000, {vr(m)}
              v_and_b32 {vr(m+1)}, 0xffff0000, {vr(m)}
              v_sub_f32 {vr(m)}, {vr(m)}, {vr(m+1)}
              v_and_b32 {vr(m+2)}, 0xffff0000, {vr(m)}
              v_sub_f32 {vr(m)}, {vr(m)}, {vr(m+2)}
              v_lshrrev_b32 {vr(m+1)}, 16, {vr(m+1)}
              v_or_b32 {vr(QB+2*j)}, {vr(m+1)}, {vr(m+2)}
              v_lshrrev_b32 {vr(QB+2*j+1)}, 16, {vr(m)}""")
    a("s_mov_b64 exec, -1")
    attn_zero()
    a("s_branch L_attn")

def allreduce_g(regs, tmp, op="v_add_f32"):
    for swap in ("v_permlane32_swap_b32", "v_permlane16_swap_b32"):
        for i, r in enumerate(regs): a(f"v_mov_b32 {vr(tmp+i)}, {vr(r)}")
        for i, r in enumerate(regs): a(f"{swap} {vr(tmp+i)}, {vr(r)}")
        for i, r in enumerate(regs): a(f"{op} {vr(r)}, {vr(tmp+i)}, {vr(r)}")

def row_allreduce(regs, op):
    for k in (8, 4, 2, 1):
        for r in regs: a(f"{op}_dpp {vr(r)}, {vr(r)}, {vr(r)} row_ror:{k} row_mask:0xf bank_mask:0xf")

OF, OAC, OT, OW = 16, 56, 76, 116
def outproj():
    lds_signal(L_CNT + C_ADONE, "v8", "v9")
    def granule_addr(dst, chunk, tmp, base):
        a(f"""v_lshrrev_b32 {dst}, 2, {chunk}
              v_and_b32 {tmp}, 3, {chunk}
              v_lshlrev_b32 {dst}, 7, {dst}
              v_lshl_add_u32 {dst}, {tmp}, 4, {dst}
              v_add_u32 {dst}, {base}, {dst}""")
    a(f"""v_min_u32 v66, 19, {vL}
          s_mul_i32 {t0}, {sCB}, 20
          v_add_u32 v15, {t0}, v66
          s_mul_i32 {t1}, {sW4}, 5120
          s_add_u32 {t1}, {t1}, {WS_MODG + 80*128}""")
    granule_addr("v8", "v15", "v10", t1)
    a(f"""v_lshlrev_b32 v15, 3, v15
          global_load_dwordx2 v[56:57], v15, {WR}
          v_min_u32 v15, 39, {vL}
          s_mul_i32 {t0}, {sW4}, 40
          v_add_u32 v15, {t0}, v15""")
    granule_addr("v9", "v15", "v10", WS_MODG + 160*128)
    a(f"""v_lshlrev_b32 v15, 3, v15
          global_load_dwordx2 v[58:59], v15, {WR}
          s_lshl_b32 {t1}, {sRB}, 2
          s_add_u32 {t1}, {t1}, {sTT}
          s_lshl_b32 {t2}, {t1}, 4
          v_add_u32 v11, {t2}, {vN}
          v_mul_u32_u24 v11, 1280, v11
          v_mul_u32_u24 v14, 40, {vG}
          s_mul_i32 {t2}, {sCB}, 160
          s_mul_i32 {t3}, {sKH}, 24
          s_add_u32 {t2}, {t2}, {t3}
          v_add_u32 v14, {t2}, v14
          v_add_u32 v11, v14, v11
          s_lshl_b32 {t3}, {sKH}, 4
          v_subrev_u32 v15, {t3}, v11
          global_load_dwordx4 v[4:7], v11, {X}
          global_load_dwordx2 v[12:13], v15, {X} offset:16
          s_lshl_b32 {t0}, {sTT}, 1
          s_or_b32 {t0}, {t0}, {sKH}
          s_mul_i32 {t0}, {t0}, 320
          s_add_u32 {t0}, {t0}, {L_VEC}
          v_lshl_add_u32 v66, v66, 4, {t0}""")
    poll(f"global_load_dwordx4 v[16:19], v8, {WS} sc1\nglobal_load_dwordx4 v[20:23], v9, {WS} sc1",
         f"""v_min3_u32 v24, v17, v19, v21
             v_max3_u32 v25, v17, v19, v21
             v_min_u32 v24, v24, v23
             v_max_u32 v25, v25, v23
             v_xor_b32 v24, {sTAG}, v24
             v_xor_b32 v25, {sTAG}, v25
             v_or_b32 v24, v24, v25
             v_cmp_ne_u32 vcc, 0, v24""", sleep=4)
    def unp4(dst, r0, r1): unpack(vr(dst), vr(dst+1), vr(r0)); unpack(vr(dst+2), vr(dst+3), vr(r1))
    stamp(32)
    unp4(80, 16, 18)
    a(f"""ds_write_b128 v66, v[80:83]
          s_cmp_lg_u32 {sW4}, 2
          s_cbranch_scc1 L_noav""")
    unp4(84, 56, 57)
    a("""v_pk_mul_f32 v[84:85], v[84:85], v[80:81]
         v_pk_mul_f32 v[86:87], v[86:87], v[82:83]
         ds_write_b128 v66, v[84:87] offset:960""")
    a.label("L_noav")
    unp4(88, 20, 22); unp4(92, 58, 59)
    a(f"""v_pk_mul_f32 v[88:89], v[88:89], v[92:93]
          v_pk_fma_f32 v[88:89], v[90:91], v[94:95], v[88:89]
          v_cmp_gt_u32 vcc, 40, {vL}
          v_add_f32 v100, v88, v89
          s_lshl_b32 {t0}, {sW4}, 2
          s_add_u32 {t0}, {t0}, {L_YP}
          v_cndmask_b32 v100, 0, v100, vcc
          v_mov_b32 v101, {t0}""")
    row_allreduce((100,), "v_add_f32")
    allreduce_g((100,), 104)
    a("ds_write_b32 v101, v100")
    lds_signal(L_CNT + C_WO, "v102", "v103")
    a(f"""v_mul_u32_u24 v8, 40, {vL}
          s_mul_i32 {t0}, {sKH}, 51200
          v_add_u32 v8, {t0}, v8
          v_lshlrev_b32 v9, 4, {vL}
          v_mul_u32_u24 v15, 80, {vG}
          s_mul_i32 {t0}, {sKH}, 48
          s_add_u32 {t0}, {t0}, {L_VEC}
          v_add_u32 v15, {t0}, v15
          s_lshl_b32 {t1}, {sRB}, 2
          s_add_u32 {t1}, {t1}, {sTT}
          s_mul_i32 {t2}, {t1}, 20480
          s_mul_i32 {t3}, {sKH}, 10240
          s_add_u32 {t2}, {t2}, {t3}
          s_add_u32 {t2}, {t2}, {WS_OX + 4096}
          s_add_u32 {lo(OB0)}, {lo(WS)}, {t2}
          s_addc_u32 {hi(OB0)}, {hi(WS)}, 0
          s_add_u32 {lo(OB1)}, {lo(OB0)}, 0x2000
          s_addc_u32 {hi(OB1)}, {hi(OB0)}, 0
          s_lshl_b32 {t2}, {t1}, 12
          s_lshl_b32 {t3}, {sCB}, 9
          s_add_u32 {t2}, {t2}, {t3}
          s_lshl_b32 {t3}, {sKH}, 8
          s_add_u32 {t2}, {t2}, {t3}
          s_add_u32 {sSTS}, {t2}, {WS_ST}
          s_lshl_b32 {t4}, {sTT}, 2
          s_add_u32 {t4}, {t4}, {L_CNT + C_PAIR}""")
    orders = ([7, 0, 1, 2, 3, 4, 5, 6, 8, 9], [9, 0, 1, 2, 3, 4, 5, 6, 8, 7])
    def o_load(s): return f"global_load_dwordx4 {vr(OF+4*s,4)}, v9, {OB0 if s < 8 else OB1} offset:{1024*(s%8) - 4096} sc1"
    for s in orders[0]: a(o_load(s))
    lds_wait(4, "v102", "v103", sleep=2)
    stamp(33)
    def wo_reads(s, r):
        return "\n".join(f"ds_read_b64_tr_b16 {vr(r+4*t+2*j,2)}, v8 offset:{s*5120 + j*2560 + 8*t}" for t in range(5) for j in range(2))
    for s in range(7): a(wo_reads(s, OW + 20*s))
    a(wo_reads(7, OT)); a(wo_reads(8, OT + 20))
    lds_signal(L_CNT + C_WC, "v56", "v57")
    stamp(29)
    GA, AV, EX, S1, G = 16, 28, 40, 68, 16
    retry = []
    def stage1(cg):
        order = orders[cg]
        a(f"s_mov_b32 {sSPIN}, {OPT['spin']}")
        for i, s in enumerate(order):
            a(f"s_waitcnt vmcnt({9-i})" + (" lgkmcnt(6)" if i == 9 else ""))
            a.label(f"L_oc{cg}_{s}")
            a(f"""v_max_u32 v10, {vr(OF+4*s)}, {vr(OF+4*s+2)}
                  v_cmp_eq_u32 vcc, -1, v10
                  s_cbranch_vccnz L_or{cg}_{s}""")
            a.label(f"L_ob{cg}_{s}")
            w = {7: OT, 8: OT + 20, 9: OT}.get(s, OW + 20*s)
            for t in range(5):
                a(f"v_mfma_f32_16x16x32_bf16 {vr(OAC+4*t,4)}, {vr(w+4*t,4)}, {vr(OF+4*s,4)}, {'0' if i == 0 else vr(OAC+4*t,4)}")
            if s == 0: a(wo_reads(order[9], OT))
            if s == 6:
                for arr, r in ((0, GA), (4, AV)):
                    for k in range(3): a(f"ds_read_b128 {vr(r+4*k,4)}, v15 offset:{320*arr + 16*k}")
            retry.append(f"""L_or{cg}_{s}:
                  s_sub_u32 {sSPIN}, {sSPIN}, 1
                  s_cbranch_scc1 L_ob{cg}_{s}
                  """ + "\n".join(o_load(k) for k in order[i:]) + f"""
                  s_waitcnt vmcnt({9-i})
                  s_branch L_oc{cg}_{s}""")
        stamp(10 if cg else 34)
        if cg == 0 and OPT.get("lowprio", 2) == 2: a("s_setprio 0")
        a(f"""s_mul_i32 {t0}, {sW4}, 3072
              s_add_u32 {t0}, {t0}, {L_OXC}
              v_add_u32 v10, {t0}, v9
              s_xor_b32 {t0}, {sW4}, 2
              s_mul_i32 {t0}, {t0}, 3072
              s_add_u32 {t0}, {t0}, {L_OXC}
              v_add_u32 v52, {t0}, v9
              s_cmp_lg_u32 {sKH}, 0
              s_cbranch_scc1 L_oe1{cg}""")
        for kh, (keep, send) in enumerate((((0, 1, 2), (3, 4)), ((3, 4), (0, 1, 2)))):
            nk = len(keep)
            if kh: a.label(f"L_oe1{cg}")
            for i, t in enumerate(send): a(f"ds_write_b128 v10, {vr(OAC+4*t,4)} offset:{1024*i}")
            for i, r in enumerate((4, 6, 12)[:nk]):
                unpack(vr(EX+4*i), vr(EX+4*i+1), vr(r)); unpack(vr(EX+4*i+2), vr(EX+4*i+3), vr(r+1))
            lds_signal(t4, "v54", "v55")
            if cg == 0:
                a(f"""v_add_u32 v11, {32*1280}, v11
                      global_load_dwordx4 v[4:7], v11, {X}""")
                if kh == 0: a(f"global_load_dwordx2 v[12:13], v11, {X} offset:16")
            for i, t in enumerate(keep):
                for h in range(2):
                    a(f"v_pk_fma_f32 {vr(X1+4*i+2*h,2)}, {vr(OAC+4*t+2*h,2)}, {vr(GA+4*i+2*h,2)}, {vr(EX+4*i+2*h,2)}")
            lds_wait(2 + 2*cg, "v54", "v55")
            for i in range(nk): a(f"ds_read_b128 {vr(EX+4*i,4)}, v52 offset:{1024*i}")
            for i in range(nk):
                a(f"s_waitcnt lgkmcnt({nk-1-i})")
                for h in range(2):
                    x = X1 + 4*i + 2*h
                    a(f"v_pk_fma_f32 {vr(x,2)}, {vr(EX+4*i+2*h,2)}, {vr(GA+4*i+2*h,2)}, {vr(x,2)}")
                    if i == 0 and h == 0:
                        a(f"""v_pk_mul_f32 {vr(S1+2,2)}, {vr(x,2)}, {vr(x,2)}
                              v_pk_mul_f32 {vr(S1+4,2)}, {vr(x,2)}, {vr(AV,2)}""")
                    else:
                        a(f"""v_pk_add_f32 {vr(S1,2)}, {vr(S1 if (i, h) != (0, 1) else X1,2)}, {vr(x,2)}
                              v_pk_fma_f32 {vr(S1+2,2)}, {vr(x,2)}, {vr(x,2)}, {vr(S1+2,2)}
                              v_pk_fma_f32 {vr(S1+4,2)}, {vr(x,2)}, {vr(AV+4*i+2*h,2)}, {vr(S1+4,2)}""")
            if not kh: a(f"s_branch L_oe2{cg}")
        a.label(f"L_oe2{cg}")
        a(f"""v_add_f32 {vr(G)}, {vr(S1)}, {vr(S1+1)}
              v_add_f32 {vr(G+1)}, {vr(S1+2)}, {vr(S1+3)}
              v_add_f32 {vr(G+2)}, {vr(S1+4)}, {vr(S1+5)}
              v_mov_b32 {vr(G+3)}, {sTAG}
              v_add_u32 v10, {sSTS}, v9""")
        allreduce_g((G, G + 1, G + 2), S1)
        a("s_mov_b64 exec, 0xffff")
        peer_store(f"global_store_dwordx4 v10, {vr(G,4)}, {WS} @")
        a("s_mov_b64 exec, -1")

    FP = OPT.get("fpace", 1)
    a(f"""v_lshrrev_b32 v60, 1, {vL}
          v_and_b32 v61, 1, {vL}
          v_lshlrev_b32 v66, 7, {vL}
          v_add_u32 v66, {40960 - 4096}, v66""")
    lds_wait(4, "v56", "v57", sleep=1)
    a(f"""s_cmp_ge_u32 {sFR}, 148
          s_cbranch_scc1 L_fde
          s_cmp_ge_u32 {sFR}, 108
          s_cbranch_scc1 L_fd2
          s_cmp_eq_u32 {sKH}, 0
          s_cselect_b64 {T0}, {WG}, {WU}
          s_mul_i32 {t0}, {sTT}, {320*3456}
          s_lshl_b32 {t1}, {sFR}, 5
          s_add_u32 {t0}, {t0}, {t1}
          s_add_u32 {lo(T0)}, {lo(T0)}, {t0}
          s_addc_u32 {hi(T0)}, {hi(T0)}, 0
          v_mul_u32_u24 v60, 3456, v60
          v_lshl_add_u32 v60, v61, 4, v60
          s_mul_i32 {t1}, {sTT}, 10240
          s_mul_i32 {t2}, {sKH}, 51200
          s_add_u32 {t2}, {t2}, {t1}""")
    for s in range(10):
        a(f"s_add_u32 m0, {t2}, {L_W + 1024*s}\nglobal_load_lds_dwordx4 v60, {T0}")
        if s < 9: base_add(T0, T0, 32*3456)
        a(f"s_waitcnt vmcnt({FP})")
    a("s_branch L_fde")
    a.label("L_fd2")
    a(f"""s_mul_i32 {t0}, {sW4}, 14
          s_min_u32 {t0}, {t0}, 40
          s_mul_i32 {t0}, {t0}, 40960
          s_sub_u32 {t1}, {sFR}, 108
          s_lshl_b32 {t1}, {t1}, 5
          s_add_u32 {t0}, {t0}, {t1}
          s_add_u32 {lo(T0)}, {lo(WD)}, {t0}
          s_addc_u32 {hi(T0)}, {hi(WD)}, 0
          v_mul_u32_u24 v60, 1280, v60
          v_lshl_add_u32 v60, v61, 4, v60
          s_mul_i32 {t1}, {sTT}, 14336
          s_mul_i32 {t2}, {sKH}, 51200
          s_add_u32 {t2}, {t2}, {t1}""")
    for s in range(14):
        a(f"s_add_u32 m0, {t2}, {L_W + 1024*s}\nglobal_load_lds_dwordx4 v60, {T0}")
        if s < 13: base_add(T0, T0, 40960)
        a(f"s_waitcnt vmcnt({FP})")
    a.label("L_fde")
    a(f"""global_load_dword v67, v66, {OB0} sc1
          global_load_dword v68, v66, {OB0} offset:2048 sc1
          s_waitcnt vmcnt(0)""")
    stamp(36)
    if OPT.get("lowprio", 2) == 1: a("s_setprio 0")
    stage1(0)
    stamp(30)
    stash_addr("v10")
    for i in range(3): a(f"ds_write_b128 v10, {vr(X1+4*i,4)} offset:{1024*i}")
    a(f"s_add_u32 {sSTS}, {sSTS}, 0x2000")
    base_add(OB0, OB0, 40960); base_add(OB1, OB1, 40960)
    a("s_setprio 2\ns_waitcnt vmcnt(0) lgkmcnt(0)")
    stamp(22)
    a("s_barrier")
    stamp(9)
    for s in orders[1]: a(o_load(s))
    stage1(1)
    stamp(11)
    a("s_branch L_stage2")
    for r in retry: a(r)

X1, ST, VE, HP, WN, OP, vOUT = 56, 112, 148, 196, 204, 208, "v214"
def stash_addr(dst):
    a(f"""s_mul_i32 {t0}, {sTT}, 3072
          s_mul_i32 {t1}, {sKH}, 51200
          s_add_u32 {t0}, {t0}, {t1}
          s_add_u32 {t0}, {t0}, {L_W + 28672}
          v_add_u32 {dst}, {t0}, v9""")

def stage2():
    a.label("L_ffn")
    a(f"""v_lshlrev_b32 v9, 4, {vL}
          v_mul_u32_u24 v15, 80, {vG}
          s_mul_i32 {t0}, {sKH}, 48
          s_add_u32 {t0}, {t0}, {L_VEC}
          v_add_u32 v15, {t0}, v15
          s_barrier
          s_setprio 0
          s_lshl_b32 {t1}, {sRB}, 2
          s_add_u32 {t1}, {t1}, {sTT}
          s_lshl_b32 {t2}, {t1}, 4
          v_add_u32 v11, {t2}, {vN}
          v_mul_u32_u24 v11, 1280, v11
          v_mul_u32_u24 v14, 40, {vG}
          s_mul_i32 {t2}, {sCB}, 160
          s_mul_i32 {t3}, {sKH}, 24
          s_add_u32 {t2}, {t2}, {t3}
          v_add_u32 v14, {t2}, v14
          v_add_u32 v11, v14, v11""")
    stash_addr("v10")
    for i in range(3): a(f"ds_read_b128 {vr(X1+4*i,4)}, v10 offset:{1024*i}")
    a.label("L_stage2")
    st_loads = "\n".join(f"global_load_dwordx4 {vr(ST+16*u+4*i,4)}, v105, {WS} offset:{4096*(u-1) + 256*i} sc1" for u in range(2) for i in range(4))
    a(f"""s_lshl_b32 {sCAND}, {sRB}, 1
          s_add_u32 {sCAND}, {sCAND}, 1
          s_sub_u32 {sCAND}, {sCAND}, {sWH}
          s_lshl_b32 {t2}, {sCAND}, 13
          s_add_u32 {t2}, {t2}, {WS_ST + 4096}
          v_lshlrev_b32 v105, 10, {vG}
          v_lshl_add_u32 v105, {vN}, 4, v105
          v_add_u32 v105, {t2}, v105
          v_mov_b32 v4, {L_YP}
          ds_read_b128 v[100:103], v4""")
    for arr in (1, 2, 3):
        for k in range(3): a(f"ds_read_b128 {vr(VE+12*(arr-1)+4*k,4)}, v15 offset:{320*arr + 16*k}")
    a(st_loads)
    a(f"""v_mov_b32 {vOUT}, v11
          v_mov_b32 {vr(WN+2)}, 0
          v_mov_b32 {vr(WN+3)}, {sTAG}
          s_cmp_lg_u32 {sTT}, 0
          s_cselect_b64 {T1}, -1, 0
          s_mul_i32 {t1}, {sCAND}, 1280
          v_add_u32 v13, {t1}, v14
          v_lshlrev_b32 v12, 1, v13
          v_add_u32 v12, {WS_BASE}, v12
          v_add_u32 v13, {WS_H2}, v13
          s_lshl_b32 {t2}, {sCAND}, 7
          s_add_u32 {t2}, {t2}, {WS_WIN}
          v_add_u32 v4, {t2}, v9
          s_waitcnt lgkmcnt(9)
          v_pk_add_f32 v[100:101], v[100:101], v[102:103]
          v_add_f32 v100, v100, v101""")
    bad = [f"v_min_u32 v5, {vr(ST+3)}, {vr(ST+7)}\nv_max_u32 v6, {vr(ST+3)}, {vr(ST+7)}"]
    bad += [f"v_min3_u32 v5, v5, {vr(ST+3+8*i)}, {vr(ST+7+8*i)}\nv_max3_u32 v6, v6, {vr(ST+3+8*i)}, {vr(ST+7+8*i)}" for i in range(1, 4)]
    bad += [f"v_xor_b32 v5, {sTAG}, v5\nv_xor_b32 v6, {sTAG}, v6\nv_or_b32 v5, v5, v6\nv_cmp_ne_u32 vcc, 0, v5"]
    poll(st_loads, "\n".join(bad), issued=True)
    stamp(12)
    for u in range(2):
        b = ST + 16 * u
        a(f"""v_pk_add_f32 {vr(b,2)}, {vr(b,2)}, {vr(b+4,2)}
              v_pk_add_f32 {vr(b+8,2)}, {vr(b+8,2)}, {vr(b+12,2)}
              v_add_f32 {vr(b+2)}, {vr(b+2)}, {vr(b+6)}
              v_add_f32 {vr(b+10)}, {vr(b+10)}, {vr(b+14)}
              v_pk_add_f32 {vr(b,2)}, {vr(b,2)}, {vr(b+8,2)}
              v_add_f32 {vr(b+2)}, {vr(b+2)}, {vr(b+10)}""")
    for i in range(3): a(f"v_permlane16_swap_b32 {vr(ST+i)}, {vr(ST+16+i)}")
    a(f"""v_pk_add_f32 {vr(ST,2)}, {vr(ST,2)}, {vr(ST+16,2)}
          v_add_f32 {vr(ST+2)}, {vr(ST+2)}, {vr(ST+18)}
          v_mov_b64 {vr(ST+16,2)}, {vr(ST,2)}
          v_mov_b32 {vr(ST+18)}, {vr(ST+2)}""")
    for i in range(3): a(f"v_permlane32_swap_b32 {vr(ST+i)}, {vr(ST+16+i)}")
    a(f"""v_pk_add_f32 {vr(ST,2)}, {vr(ST,2)}, {vr(ST+16,2)}
          v_add_f32 {vr(ST+2)}, {vr(ST+2)}, {vr(ST+18)}
          v_mul_f32 {vr(ST)}, {hex(f2u(-1/640))}, {vr(ST)}
          v_mul_f32 {vr(ST+1)}, {hex(f2u(1/640))}, {vr(ST+1)}
          v_fma_f32 {vr(ST+1)}, -{vr(ST)}, {vr(ST)}, {vr(ST+1)}
          v_max_f32 {vr(ST+1)}, 0, {vr(ST+1)}
          v_add_f32 {vr(ST+1)}, {hex(f2u(1e-5))}, {vr(ST+1)}
          v_rsq_f32 {vr(ST+4)}, {vr(ST+1)}
          v_fmac_f32 {vr(ST+2)}, {vr(ST)}, v100
          v_mul_f32 {vr(ST+2)}, {vr(ST+2)}, {vr(ST+4)}
          v_mul_f32 {vr(ST+6)}, {vr(ST)}, {vr(ST+4)}
          v_mov_b32 {vr(WN)}, {vr(ST+2)}
          v_mov_b32 v5, {vr(ST+2)}
          v_mov_b32 {vr(ST+5)}, {vr(ST+4)}
          v_mov_b32 {vr(ST+7)}, {vr(ST+6)}
          v_permlane16_swap_b32 {vr(WN)}, v5
          v_permlane16_swap_b32 {vr(ST+4)}, {vr(ST+5)}
          v_max_f32 {vr(WN)}, {vr(WN)}, v5
          v_permlane16_swap_b32 {vr(ST+6)}, {vr(ST+7)}""")
    fill = [f"v_cndmask_b32 {vr(ST+4)}, {vr(ST+4)}, {vr(ST+5)}, {T1}", f"v_cndmask_b32 {vr(ST+6)}, {vr(ST+6)}, {vr(ST+7)}, {T1}",
            f"s_lshl_b32 {t2}, {sCAND}, 5", f"s_or_b32 {t1}, {sCB}, {sW4}", f"s_lshl_b32 {t3}, {sTT}, 4", "s_waitcnt lgkmcnt(0)"]
    for n, k in enumerate((8, 4, 2, 1)):
        a(f"v_max_f32_dpp {vr(WN)}, {vr(WN)}, {vr(WN)} row_ror:{k} row_mask:0xf bank_mask:0xf")
        a("\n".join(fill[2*n:2*n+2]))
    a(f"""v_cmp_eq_f32 vcc, {vr(ST+2)}, {vr(WN)}
          s_ff1_i32_b32 {sWINT}, vcc_lo
          s_and_b32 {sWINT}, {sWINT}, 31
          s_cmp_lg_u32 {t1}, 0
          s_cbranch_scc1 L_nowin
          s_add_u32 {t2}, {t2}, {sWINT}
          v_mov_b32 {vr(WN+1)}, {t2}
          s_mov_b64 exec, 0xff
          global_store_dwordx4 v4, {vr(WN,4)}, {WS} sc1
          s_mov_b64 exec, -1""")
    a.label("L_nowin")
    a(f"s_sub_u32 {t1}, {sWINT}, {t3}\nv_cmp_eq_u32 {MK_B}, {t1}, {vN}")
    for i in range(6):
        x, h = X1 + 2*i, ST + 8 + 2*i
        a(f"""v_pk_fma_f32 {vr(h,2)}, {vr(x,2)}, {vr(ST+4,2)}, {vr(ST+6,2)} op_sel_hi:[1,0,0]
              v_pk_fma_f32 {vr(h,2)}, {vr(h,2)}, {vr(VE+2*i,2)}, {vr(VE+12+2*i,2)}
              v_cvt_pk_bf16_f32 {vr(HP+i)}, {vr(h)}, {vr(h+1)}""")
        if i % 2 == 0: a(f"v_min_u32 {vr(HP+i)}, -2, {vr(HP+i)}")
    a(f"""s_and_saveexec_b64 {T0}, {MK_B}
          s_cbranch_execz L_noh2
          global_store_dwordx4 v13, {vr(HP,4)}, {WS} sc1
          s_cmp_lg_u32 {sKH}, 0
          s_cbranch_scc1 L_noh2
          global_store_dwordx2 v13, {vr(HP+4,2)}, {WS} offset:16 sc1""")
    a.label("L_noh2")
    a("s_mov_b64 exec, -1")
    for i in range(6):
        x, h = X1 + 2*i, ST + 8 + 2*i
        a(f"""v_pk_fma_f32 {vr(x,2)}, {vr(h,2)}, {vr(VE+24+2*i,2)}, {vr(x,2)}
              v_cvt_pk_bf16_f32 {vr(OP+i)}, {vr(x)}, {vr(x+1)}""")
        if i % 2 == 0: a(f"v_min_u32 {vr(x)}, -2, {vr(x)}")
    a(f"""s_and_saveexec_b64 {T0}, {MK_B}
          s_cbranch_execz L_nobase
          global_store_dwordx4 v12, {vr(X1,4)}, {WS} sc1
          global_store_dwordx4 v12, {vr(X1+4,4)}, {WS} offset:16 sc1
          s_cmp_lg_u32 {sKH}, 0
          s_cbranch_scc1 L_nobase
          global_store_dwordx4 v12, {vr(X1+8,4)}, {WS} offset:32 sc1""")
    a.label("L_nobase")
    a("s_mov_b64 exec, -1")
    stamp(25)

def out_rows():
    E = uid("L_or")
    fl = OPT.get("outflags", "")
    a(f"""s_not_b64 exec, {MK_B}
          global_store_dwordx4 {vOUT}, {vr(OP,4)}, {OUT} {fl}
          s_cmp_lg_u32 {sKH}, 0
          s_cbranch_scc1 {E}
          global_store_dwordx2 {vOUT}, {vr(OP+4,2)}, {OUT} offset:16 {fl}""")
    a.label(E)
    a("s_mov_b64 exec, -1")

def poll_value(loads, regs):
    L, E = uid("L_pv"), uid("L_pve")
    a(f"s_mov_b32 {sSPIN}, {OPT['spin']}")
    a.label(L)
    a(loads)
    a("s_waitcnt vmcnt(0)")
    a(f"v_max_u32 v10, {regs[0]}, {regs[1]}")
    for i in range(2, len(regs), 2): a(f"v_max3_u32 v10, v10, {regs[i]}, {regs[i+1]}")
    a(f"""v_cmp_eq_u32 vcc, -1, v10
          s_cbranch_vccz {E}
          s_mov_b64 exec, vcc
          s_sub_u32 {sSPIN}, {sSPIN}, 1
          s_cbranch_scc0 {L}""")
    a.label(E)
    a("s_mov_b64 exec, -1")

def gemv_bcast(n, FW, FA):
    def bc(s):
        src, dst = FA + 4 * (s // 16), FA + 8 + 4 * (s % 3)
        return "\n".join(f"v_mov_b64_dpp {vr(dst+2*h,2)}, {vr(src+2*h,2)} row_newbcast:{s % 16} row_mask:0xf bank_mask:0xf" for h in range(2))
    a(bc(0))
    for s in range(n):
        if s + 1 < n: a(bc(s + 1))
        d = 176 + 4 * (s % 2)
        a(f"v_mfma_f32_16x16x32_bf16 {vr(d,4)}, {vr(FW+4*s,4)}, {vr(FA+8+4*(s%3),4)}, {'0' if s < 2 else vr(d,4)}")

def find_winner():
    a(f"v_lshlrev_b32 v8, 7, {vL}\nv_add_u32 v8, {WS_WIN}, v8")
    poll_lanes(f"global_load_dwordx4 v[4:7], v8, {WS} sc1", "v7")
    a("v_mov_b32 v9, v4")
    row_allreduce((9,), "v_max_f32")
    allreduce_g((9,), 10, "v_max_f32")
    a(f"""v_cmp_eq_f32 vcc, v4, v9
          s_ff1_i32_b64 {t3}, vcc
          s_and_b32 {t3}, {t3}, 63
          v_readlane_b32 {sWINT}, v5, {t3}
          v_readlane_b32 {sWINR}, v4, {t3}""")

def ffn():
    FW, FA = 16, 96
    a(f"""v_lshlrev_b32 v14, 8, {vG}
          v_lshl_add_u32 v14, {vN}, 3, v14
          s_cmp_ge_u32 {sFR}, 108
          s_cbranch_scc1 L_ffn2
          s_and_b32 {t0}, {sW}, 6
          s_cmp_eq_u32 {t0}, 4
          s_cbranch_scc1 L_ffn1
          s_barrier
          s_barrier""")
    a.label("L_rows")
    stamp(13)
    out_rows()
    endpgm()
    a.label("L_ffn1")
    a(f"""v_and_b32 v4, 2, {vN}
          v_mul_u32_u24 v4, {25600 - 8}, v4
          s_lshl_b32 {t0}, {sTT}, 4
          v_add3_u32 v14, v14, v4, {t0}""")
    for s in range(20):
        a(f"ds_read_b64_tr_b16 {vr(FW+4*s,2)}, v14 offset:{1024*s}\nds_read_b64_tr_b16 {vr(FW+4*s+2,2)}, v14 offset:{1024*s+128}")
    a(f"""v_lshlrev_b32 v12, 4, {vG}
          v_add_u32 v12, {WS_H2}, v12
          v_and_b32 v13, 3, {vN}
          v_lshl_add_u32 v13, v13, 6, v12
          v_add_u32 v13, 1024, v13
          v_lshl_add_u32 v12, {vN}, 6, v12
          s_lshl_b32 {t0}, {sFR}, 1
          s_add_u32 {t0}, {t0}, {sTT}
          s_lshl_b32 {t0}, {t0}, {ASH}
          s_add_u32 {t0}, {t0}, {WS_ACT}
          v_lshl_add_u32 v15, {vG}, 3, {t0}
          s_setprio 3
          s_waitcnt lgkmcnt(0)
          s_barrier""")
    stamp(14)
    find_winner()
    stamp(15)
    a(f"""s_mul_i32 {t0}, {t3}, 1280
          v_add_u32 v12, {t0}, v12
          v_add_u32 v13, {t0}, v13""")
    poll_value(f"global_load_dwordx4 {vr(FA,4)}, v12, {WS} sc1\nglobal_load_dwordx4 {vr(FA+4,4)}, v13, {WS} sc1", [vr(FA+2*i) for i in range(4)])
    gemv_bcast(20, FW, FA)
    a("v_pk_add_f32 v[176:177], v[176:177], v[180:181]\nv_pk_add_f32 v[178:179], v[178:179], v[182:183]")
    for i in range(4): a(f"v_mov_b32 {vr(180+i)}, {vr(176+i)}")
    for i in range(4): a(f"v_permlane32_swap_b32 {vr(176+i)}, {vr(180+i)}")
    for i in range(4): a(f"v_mul_f32 {vr(184+i)}, {hex(f2u(-math.log2(math.e)))}, {vr(176+i)}")
    for i in range(4): a(f"v_exp_f32 {vr(184+i)}, {vr(184+i)}")
    for i in range(4): a(f"v_add_f32 {vr(184+i)}, 1.0, {vr(184+i)}")
    for i in range(4): a(f"v_rcp_f32 {vr(184+i)}, {vr(184+i)}")
    for i in range(4): a(f"v_mul_f32 {vr(176+i)}, {vr(176+i)}, {vr(180+i)}")
    for i in range(4): a(f"v_mul_f32 {vr(176+i)}, {vr(176+i)}, {vr(184+i)}")
    a(f"""v_cvt_pk_bf16_f32 v12, v176, v177
          v_cvt_pk_bf16_f32 v13, v178, v179
          v_min_u32 v12, -2, v12
          s_mov_b64 exec, 0x10001
          global_store_dwordx2 v15, v[12:13], {WS} sc1
          s_mov_b64 exec, -1
          s_barrier""")
    stamp(16)
    a(f"""s_cmp_lg_u32 s2, 0
          s_cbranch_scc1 L_rows
          v_mov_b32 v4, 0
          v_mov_b32 v5, {sTAG}
          s_mov_b64 exec, 1
          global_store_dword v4, v5, {WS}
          s_branch L_rows""")
    a.label("L_ffn2")
    sQ, sS0 = sSTS, sSTL
    a(f"""s_cmp_lt_u32 {sFR}, 148
          s_cselect_b32 {t0}, {sWH}, 0
          s_cmp_lg_u32 {t0}, 0
          s_cbranch_scc1 L_ffn2B
          s_barrier
          s_branch L_rows""")
    a.label("L_ffn2B")
    a(f"""s_sub_u32 {sQ}, {sFR}, 108
          s_mul_i32 {sS0}, {sW4}, 14
          s_min_u32 {sS0}, {sS0}, 40
          s_and_b32 {t1}, {sW4}, 1
          s_mul_i32 {t1}, {t1}, 14336
          s_lshr_b32 {t2}, {sW4}, 1
          s_mul_i32 {t2}, {t2}, 51200
          s_add_u32 {t2}, {t2}, {t1}
          v_add_u32 v14, {t2}, v14
          s_lshl_b32 {t0}, {sQ}, 7
          s_add_u32 {t0}, {t0}, {WS_MODG + 200*128}
          v_lshl_add_u32 v12, {vG}, 4, {t0}""")
    for s in range(14):
        a(f"ds_read_b64_tr_b16 {vr(FW+4*s,2)}, v14 offset:{1024*s}\nds_read_b64_tr_b16 {vr(FW+4*s+2,2)}, v14 offset:{1024*s+128}")
    a(f"""s_waitcnt lgkmcnt(0)
          s_cmp_lg_u32 {sW4}, 3
          s_cbranch_scc1 L_f2full""")
    for i in range(8): a(f"v_mov_b32 {vr(FW+i)}, 0")
    a.label("L_f2full")
    a(f"s_cmp_lg_u32 {sW4}, 0\ns_cbranch_scc1 L_noc0")
    for k in range(3):
        a(f"""v_add_u32 v4, {64*k}, {vL}
              v_min_u32 v4, 159, v4
              v_lshlrev_b32 v5, 3, v4
              global_load_dwordx2 {vr(112+2*k,2)}, v5, {WR}
              v_lshrrev_b32 {vr(96+k)}, 2, v4
              v_and_b32 v4, 3, v4
              v_lshlrev_b32 {vr(96+k)}, 7, {vr(96+k)}
              v_lshl_add_u32 {vr(96+k)}, v4, 4, {vr(96+k)}
              v_add_u32 {vr(96+k)}, {WS_MODG + 120*128}, {vr(96+k)}""")
    poll("\n".join(f"global_load_dwordx4 {vr(100+4*k,4)}, {vr(96+k)}, {WS} sc1" for k in range(3)),
         f"""v_min3_u32 v4, v101, v103, v105
             v_max3_u32 v5, v101, v103, v105
             v_min3_u32 v4, v4, v107, v109
             v_max3_u32 v5, v5, v107, v109
             v_min_u32 v4, v4, v111
             v_max_u32 v5, v5, v111
             v_xor_b32 v4, {sTAG}, v4
             v_xor_b32 v5, {sTAG}, v5
             v_or_b32 v4, v4, v5
             v_cmp_ne_u32 vcc, 0, v4""", sleep=4)
    a("v_mov_b32 v128, 0")
    for k in range(3):
        unpack("v120", "v121", vr(100+4*k)); unpack("v122", "v123", vr(102+4*k))
        unpack("v124", "v125", vr(112+2*k)); unpack("v126", "v127", vr(113+2*k))
        if k == 2: a(f"s_mov_b64 exec, {MK_LO}")
        for i in range(4): a(f"v_fmac_f32 v128, {vr(120+i)}, {vr(124+i)}")
    a("s_mov_b64 exec, -1")
    row_allreduce((128,), "v_add_f32")
    allreduce_g((128,), 129)
    a(f"v_readfirstlane_b32 {sC0}, v128")
    a.label("L_noc0")
    a("s_barrier")
    out_rows()
    stamp(14)
    find_winner()
    stamp(15)
    a(f"""global_load_dwordx4 v[188:191], v12, {WS} sc1
          s_lshl_b32 {t0}, {sW4}, 4
          v_add_u32 v8, {t0}, {vN}
          v_lshlrev_b32 v9, 2, v8
          ds_bpermute_b32 v10, v9, v5
          v_cmp_ne_u32 {MK_A}, {t3}, v8
          v_mul_u32_u24 v8, 2560, v8
          s_lshl_b32 {t0}, {sQ}, 6
          s_add_u32 {t0}, {t0}, {WS_BASE}
          v_lshl_add_u32 v9, {vG}, 4, {t0}
          v_add_u32 v8, v9, v8
          s_mul_i32 {t0}, {t3}, 2560
          v_add_u32 v9, {t0}, v9
          s_lshl_b32 {t0}, {sQ}, 5
          v_lshl_add_u32 v11, {vG}, 3, {t0}
          s_waitcnt lgkmcnt(0)
          v_and_b32 v10, 2047, v10
          v_mul_u32_u24 v10, 1280, v10
          v_add_u32 v15, v11, v10
          s_and_b32 {sWINT}, {sWINT}, 2047
          s_mul_i32 {t0}, {sWINT}, 1280
          v_add_u32 v11, {t0}, v11""")
    poll(f"global_load_dwordx4 v[196:199], v8, {WS} sc1\nglobal_load_dwordx4 v[200:203], v9, {WS} sc1",
         "v_max_u32 v10, v196, v200\nv_cmp_eq_u32 vcc, -1, v10")
    unpack("v192", "v193", "v188"); unpack("v194", "v195", "v190")
    a(f"""v_cvt_pk_bf16_f32 v12, v196, v197
          v_cvt_pk_bf16_f32 v13, v198, v199
          s_mov_b64 exec, {MK_A}
          global_store_dwordx2 v15, v[12:13], {OUT}
          s_mov_b64 exec, -1
          v_mov_b32 v204, {sWINR}
          v_add_f32 v204, {sC0}, v204
          v_mul_f32 v204, {hex(f2u(-math.log2(math.e)))}, v204
          v_exp_f32 v204, v204
          s_lshl_b32 {t0}, {sS0}, {ASH + 2}
          s_add_u32 {t0}, {t0}, {WS_ACT}
          v_add_f32 v204, 1.0, v204
          v_rcp_f32 v204, v204
          v_min_u32 v8, 13, {vN}
          v_lshl_add_u32 v8, v8, 2, {vG}
          v_lshl_add_u32 v8, v8, {ASH}, {t0}
          v_pk_mul_f32 v[192:193], v[192:193], v[204:205] op_sel_hi:[1,0]
          v_pk_mul_f32 v[194:195], v[194:195], v[204:205] op_sel_hi:[1,0]
          s_lshl_b32 {t0}, {sW4}, 6
          s_add_u32 {t0}, {t0}, {L_YP}
          v_lshl_add_u32 v9, {vG}, 4, {t0}""")
    stamp(38)
    for _ in range(OPT.get("actdelay", 0)): a("s_sleep 4")
    poll_value(f"global_load_dwordx4 {vr(FA,4)}, v8, {WS} sc1", [vr(FA), vr(FA+2)])
    stamp(16)
    gemv_bcast(14, FW, FA)
    a(f"""v_pk_add_f32 v[176:177], v[176:177], v[180:181]
          v_pk_add_f32 v[178:179], v[178:179], v[182:183]
          s_cmp_eq_u32 {sW4}, 0
          s_cbranch_scc1 L_f2fin
          s_mov_b64 exec, {MK_N0}
          ds_write_b128 v9, v[176:179]
          s_mov_b64 exec, -1""")
    lds_signal(L_CNT + C_Y, "v4", "v5")
    endpgm()
    a.label("L_f2fin")
    a(f"v_mov_b32 v4, {L_CNT + C_Y}")
    lds_wait(3, "v4", "v5")
    a(f"""ds_read_b128 v[180:183], v9 offset:64
          ds_read_b128 v[184:187], v9 offset:128
          ds_read_b128 v[188:191], v9 offset:192
          s_waitcnt lgkmcnt(0)
          v_pk_add_f32 v[176:177], v[176:177], v[180:181]
          v_pk_add_f32 v[178:179], v[178:179], v[182:183]
          v_pk_add_f32 v[184:185], v[184:185], v[188:189]
          v_pk_add_f32 v[186:187], v[186:187], v[190:191]
          v_pk_add_f32 v[176:177], v[176:177], v[184:185]
          v_pk_add_f32 v[178:179], v[178:179], v[186:187]
          v_pk_fma_f32 v[200:201], v[176:177], v[192:193], v[200:201]
          v_pk_fma_f32 v[202:203], v[178:179], v[194:195], v[202:203]
          v_cvt_pk_bf16_f32 v12, v200, v201
          v_cvt_pk_bf16_f32 v13, v202, v203
          s_mov_b64 exec, {MK_N0}
          global_store_dwordx2 v11, v[12:13], {OUT}
          s_mov_b64 exec, -1""")
    stamp(17)
    a.label("L_end")
    endpgm()
    a.label("L_exit")
    a("s_endpgm")

def build(**opt):
    global a
    OPT.update(opt)
    a.lines.clear(); _uid[0] = 0
    prologue(); layernorm1(); qkv(); attention(); outproj(); stage2(); ffn(); slow_path()
    rep = []
    lines, nn = insert_nops(a.lines, rep)
    errs = check_waits(lines)
    head = open(f"cdna_kernels/{NAME}.s.ref").read().split("; Override launch")[0]
    out = head + f"; @launch grid=(256,1,1) block=(512,1,1) lds={LDS_BYTES}\n"
    out += f""".amdgcn_target "amdgcn-amd-amdhsa--gfx950"
.text
.globl {NAME}_kernel
.p2align 8
.type {NAME}_kernel,@function
{NAME}_kernel:
"""
    out += "\n".join(l if l.endswith(":") or l.startswith(".") else "    " + l for l in lines)
    out += f"""
.section .rodata,"a"
.p2align 6
.amdhsa_kernel {NAME}_kernel
  .amdhsa_next_free_vgpr 256
  .amdhsa_next_free_sgpr 100
  .amdhsa_accum_offset 256
  .amdhsa_group_segment_fixed_size 0
  .amdhsa_kernarg_size 120
  .amdhsa_user_sgpr_count 2
  .amdhsa_user_sgpr_kernarg_segment_ptr 1
  .amdhsa_system_sgpr_workgroup_id_x 1
  .amdhsa_float_denorm_mode_32 3
.end_amdhsa_kernel
"""
    return out, rep, errs

if __name__ == "__main__":
    opts = {}
    path = f"cdna_kernels/{NAME}.s"
    for arg in sys.argv[1:]:
        if arg.startswith("-o"): path = arg[2:]
        else:
            k, _, v = arg.partition("="); opts[k] = (int(v) if v.lstrip('-').isdigit() else v.replace('+', ' ')) if v else True
    out, rep, errs = build(**opts)
    open(path, "w").write(out)
    print(f"{path}: {out.count(chr(10))} lines, {len(rep)} nop sites, {sum(r[0] for r in rep)} states")
    if opts.get("verbose"):
        for r in rep: print("  nop", r)
    for e in errs: print("WAIT ERROR:", e)
```

```python
import sys, math, struct
from asmlib import Asm, insert_nops, check_waits

NAME = "adaLN_cond__grouped_kv_mqa__moe_arch_mod__prompt"
OPT = dict(stamps=False, force_slow=False, spin=1 << 17)

def f2u(x): return struct.unpack("<I", struct.pack("<f", x))[0]

WS_MODG = 0x1000
WS_KVF  = 0x9000
WS_XF   = 0x20000
WS_KV   = 0x40000
KVREC   = 5376
WS_OX   = 0x80000
WS_ST   = 0x300000
WS_WIN  = 0x380000
WS_H2   = 0x384000
WS_BASE = 0x3A0000
WS_ACT  = 0x3D0000
ASH = 7
WS_DBG  = 0x1000000
L_W    = 0
L_WKV  = 102400
L_R2   = 128000
L_MODV = 152576
L_MISC = 157696
L_SIL  = L_MISC
L_P0P  = L_MISC + 1280
L_LN   = L_MISC + 1536
L_CNT  = L_MISC + 2560
L_VEC  = L_MISC + 2816
L_YP   = L_MISC + 4608
L_AX   = L_WKV
L_AL   = L_WKV + 36864
L_AM   = L_AL + 2048
L_OXC  = L_AM + 2048
LDS_BYTES = 163840
assert L_OXC + 12288 <= L_MISC and L_YP + 256 <= LDS_BYTES
C_P0, C_GA, C_GB, C_ADONE, C_WO, C_PAIR, C_Y, C_P1, C_WC, C_BRD, C_KVS, C_KVR = 0, 4, 8, 12, 16, 20, 36, 40, 44, 48, 52, 56
L_Q = (L_MODV, L_WKV + 20480)
PAT = 232

X, WQ, WK, WV, WO, WR, WG, WU, WD, CC, WM, OUT, DBG, WS = (f"s[{i}:{i+1}]" for i in (8, 10, 12, 14, 16, 20, 22, 24, 26, 28, 30, 32, 34, 36))
def lo(p): return "s" + p[2:].split(":")[0]
def hi(p): return "s" + p[2:-1].split(":")[1]
sW, sW4, sWH, sRB, sCB, sTAG, sPASS, sGEN, sCG, sSPIN = (f"s{i}" for i in range(38, 48))
SRD = "s[48:51]"
T0, T1, T2 = "s[52:53]", "s[54:55]", "s[56:57]"
t0, t1, t2, t3, t4, t5 = (f"s{i}" for i in range(58, 64))
sSA, sC0, sWINR, sWINT, sSOFF, sLOOP, sTT, sKH, sGC, sBLK = (f"s{i}" for i in range(64, 74))
sP4, sP8 = "s82", "s83"
MK_N0, MK_LO, MK_A, MK_B = "s[74:75]", "s[76:77]", "s[78:79]", "s[80:81]"
OB0, OB1 = "s[84:85]", "s[86:87]"
sSTS, sSTL, sCAND, sLOCAL = "s88", "s89", "s90", "s91"
sNXT, sM2, sFR = "s92", "s93", "s97"
sST = 94
vL, vN, vG = "v1", "v2", "v3"
def vr(a, n=1): return f"v{a}" if n == 1 else f"v[{a}:{a+n-1}]"

a = Asm()
_uid = [0]
def uid(p):
    _uid[0] += 1; return f"{p}_{_uid[0]}"

def stamp(i):
    if not OPT["stamps"]: return
    if OPT.get("light") and i not in (31, 6, 7, 17): return
    a(f"""{"s_memtime" if OPT.get("clk") else "s_memrealtime"} s[{sST}:{sST+1}]
          s_waitcnt lgkmcnt(0)
          v_writelane_b32 v0, s{sST}, {i}""")

def endpgm():
    if OPT.get("padto"):
        L = uid("L_pad")
        a.label(L)
        a(f"""s_memrealtime s[4:5]
              s_waitcnt lgkmcnt(0)
              s_sub_u32 s4, s4, s98
              s_cmp_lt_u32 s4, {OPT["padto"]}
              s_cbranch_scc1 {L}""")
    if OPT["stamps"]:
        a(f"""s_mov_b64 exec, -1
              v_lshl_add_u32 v4, {vL}, 2, s{sST+2}
              global_store_dword v4, v0, {WS}""")
    if OPT.get("dbgstamps"):
        for wg, wave, base, ids in ((0, 0, 0, (31, 21, 3, 6, 7, 10, 12, 13)), (128, 4, 32, (31, 0, 6, 7, 8, 15, 16, 17))):
            L = uid("L_dbg")
            a(f"""s_cmp_lg_u32 s2, {wg}
                  s_cbranch_scc1 {L}
                  s_cmp_lg_u32 {sW}, {wave}
                  s_cbranch_scc1 {L}
                  v_mov_b32 v4, 0""")
            for i, k in enumerate(ids):
                a(f"""v_readlane_b32 {t0}, v0, {k}
                      s_and_b32 {t0}, {t0}, 0xfffff
                      v_mov_b32 v5, {t0}
                      global_store_dword v4, v5, {DBG} offset:{base + 4*i}""")
            a.label(L)
    a("s_endpgm")

def base_add(dst, src, off):
    a(f"s_add_u32 {lo(dst)}, {lo(src)}, {off}\ns_addc_u32 {hi(dst)}, {hi(src)}, 0")

def lds_signal(cnt, va, vb):
    a(f"""v_mov_b32 {va}, {cnt}
          v_mov_b32 {vb}, 1
          s_waitcnt lgkmcnt(0)
          s_mov_b64 exec, 1
          ds_add_u32 {va}, {vb} 
          s_mov_b64 exec, -1""")

def lds_wait(target, va, vb, sleep=0):
    L, E = uid("L_lw"), uid("L_lwe")
    a(f"s_mov_b32 {sSPIN}, {OPT['spin'] * 8}")
    a.label(L)
    a(f"""ds_read_b32 {vb}, {va}
          s_waitcnt lgkmcnt(0)
          v_readfirstlane_b32 {t5}, {vb}
          s_cmp_ge_u32 {t5}, {target}
          s_cbranch_scc1 {E}""")
    if sleep: a(f"s_sleep {sleep}")
    a(f"s_sub_u32 {sSPIN}, {sSPIN}, 1\ns_cbranch_scc0 {L}")
    a.label(E)

def poll(loads, bad, sleep=0, issued=False, first_wait=None):
    L, E, F = uid("L_pl"), uid("L_ple"), uid("L_plf")
    a(f"s_mov_b32 {sSPIN}, {OPT['spin']}")
    if issued: a(f"s_waitcnt vmcnt({first_wait or 0})\ns_branch {F}")
    a.label(L)
    a(loads)
    a("s_waitcnt vmcnt(0)")
    if issued: a.label(F)
    a(bad)
    a(f"s_cbranch_vccz {E}")
    if sleep: a(f"s_sleep {sleep}")
    a(f"s_sub_u32 {sSPIN}, {sSPIN}, 1\ns_cbranch_scc0 {L}")
    a.label(E)

def peer_store(stores):
    G, E = uid("L_psg"), uid("L_pse")
    a(f"s_cmp_eq_u32 {sLOCAL}, 0\ns_cbranch_scc1 {G}")
    a(stores.replace(" @", ""))
    a(f"s_branch {E}")
    a.label(G)
    a(stores.replace(" @", " sc1"))
    a.label(E)

def unpack(dlo, dhi, src):
    a(f"v_lshlrev_b32 {dlo}, 16, {src}\nv_and_b32 {dhi}, 0xffff0000, {src}")

def w_dma_patterns(dst):
    for i in range(5):
        d = vr(dst + i)
        a(f"""v_add_u32 v4, {64*i}, {vL}
              v_mul_u32_u24 v5, 6554, v4
              v_lshrrev_b32 v5, 16, v5
              v_mul_u32_u24 v6, 10, v5
              v_sub_u32 v6, v4, v6
              v_and_b32 v7, 12, v5
              v_lshlrev_b32 v7, 1, v7
              v_and_or_b32 v7, v5, 3, v7
              v_lshrrev_b32 v5, 2, v5
              v_and_or_b32 v7, v5, 4, v7
              v_mul_u32_u24 v7, 1280, v7
              v_lshl_add_u32 {d}, v6, 4, v7""")

def w_unit_base(src, unit, base, lds):
    a(f"""s_mul_i32 {t0}, {unit}, 40960
          s_mul_i32 {t1}, {sCB}, 160
          s_add_u32 {t0}, {t0}, {t1}
          s_add_u32 {lo(base)}, {lo(src)}, {t0}
          s_addc_u32 {hi(base)}, {hi(src)}, 0
          s_mul_i32 {lds}, {unit}, 5120""")
def w_piece(base, lds, k):
    return f"s_add_u32 m0, {lds}, {L_W + k*1024}\ns_nop 0\nglobal_load_lds_dwordx4 {vr(PAT + k % 5)}, {base}"

def mod_dma(slice_):
    a(f"""v_lshrrev_b32 v10, 1, {vL}
          s_mul_i32 {t1}, {sW4}, 160
          v_add_u32 v10, {t1}, v10
          v_mul_u32_u24 v10, 7680, v10
          v_and_b32 v11, 1, {vL}
          v_lshl_add_u32 v10, v11, 4, v10
          s_lshl_b32 {t1}, {slice_}, 5
          v_add_u32 v10, {t1}, v10
          s_mul_i32 {t2}, {sW4}, 5120
          s_add_u32 {t2}, {t2}, {L_WKV}""")
def mod_dma_issue(rot=True):
    for i in range(5):
        a(f"""s_add_u32 {t0}, {sCB if rot else 0}, {i}
              s_cmp_ge_u32 {t0}, 5
              s_cselect_b32 {t1}, 5, 0
              s_sub_u32 {t0}, {t0}, {t1}
              s_lshl_b32 {t1}, {t0}, 10
              s_mul_i32 {t0}, {t0}, 245760
              s_add_u32 m0, {t2}, {t1}
              v_add_u32 v11, {t0}, v10
              global_load_lds_dwordx4 v11, {WM}""")

def mod_reads(S, W):
    a(f"""s_mul_i32 {t0}, {sW4}, 320
          s_add_u32 {t0}, {t0}, {L_SIL}
          v_lshl_add_u32 v4, {vG}, 4, {t0}
          v_lshlrev_b32 v5, 8, {vG}
          v_lshl_add_u32 v5, {vN}, 3, v5
          s_mul_i32 {t0}, {sW4}, 5120
          s_add_u32 {t0}, {t0}, {L_WKV}
          v_add_u32 v5, {t0}, v5""")
    sil = [f"ds_read_b128 {vr(S+4*i,4)}, v4 offset:{64*i}" for i in range(5)]
    wr = [f"ds_read_b64_tr_b16 {vr(W+4*i+2*j,2)}, v5 offset:{1024*i+128*j}" for i in range(5) for j in range(2)]
    return "\n".join(sil), "\n".join(wr)

def mod_finish(S, W, D, slice_, cnt, done, counted, scale0):
    for i in range(5):
        if counted: a(f"s_waitcnt lgkmcnt({8-2*i})")
        a(f"v_mfma_f32_16x16x32_bf16 {vr(D,4)}, {vr(W+4*i,4)}, {vr(S+4*i,4)}, {'0' if i == 0 else vr(D,4)}")
    fin = uid("L_mf")
    a(f"""s_lshl_b32 {t0}, {sW4}, 6
          s_add_u32 {t0}, {t0}, {L_P0P}
          v_lshl_add_u32 v6, {vG}, 4, {t0}
          s_cmp_eq_u32 {sW4}, 0
          s_cbranch_scc1 {fin}
          ds_write_b128 v6, {vr(D,4)}""")
    lds_signal(L_CNT + cnt, "v4", "v5")
    a(f"s_branch {done}")
    a.label(fin)
    a(f"""v_mov_b32 v4, {L_CNT + cnt}
          s_lshl_b32 {t0}, {slice_}, 7
          s_add_u32 {t0}, {t0}, {WS_MODG}
          v_lshl_add_u32 v7, {vG}, 4, {t0}
          v_lshl_add_u32 v7, {vN}, 6, v7
          v_mov_b32 {vr(S+13)}, {sTAG}
          v_mov_b32 {vr(S+15)}, {sTAG}""")
    lds_wait(3, "v4", "v5")
    a(f"""ds_read_b128 {vr(S,4)}, v6 offset:64
          ds_read_b128 {vr(S+4,4)}, v6 offset:128
          ds_read_b128 {vr(S+8,4)}, v6 offset:192
          s_mov_b32 {lo(T0)}, 0x00030003
          s_mov_b32 {hi(T0)}, 0x00030003
          s_sub_u32 {t0}, {slice_}, {scale0}
          s_cmp_lt_u32 {t0}, 40
          s_waitcnt lgkmcnt(0)
          v_pk_add_f32 {vr(D,2)}, {vr(D,2)}, {vr(S,2)}
          v_pk_add_f32 {vr(D+2,2)}, {vr(D+2,2)}, {vr(S+2,2)}
          v_pk_add_f32 {vr(S+4,2)}, {vr(S+4,2)}, {vr(S+8,2)}
          v_pk_add_f32 {vr(S+6,2)}, {vr(S+6,2)}, {vr(S+10,2)}
          v_pk_add_f32 {vr(D,2)}, {vr(D,2)}, {vr(S+4,2)}
          v_pk_add_f32 {vr(D+2,2)}, {vr(D+2,2)}, {vr(S+6,2)}
          v_cvt_pk_bf16_f32 {vr(S+12)}, {vr(D)}, {vr(D+1)}
          v_cvt_pk_bf16_f32 {vr(S+14)}, {vr(D+2)}, {vr(D+3)}
          s_cbranch_scc0 {fin}_s""")
    unpack(vr(D), vr(D+1), vr(S+12)); unpack(vr(D+2), vr(D+3), vr(S+14))
    a(f"""v_pk_add_f32 {vr(D,2)}, {vr(D,2)}, 1.0 op_sel_hi:[1,0]
          v_pk_add_f32 {vr(D+2,2)}, {vr(D+2,2)}, 1.0 op_sel_hi:[1,0]
          v_cvt_pk_bf16_f32 {vr(S+12)}, {vr(D)}, {vr(D+1)}
          v_cvt_pk_bf16_f32 {vr(S+14)}, {vr(D+2)}, {vr(D+3)}""")
    a.label(fin + "_s")
    a(f"""s_mov_b64 exec, {T0}
          global_store_dwordx4 v7, {vr(S+12,4)}, {WS} sc1
          s_mov_b64 exec, -1""")

def x_dma():
    a(f"s_mul_i32 {t2}, {sW}, 10240")
    for s in range(10):
        a(f"s_add_u32 m0, {t2}, {L_W + 960*s}\nglobal_load_lds_dwordx4 v8, {X} offset:{64*s}")

def swz(dst, q, tmp):
    a(f"""v_lshrrev_b32 {dst}, 1, {q}
          v_xor_b32 {tmp}, {q}, {dst}
          v_and_b32 {tmp}, 1, {tmp}
          v_lshl_or_b32 {dst}, {tmp}, 1, {dst}""")

XR, NR, KVA, KVW = 16, 56, 136, 144
A_XRD, A_LNW, A_LNR, A_KVW, A_PO1, A_PO2 = (f"v{i}" for i in range(184, 190))
def prologue():
    a(f"""s_cmp_ge_u32 s2, 256
          s_cbranch_scc1 L_exit
          {"s_memrealtime s[98:99]" if OPT.get("padto") else ""}
          s_load_dwordx16 s[8:23], s[0:1], 0
          s_load_dwordx8 s[24:31], s[0:1], 64
          s_load_dwordx4 s[32:35], s[0:1], 96
          s_load_dwordx2 s[36:37], s[0:1], 112
          v_and_b32 {vL}, 63, v0
          v_lshrrev_b32 v4, 6, v0
          v_and_b32 {vN}, 15, v0
          v_readfirstlane_b32 {sW}, v4
          v_lshrrev_b32 {vG}, 4, {vL}
          s_and_b32 {t0}, s2, 7
          s_lshr_b32 {t1}, s2, 3
          s_and_b32 {sCB}, {t1}, 7
          s_lshr_b32 {t1}, {t1}, 3
          s_lshl_b32 {t2}, {t0}, 2
          s_add_u32 {sRB}, {t2}, {t1}
          s_lshl_b32 {t3}, {t1}, 5
          s_add_u32 {t3}, {t3}, {t2}
          s_add_u32 {sP4}, {t3}, {sCB}
          s_lshl_b32 {sP8}, {t0}, 3
          s_or_b32 {sP8}, {sP8}, {sCB}
          s_and_b32 {t2}, s2, 0xc0
          s_or_b32 {sP8}, {sP8}, {t2}
          s_and_b32 {sW4}, {sW}, 3
          s_lshr_b32 {sWH}, {sW}, 2
          s_and_b32 {sTT}, {sW}, 1
          s_lshr_b32 {sKH}, {sW4}, 1
          s_lshl_b32 {sBLK}, {sRB}, 3
          s_add_u32 {sBLK}, {sBLK}, {sCB}
          v_min_u32 v9, 19, {vL}
          s_lshl_b32 {t0}, {sRB}, 6
          s_lshl_b32 {t1}, {sWH}, 5
          s_add_u32 {t0}, {t0}, {t1}
          s_lshl_b32 {t1}, {sTT}, 4
          s_add_u32 {t0}, {t0}, {t1}
          v_lshrrev_b32 v8, 2, {vL}
          v_add_u32 v8, {t0}, v8
          v_mul_u32_u24 v8, 1280, v8""")
    swz("v4", vG, "v5")
    a(f"""v_xor_b32 v4, v4, {vL}
          v_and_b32 v4, 3, v4
          s_mul_i32 {t1}, {sKH}, 640
          v_lshl_add_u32 v8, v4, 4, v8
          v_add_u32 v8, {t1}, v8""")
    if OPT["stamps"]:
        a(f"""s_lshl_b32 s{sST+2}, s2, 3
              s_add_u32 s{sST+2}, s{sST+2}, {sW}
              s_lshl_b32 s{sST+2}, s{sST+2}, 8
              s_add_u32 s{sST+2}, s{sST+2}, {WS_DBG}
              v_mov_b32 v0, 0""")
        stamp(31)
    a(f"""s_cmp_lg_u32 {sWH}, 0
          s_cbranch_scc1 L_proQ
          s_setprio 2
          v_mov_b32 v4, 0
          v_lshlrev_b32 v5, 2, {vN}
          v_add_u32 v5, {L_CNT}, v5
          ds_write_b32 v5, v4
          s_mul_i32 {t0}, {sCB}, 80
          s_mul_i32 {t1}, {sW4}, 20
          s_add_u32 {t0}, {t0}, {t1}
          v_add_u32 v9, {t0}, v9
          v_mul_u32_u24 v9, 7680, v9
          s_lshl_b32 {t3}, {t3}, 5
          v_add_u32 v9, {t3}, v9
          v_min_u32 v102, 39, {vL}
          s_mul_i32 {t0}, {sW4}, 320
          v_lshl_add_u32 v102, v102, 3, {t0}""")
    mod_dma(sP4)
    a(f"""s_waitcnt lgkmcnt(0)
          global_load_dword v103, v9, {WM}
          s_load_dword {sTAG}, {WS}, 0
          s_cmp_ge_u32 {sCB}, 4
          s_cbranch_scc1 L_proK
          global_load_dwordx2 v[100:101], v102, {CC}""")
    if OPT.get("mfirst"): mod_dma_issue(False)
    a("s_barrier")
    if not OPT.get("mfirst"): mod_dma_issue(False)
    a("s_branch L_prox")
    a.label("L_proK")
    a("s_barrier\ns_branch L_prox")
    a.label("L_proQ")
    a(f"""s_setprio 1
          s_mul_i32 {t0}, {sBLK}, 10240
          s_mul_i32 {t1}, {sW4}, 2560
          s_add_u32 {t0}, {t0}, {t1}
          v_lshl_add_u32 v9, v9, 7, {t0}
          s_waitcnt lgkmcnt(0)
          global_load_dword v103, v9, {X}
          s_load_dword {sTAG}, {WS}, 0
          s_barrier""")
    a.label("L_prox")
    x_dma()
    a(f"""s_cmp_eq_u32 {sWH}, 0
          s_cbranch_scc1 L_setup
          s_cmp_lt_u32 {sCB}, 4
          s_cbranch_scc1 L_nowkv
          s_bitcmp1_b32 {sCB}, 0
          s_cselect_b64 {T0}, {WV}, {WK}
          v_lshlrev_b32 v10, 4, {vL}
          s_mul_i32 {t0}, {sW4}, 7""")
    for i in range(7):
        a(f"""s_add_u32 {t1}, {t0}, {i}
              s_min_u32 {t1}, {t1}, 24
              s_lshl_b32 {t1}, {t1}, 10
              s_add_u32 m0, {t1}, {L_WKV}
              v_add_u32 v11, {t1}, v10
              global_load_lds_dwordx4 v11, {T0}""")
    a.label("L_nowkv")
    a(f"""s_lshr_b32 {t0}, s2, 3
          s_mul_i32 {t0}, {t0}, 25600
          s_mul_i32 {t1}, {sW4}, 6400
          s_add_u32 {t0}, {t0}, {t1}
          v_min_u32 v10, 49, {vL}
          v_lshl_add_u32 v10, v10, 7, {t0}
          global_load_dword v190, v10, {WQ}
          s_and_b32 {t0}, {sCB}, 3
          s_lshl_b32 {t0}, {t0}, 2
          s_add_u32 {t0}, {t0}, {sW4}
          s_mul_i32 {t0}, {t0}, 384
          s_min_u32 {t0}, {t0}, {KVREC - 384}
          s_mul_i32 {t1}, {sRB}, {KVREC}
          s_add_u32 {t0}, {t0}, {t1}
          s_add_u32 {t0}, {t0}, {WS_KV}
          v_lshl_add_u32 v9, {vL}, 7, {t0}
          s_lshl_b32 {t0}, {sBLK}, 7
          s_add_u32 {t0}, {t0}, {WS_KVF}
          v_mov_b32 v10, {t0}
          v_cmp_gt_u32 vcc, 3, {vL}
          v_cndmask_b32 v9, v10, v9, vcc
          global_load_dword v191, v9, {WS} sc1""")
    a.label("L_setup")
    stamp(0)
    setup()
    a(f"""s_waitcnt lgkmcnt(0)
          s_mul_i32 {sTAG}, {sTAG}, 1664525
          s_add_u32 {sTAG}, {sTAG}, 1013904223
          v_mov_b32 v238, {sTAG}
          s_cmp_lg_u32 {sWH}, 0
          s_cbranch_scc1 L_xwQ
          s_cmp_ge_u32 {sCB}, 4
          s_cbranch_scc1 L_xw0""")
    sil, wr = mod_reads(56, 76)
    a("s_waitcnt vmcnt(15)")
    unpack("v56", "v57", "v100"); unpack("v58", "v59", "v101")
    for i in range(4): a(f"v_mul_f32 v{60+i}, {hex(f2u(-math.log2(math.e)))}, v{56+i}")
    for i in range(4): a(f"v_exp_f32 v{60+i}, v{60+i}")
    for i in range(4): a(f"v_add_f32 v{60+i}, 1.0, v{60+i}")
    for i in range(4): a(f"v_rcp_f32 v{60+i}, v{60+i}")
    for i in range(4): a(f"v_mul_f32 v{60+i}, v{56+i}, v{60+i}")
    a(f"""v_cvt_pk_bf16_f32 v100, v60, v61
          v_cvt_pk_bf16_f32 v101, v62, v63
          v_add_u32 v102, {L_SIL}, v102
          ds_write_b64 v102, v[100:101]
          s_waitcnt lgkmcnt(0)""")
    a(sil)
    a("s_waitcnt vmcnt(10)")
    stamp(20)
    a(wr)
    mod_finish(56, 76, 96, sP4, C_P0, "L_xw0", True, 40)
    stamp(21)
    a("s_waitcnt vmcnt(1)\ns_branch L_ln")
    a.label("L_xwQ")
    a(f"""s_waitcnt vmcnt(9)
          s_cmp_ge_u32 {sCB}, 4
          s_cbranch_scc1 L_ln
          s_waitcnt vmcnt(2)
          s_branch L_ln""")
    a.label("L_xw0")
    a("s_waitcnt vmcnt(0)")

def setup():
    w_dma_patterns(PAT)
    a(f"""v_cmp_eq_u32 {MK_N0}, 0, {vN}
          s_mov_b32 {lo(MK_LO)}, -1
          s_mov_b32 {hi(MK_LO)}, 0
          s_lshl_b32 {sGC}, {sWH}, 2
          s_add_u32 {sGC}, {sGC}, {L_CNT + C_GA}
          s_getreg_b32 {sLOCAL}, hwreg(HW_REG_XCC_ID)
          v_mov_b32 v239, {sLOCAL}
          s_and_b32 {t0}, s2, 7
          s_lshl_b32 {t0}, {t0}, 2
          s_and_b32 {t1}, {sCB}, 3
          s_or_b32 {t0}, {t0}, {t1}
          s_and_b32 {t1}, s2, 0xe0
          s_or_b32 {sFR}, {t0}, {t1}""")
    attn_setup()
    a(f"v_lshrrev_b32 v6, 2, {vN}")
    swz("v4", "v6", "v5")
    a(f"""v_xor_b32 v4, v4, {vG}
          v_lshlrev_b32 v4, 4, v4
          v_lshl_add_u32 v4, {vN}, 6, v4
          s_mul_i32 {t0}, {sW}, 10240
          v_add_u32 {A_XRD}, {t0}, v4
          v_cmp_eq_u32 {OB0}, v6, {vG}
          s_lshl_b32 {t0}, {sW}, 7
          s_add_u32 {t0}, {t0}, {L_LN}
          v_lshl_add_u32 {A_LNW}, {vN}, 3, {t0}
          s_lshl_b32 {t1}, {sKH}, 8
          s_sub_u32 {t0}, {t0}, {t1}
          v_lshl_add_u32 {A_LNR}, {vN}, 3, {t0}
          v_lshl_add_u32 v4, {vG}, 3, v6
          v_mul_u32_u24 v5, 40, v4
          v_and_b32 v4, 3, {vN}
          v_cmp_eq_u32 {OB1}, 1, v4
          v_cmp_eq_u32 {T1}, 2, v4
          v_cmp_eq_u32 {T2}, 3, v4
          v_lshlrev_b32 v4, 3, v4
          s_bitcmp1_b32 {sCB}, 1
          s_cselect_b64 vcc, -1, 0
          v_cndmask_b32 v4, v4, 32, vcc
          s_mul_i32 {t0}, {sKH}, 12800
          s_add_u32 {t0}, {t0}, {L_WKV}
          v_add3_u32 {A_KVW}, v5, v4, {t0}
          v_mul_u32_u24 v8, 40, {vL}
          s_mul_i32 {t0}, {sKH}, 51200
          v_add_u32 v8, {t0}, v8
          s_mul_i32 {t0}, {sKH}, 1280
          s_add_u32 {t0}, {t0}, {L_MODV}
          v_lshl_add_u32 v10, {vG}, 5, {t0}
          s_lshl_b32 {t0}, {sWH}, 10
          s_add_u32 {t0}, {t0}, 2048
          s_mul_i32 {t0}, {t0}, {sTT}
          s_lshl_b32 {t1}, {sWH}, 12
          s_add_u32 {t0}, {t0}, {t1}
          s_lshl_b32 {t1}, {sKH}, 10
          s_add_u32 {t0}, {t0}, {t1}
          s_add_u32 {t0}, {t0}, {L_R2 + 10240}
          v_add_u32 v9, {t0}, {vKA}
          v_lshl_add_u32 v4, {sW}, 6, {vL}
          v_lshrrev_b32 v14, 2, v4
          v_lshlrev_b32 v14, 7, v14
          v_and_b32 v5, 3, v4
          v_lshl_add_u32 v14, v5, 4, v14
          v_add_u32 v14, {WS_MODG}, v14
          v_lshlrev_b32 v15, 4, v4
          v_add_u32 v15, {L_MODV}, v15
          v_mov_b64 v[188:189], 0
          v_mov_b32 v11, 0
          v_mov_b32 v237, 0
          s_cmp_eq_u32 {sWH}, 0
          s_cbranch_scc1 L_setupE""")
    a(f"""v_lshl_add_u32 v7, {sTT}, 4, {vN}
          v_lshrrev_b32 v4, 1, {vG}
          v_and_b32 v5, 1, {vG}
          s_mov_b64 {MK_A}, -1
          s_mov_b64 {MK_B}, 0
          v_mov_b32 v12, 0x3f803f80
          v_mov_b32 v13, 0x3f803f80
          s_bitcmp1_b32 {sCB}, 0
          s_cbranch_scc1 L_kvaV
          s_bitcmp1_b32 {sCB}, 1
          s_cbranch_scc1 L_kvaKr
          s_lshl_b32 {t0}, {sKH}, 10
          v_lshl_add_u32 v11, v4, 9, {t0}
          v_lshl_add_u32 v11, v7, 4, v11
          v_lshl_add_u32 v11, v5, 3, v11
          s_branch L_kvaE""")
    a.label("L_kvaKr")
    a(f"""s_lshl_b32 {t0}, {sKH}, 3
          s_add_u32 {t0}, {t0}, 2048
          v_lshl_add_u32 v11, v7, 4, {t0}
          v_lshlrev_b32 v4, 3, {vN}
          v_add_u32 v4, 2560, v4
          s_mov_b64 {MK_B}, 0x30000
          s_mov_b64 {MK_A}, 0x3ffff
          v_cndmask_b32 v11, v11, v4, {MK_B}
          v_mov_b32 v13, 0x3f80
          s_branch L_kvaE""")
    a.label("L_kvaV")
    a(f"""s_mul_i32 {t0}, {sW4}, 672
          s_add_u32 {t0}, {t0}, 2688
          v_mul_u32_u24 v11, 336, v4
          v_lshl_add_u32 v11, {vN}, 4, v11
          v_lshl_add_u32 v11, v5, 3, v11
          v_add_u32 v11, {t0}, v11
          s_bitcmp1_b32 {sCB}, 1
          s_cbranch_scc0 L_kvaE
          v_add_u32 v11, 256, v11
          v_cmp_ge_u32 {MK_A}, 4, {vN}
          v_cmp_eq_u32 {MK_B}, 4, {vN}""")
    a.label("L_kvaE")
    a(f"""s_mul_i32 {t0}, {sRB}, {KVREC}
          s_add_u32 {t0}, {t0}, {WS_KV}
          v_add_u32 v11, {t0}, v11
          s_lshl_b32 {t0}, {sBLK}, 7
          s_add_u32 {t0}, {t0}, {WS_KVF}
          v_lshl_add_u32 v237, {vL}, 3, {t0}
          s_lshl_b32 {t0}, {sRB}, 2
          s_add_u32 {t0}, {t0}, {sW4}
          s_mul_i32 {t0}, {t0}, 20480
          s_mul_i32 {t1}, {sCB}, 2560
          s_add_u32 {t0}, {t0}, {t1}
          s_add_u32 {t0}, {t0}, {WS_OX}
          v_add_u32 {A_PO1}, {t0}, {vKA}
          s_lshl_b32 {t0}, {sRB}, 1
          s_add_u32 {t0}, {t0}, {sTT}
          s_mul_i32 {t1}, {t0}, 1280
          s_mul_i32 {t2}, {sCB}, 160
          s_add_u32 {t1}, {t1}, {t2}
          s_lshl_b32 {t2}, {t1}, 1
          s_add_u32 {t1}, {t1}, {WS_H2}
          s_add_u32 {t2}, {t2}, {WS_BASE - 160}
          v_min_u32 v4, 29, {vL}
          v_mov_b32 v5, {t1}
          v_mov_b32 v6, {t2}
          v_cmp_gt_u32 vcc, 10, v4
          s_lshl_b32 {t0}, {sP8}, {ASH}
          s_add_u32 {t0}, {t0}, {WS_ACT}
          v_cndmask_b32 v5, v6, v5, vcc
          v_lshl_add_u32 v5, v4, 4, v5
          v_mov_b32 v6, {t0}
          s_cmp_lg_u32 {sKH}, 0
          s_cselect_b64 vcc, -1, 0
          v_cndmask_b32 {A_PO2}, v5, v6, vcc
          v_mov_b32 v192, -1
          v_mov_b32 v193, -1
          v_mov_b32 v194, -1
          v_mov_b32 v195, -1""")
    a.label("L_setupE")
    for i in range(4): a(f"v_mov_b32 v{136+i}, 0x3f803f80")

def layernorm1():
    a.label("L_ln")
    stamp(1)
    for s in range(10): a(f"ds_read_b128 {vr(XR+4*s,4)}, {A_XRD} offset:{L_W + 1024*s}")
    a(f"s_lshl_b32 {t3}, {sW}, 1")
    w_unit_base(WQ, t3, T0, t2)
    for s in range(10):
        c1, c2 = ("0", "0") if s == 0 else ("v[140:143]", "v[144:147]")
        a(f"s_waitcnt lgkmcnt({9-s})")
        a(f"v_mfma_f32_16x16x32_bf16 v[140:143], v[136:139], {vr(XR+4*s,4)}, {c1}")
        a(f"v_mfma_f32_16x16x32_bf16 v[144:147], {vr(XR+4*s,4)}, {vr(XR+4*s,4)}, {c2}")
        unpack(vr(NR+8*s), vr(NR+8*s+1), vr(XR+4*s))
        if s >= 5: a(w_piece(T0, t2, s - 5))
    for s in range(3): unpack(vr(NR+8*s+2), vr(NR+8*s+3), vr(XR+4*s+1))
    base_add(T0, T0, 40960)
    a(f"""v_cndmask_b32 v141, v144, v145, {OB1}
          v_cndmask_b32 v141, v141, v146, {T1}
          v_cndmask_b32 v141, v141, v147, {T2}
          s_mov_b64 exec, {OB0}
          ds_write_b64 {A_LNW}, v[140:141]
          s_mov_b64 exec, -1""")
    for s in range(3, 10): unpack(vr(NR+8*s+2), vr(NR+8*s+3), vr(XR+4*s+1))
    a(f"""s_waitcnt vmcnt(7) lgkmcnt(0)
          s_barrier
          ds_read_b64 v[4:5], {A_LNR}
          ds_read_b64 v[6:7], {A_LNR} offset:256""")
    for s in range(10):
        unpack(vr(NR+8*s+4), vr(NR+8*s+5), vr(XR+4*s+2)); unpack(vr(NR+8*s+6), vr(NR+8*s+7), vr(XR+4*s+3))
        if s % 2: a(w_piece(T0, t2, 5 + s // 2))
    a(f"""s_waitcnt lgkmcnt(0)
          v_pk_add_f32 v[4:5], v[4:5], v[6:7]
          v_mul_f32 v4, {hex(f2u(-1/640))}, v4
          v_mul_f32 v5, {hex(f2u(1/640))}, v5
          v_fma_f32 v5, -v4, v4, v5
          v_max_f32 v5, 0, v5
          v_add_f32 v5, {hex(f2u(1e-5))}, v5
          v_rsq_f32 v6, v5
          s_add_u32 {t3}, {sW4}, 16
          v_mul_f32 v4, v4, v6""")
    w_unit_base(WQ, t3, T0, t2)
    a(f"s_cmp_eq_u32 {sWH}, 0\ns_cbranch_scc1 L_nrmA")
    for grp in "BA":
        if grp == "A": a.label("L_nrmA")
        for s in range(10):
            for j in range(2): a(f"ds_read_b64_tr_b16 {vr(KVW+4*s+2*j,2)}, {A_KVW} offset:{s*1280 + j*160}")
            for i in range(4):
                r = NR + 8*s + 2*i
                a(f"v_pk_fma_f32 {vr(r,2)}, {vr(r,2)}, v[6:7], v[4:5] op_sel_hi:[1,0,0]")
            if grp == "B":
                if s < 5: a(w_piece(T0, t2, s))
                elif s < 8: a(f"global_store_dwordx4 {A_PO1}, v[192:195], {WS} offset:{(0, 1024, 1536)[s-5]} sc1")
                elif s == 8: a(f"global_store_dwordx4 {A_PO2}, v[192:195], {WS} sc1")
        if grp == "B": a("s_branch L_nrmE")
    a.label("L_nrmE")

QAC, QW = 96, (56, 76, 116)
def wq_read(k):
    s, t = divmod(k, 5)
    return "\n".join(f"ds_read_b64_tr_b16 {vr(QW[s % 3]+4*t+2*j,2)}, v8 offset:{s*5120 + j*2560 + 8*t}" for j in range(2))
def as_reads(s):
    r = (184, 200, 216)[s % 3]
    return "\n".join([f"ds_read_b128 {vr(r,4)}, v10 offset:{2560 + s*128}", f"ds_read_b128 {vr(r+8,4)}, v10 offset:{s*128}",
                      f"ds_read_b128 {vr(r+4,4)}, v10 offset:{2560 + s*128 + 16}", f"ds_read_b128 {vr(r+12,4)}, v10 offset:{s*128 + 16}"])
def group_sync(va, vb):
    a(f"s_add_u32 {sGEN}, {sGEN}, 4")
    lds_signal(sGC, va, vb)
    return lambda: lds_wait(sGEN, va, vb)

QD = 7
def qkv():
    stamp(2)
    a(f"s_cmp_ge_u32 {sW}, 5\ns_cbranch_scc1 L_modok")
    poll(f"global_load_dwordx4 v[16:19], v14, {WS} sc1",
         f"v_cmp_ne_u32 vcc, {sTAG}, v17\nv_cmp_ne_u32 {T0}, {sTAG}, v19\ns_or_b64 vcc, vcc, {T0}")
    unpack("v20", "v21", "v16"); unpack("v22", "v23", "v18")
    a("ds_write_b128 v15, v[20:23]")
    a.label("L_modok")
    a("s_waitcnt vmcnt(0) lgkmcnt(0)\ns_barrier")
    stamp(3)
    a(as_reads(0)); a(as_reads(1))
    a(f"""s_cmp_lg_u32 {sW}, 7
          s_cbranch_scc1 L_noxf
          s_lshl_b32 {t0}, {sBLK}, 7
          s_add_u32 {t0}, {t0}, {WS_XF}
          v_lshl_add_u32 v4, {vL}, 3, {t0}
          s_mov_b64 exec, 0xffff
          global_store_dwordx2 v4, v[238:239], {WS} sc1
          s_mov_b64 exec, -1""")
    a.label("L_noxf")
    a(f"""s_add_u32 {sM2}, {sP4}, 128
          s_cmp_lt_u32 {sCB}, 4
          s_cselect_b32 {sCG}, {sWH}, 0
          s_cmp_lt_u32 {sM2}, 240
          s_cselect_b32 {sCG}, {sCG}, 0
          s_cmp_eq_u32 {sCG}, 0
          s_cbranch_scc1 L_nom2
          v_mov_b32 v14, v10""")
    mod_dma(sM2)
    mod_dma_issue()
    a("v_mov_b32 v10, v14")
    a.label("L_nom2")
    a(f"s_bitcmp1_b32 {sCB}, 0\ns_cbranch_scc1 L_hV")
    for typ in "KV":
        if typ == "V": a.label("L_hV")
        for s in range(10):
            r, h = (184, 200, 216)[s % 3], XR + 4 * s
            if s < 8: a(as_reads(s + 2))
            a(f"s_waitcnt lgkmcnt({8 if s < 8 else (4 if s == 8 else 0)})")
            for i in range(4):
                a(f"v_pk_fma_f32 {vr(NR+8*s+2*i,2)}, {vr(NR+8*s+2*i,2)}, {vr(r+2*i,2)}, {vr(r+8+2*i,2)}")
                if i == 1 and s > 0:
                    A, B = vr(KVW+4*(s-1), 4), vr(h-4, 4)
                    if typ == "V": A, B = B, A
                    a(f"v_mfma_f32_16x16x32_bf16 {vr(KVA,4)}, {A}, {B}, {'0' if s == 1 else vr(KVA,4)}")
            for i in range(4):
                a(f"v_cvt_pk_bf16_f32 {vr(h+i)}, {vr(NR+8*s+2*i)}, {vr(NR+8*s+2*i+1)}")
        A, B = vr(KVW+36, 4), vr(XR+36, 4)
        if typ == "V": A, B = B, A
        a(f"v_mfma_f32_16x16x32_bf16 {vr(KVA,4)}, {A}, {B}, {vr(KVA,4)}")
        if typ == "K": a("s_branch L_hdone")
    a.label("L_hdone")
    stamp(4)
    a(f"""s_mul_i32 {t2}, {sWH}, 10240
          s_add_u32 {t2}, {t2}, {L_R2}
          s_lshl_b32 {t0}, {sTT}, 11
          s_mul_i32 {t1}, {sTT}, 3072
          s_add_u32 {t1}, {t1}, 4096
          s_cmp_eq_u32 {sKH}, 0
          s_cselect_b32 {t3}, {t0}, {t1}
          s_cselect_b32 {t1}, {t1}, {t0}
          ds_write_b128 v9, {vr(KVA,4)}
          s_add_u32 {t3}, {t3}, {t2}
          s_add_u32 {t1}, {t1}, {t2}
          v_add_u32 v4, {t3}, {vKA}
          v_add_u32 v5, {t1}, {vKA}
          s_cmp_lg_u32 {sWH}, 0
          s_cbranch_scc1 L_kvB""")
    for k in range(QD): a(wq_read(k))
    a(f"s_waitcnt lgkmcnt({2*QD})\ns_barrier\ns_branch L_kvE")
    a.label("L_kvB")
    a(f"""s_waitcnt lgkmcnt(0)
          s_barrier
          s_cmp_lt_u32 {sCB}, 4
          s_cbranch_scc1 L_kvB2
          s_setprio 3
          ds_read_b128 v[136:139], v4
          ds_read_b128 v[140:143], v4 offset:1024
          s_waitcnt lgkmcnt(0)
          v_pk_add_f32 v[136:137], v[136:137], v[140:141]
          v_pk_add_f32 v[138:139], v[138:139], v[142:143]
          v_cvt_pk_bf16_f32 v14, v136, v137
          v_cvt_pk_bf16_f32 v15, v138, v139
          v_cndmask_b32 v14, v14, v12, {MK_B}
          v_cndmask_b32 v15, v15, v13, {MK_B}
          s_mov_b64 exec, {MK_A}
          global_store_dwordx2 v11, v[14:15], {WS} sc1
          s_mov_b64 exec, 1
          v_mov_b32 v12, {L_CNT + C_KVS}
          v_mov_b32 v13, 1""")
    stamp(37)
    a(f"""s_waitcnt vmcnt(0)
          ds_add_rtn_u32 v13, v12, v13
          s_waitcnt lgkmcnt(0)
          v_readfirstlane_b32 {t0}, v13
          s_mov_b64 exec, 0xffff
          s_cmp_lg_u32 {t0}, 3
          s_cbranch_scc1 L_nokf
          global_store_dwordx2 v237, v[238:239], {WS} sc1""")
    a.label("L_nokf")
    a("s_mov_b64 exec, -1\ns_setprio 1")
    stamp(5)
    a.label("L_kvB2")
    for k in range(QD): a(wq_read(k))
    a.label("L_kvE")
    stamp(26)
    for k in range(50):
        s, t = divmod(k, 5)
        if k % 2 == 0: a(f"s_waitcnt lgkmcnt({2 * min(QD - 2, 48 - k)})")
        a(f"v_mfma_f32_16x16x32_bf16 {vr(QAC+4*t,4)}, {vr(QW[s % 3]+4*t,4)}, {vr(XR+4*s,4)}, {'0' if s == 0 else vr(QAC+4*t,4)}")
        if k + QD < 50: a(wq_read(k + QD))
    stamp(27)
    a(f"""s_mul_i32 {sNXT}, {sWH}, {L_Q[0] - L_Q[1]}
          s_sub_u32 {sNXT}, {L_Q[0]}, {sNXT}
          v_mul_u32_u24 v6, 1280, {vG}
          v_add_u32 v6, {sNXT}, v6
          v_lshl_add_u32 v7, {sTT}, 4, {vN}
          v_lshl_add_u32 v9, v7, 4, v6
          v_lshl_add_u32 v10, v7, 3, v6
          s_mov_b32 {lo(T1)}, {hex(f2u(math.log2(math.e) / math.sqrt(20)))}
          s_cmp_lg_u32 {sKH}, 0
          s_cbranch_scc1 L_ex1""")
    for kh, (keep, send) in enumerate((((0, 1, 4), (2, 3)), ((2, 3), (0, 1, 4)))):
        if kh: a.label("L_ex1")
        for i, t in enumerate(send): a(f"ds_write_b128 v4, {vr(QAC+4*t,4)} offset:{1024*i}")
        wait = group_sync("v11", "v12")
        attn_zero()
        wait()
        for i in range(len(keep)): a(f"ds_read_b128 {vr(116+4*i,4)}, v5 offset:{1024*i}")
        for i, t in enumerate(keep):
            r = QAC + 4 * t
            a(f"""s_waitcnt lgkmcnt({len(keep)-1-i})
                  v_pk_add_f32 {vr(r,2)}, {vr(r,2)}, {vr(116+4*i,2)}
                  v_pk_add_f32 {vr(r+2,2)}, {vr(r+2,2)}, {vr(118+4*i,2)}
                  v_pk_mul_f32 {vr(r,2)}, {vr(r,2)}, {T1} op_sel_hi:[1,0]
                  v_pk_mul_f32 {vr(r+2,2)}, {vr(r+2,2)}, {T1} op_sel_hi:[1,0]
                  v_cvt_pk_bf16_f32 {vr(128+2*i)}, {vr(r)}, {vr(r+1)}
                  v_cvt_pk_bf16_f32 {vr(129+2*i)}, {vr(r+2)}, {vr(r+3)}""")
        a(f"ds_write_b128 v9, v[128:131] offset:{512*kh}")
        if not kh: a(f"ds_write_b64 v10, v[132:133] offset:1024\ns_branch L_exd")
    a.label("L_exd")

QA, QB, KVB, SB, OA = 16, 32, 40, 96, 160
vKA, vKB, vV, vIDX, vALO, vOX, vOX2, vAXL = (f"v{i}" for i in range(240, 248))
VSEND, VLW = 248, 252
def kvreg(p):
    b = KVB + 28 * p
    return dict(KA=(b, b + 4), KB=b + 8, V=((b + 12, b + 16), (b + 20, b + 24)))
def ld_ka(p, T, so): return f"buffer_load_dwordx4 {vr(kvreg(p)['KA'][T],4)}, {vKA}, {SRD}, {so} offen offset:{1024*T} sc1"
def ld_kb(p, so): return f"buffer_load_dwordx4 {vr(kvreg(p)['KB'],4)}, {vKB}, {SRD}, {so} offen sc1"
def ld_v(p, T, j, so): return f"buffer_load_dwordx4 {vr(kvreg(p)['V'][T][j],4)}, {vV}, {SRD}, {so} offen offset:{1344*T + 672*j} sc1"
def q8(p, T, j): return f"v_mfma_f32_32x32x8bf16_1k {vr(SB+16*j,16)}, {vr(kvreg(p)['KB']+2*T,2)}, {vr(QB+2*j,2)}, 0"
def q16(p, T, j): return f"v_mfma_f32_32x32x16_bf16 {vr(SB+16*j,16)}, {vr(kvreg(p)['KA'][T],4)}, {vr(QA+4*j,4)}, {vr(SB+16*j,16)}"
def pv(p, T, j, h): return f"v_smfmac_f32_32x32x32_bf16 {vr(OA+16*j,16)}, {vr(kvreg(p)['V'][T][h],4)}, {vr(SB+16*j+8*h,8)}, {vIDX}"

def tile(p, s, pre=(), mid=(), qk=True):
    T, j = s // 4, s % 4
    X_ = SB + 16 * j
    e = lambda i: f"v_exp_f32 {vr(X_+i)}, {vr(X_+i)}"
    pp, pT, pj = (p, (s - 1) // 4, (s - 1) % 4) if s else (1 - p, 1, 3)
    np_, nT, nj = (p, (s + 2) // 4, (s + 2) % 4) if s < 6 else (1 - p, 0, s - 6)
    a("\n".join([e(0), e(1), pv(pp, pT, pj, 1)] + list(pre) + [e(2), e(3), e(4), e(5), q8(np_, nT, nj) if qk else "", e(6), e(7), e(8), e(9)] +
                list(mid) + [pv(p, T, j, 0), e(10), e(11), e(12), e(13), q16(np_, nT, nj) if qk else "", e(14), e(15)]))

def attn_zero():
    z = kvreg(1)['V'][1][1]
    for i in range(4): a(f"v_mov_b32 {vr(z+i)}, 0")
    for d in (SB + 48, OA, OA + 16, OA + 32, OA + 48):
        a(f"v_mfma_f32_32x32x8bf16_1k {vr(d,16)}, {vr(z,2)}, {vr(z,2)}, 0")

def attn_setup():
    a(f"""v_lshlrev_b32 {vKA}, 4, {vL}
          v_min_u32 {vKB}, 32, {vL}
          v_lshlrev_b32 {vKB}, 4, {vKB}
          v_add_u32 {vKB}, 2048, {vKB}
          v_lshrrev_b32 v4, 5, {vL}
          v_and_b32 v5, 31, {vL}
          v_mul_u32_u24 {vV}, 336, v4
          v_lshl_add_u32 {vV}, v5, 4, {vV}
          v_add_u32 {vV}, 2688, {vV}
          v_mov_b32 v6, 0x40000000
          v_cmp_gt_u32 vcc, 21, v5
          v_mov_b32 {vIDX}, 0xdddddddd
          s_add_u32 s48, {lo(WS)}, {WS_KV}
          v_cndmask_b32 {vV}, v6, {vV}, vcc
          s_addc_u32 s49, {hi(WS)}, 0
          s_mov_b32 s50, {32*KVREC}
          s_mov_b32 s51, 0x20000
          s_mov_b32 {sPASS}, 0
          s_mov_b32 {sGEN}, 0
          v_add_u32 {vAXL}, {L_AL}, {vKA}
          s_lshl_b32 {t0}, {sW4}, 2
          s_add_u32 {t0}, {t0}, {L_AL + 2048}
          v_lshl_add_u32 v14, v5, 4, {t0}
          v_lshlrev_b32 v6, 11, v4
          v_sub_u32 v14, v14, v6
          s_lshl_b32 {t0}, {sW4}, 9
          s_add_u32 {t0}, {t0}, {L_AL}
          v_lshl_add_u32 {vALO}, v5, 4, {t0}
          s_lshl_b32 {t0}, {sRB}, 1
          s_add_u32 {t0}, {t0}, {sWH}
          s_mul_i32 {t1}, {t0}, 40960
          s_mul_i32 {t2}, {sCB}, 2560
          s_add_u32 {t1}, {t1}, {t2}
          s_lshr_b32 {t2}, {sW4}, 1
          s_mul_i32 {t2}, {t2}, 1280
          s_add_u32 {t1}, {t1}, {t2}
          s_add_u32 {t1}, {t1}, {WS_OX}
          v_and_b32 v6, 1, {vG}
          v_mul_u32_u24 v6, 20480, v6
          v_lshl_add_u32 v6, {vN}, 4, v6
          s_and_b32 {t2}, {sW4}, 1
          s_lshl_b32 {t3}, {t2}, 3
          s_add_u32 {t3}, {t3}, {t1}
          v_add_u32 {vOX2}, {t3}, v6
          s_mul_i32 {t2}, {t2}, 768
          s_add_u32 {t1}, {t1}, {t2}
          v_lshl_add_u32 v6, v4, 8, v6
          v_add_u32 {vOX}, {t1}, v6""")
    for j in range(4):
        a(f"""s_add_u32 {t0}, {sW4}, {j + 1}
              s_and_b32 {t0}, {t0}, 3
              s_mul_i32 {t1}, {t0}, 9216
              s_add_u32 {t1}, {t1}, {L_AX}
              v_add_u32 {vr(VSEND+j)}, {t1}, {vKA}
              s_lshl_b32 {t1}, {t0}, 9
              v_add_u32 {vr(VLW+j)}, {t1}, v14""")

def kv_first_loads():
    a(f"""s_mul_i32 {sSOFF}, {sW4}, {8*KVREC}
          s_add_u32 {sNXT}, {sSOFF}, {KVREC}""")
    a("\n".join([ld_ka(0, 0, sSOFF), ld_kb(0, sSOFF), ld_v(0, 0, 0, sSOFF), ld_v(0, 0, 1, sSOFF), ld_ka(0, 1, sSOFF),
                 ld_v(0, 1, 0, sSOFF), ld_v(0, 1, 1, sSOFF), ld_ka(1, 0, sNXT), ld_v(1, 0, 0, sNXT), ld_v(1, 0, 1, sNXT), ld_ka(1, 1, sNXT), ld_kb(1, sNXT)]))

def kv_poll_addr():
    a(f"""s_lshl_b32 {t0}, {sRB}, 10
          s_add_u32 {t0}, {t0}, {WS_XF}
          v_and_b32 v7, 7, {vL}
          v_lshl_add_u32 v7, v7, 7, {t0}
          v_lshrrev_b32 v6, 2, {vL}
          v_and_b32 v13, 3, {vL}
          v_lshl_add_u32 v6, v6, 3, v13
          s_lshl_b32 {t0}, {sW4}, 13
          s_add_u32 {t0}, {t0}, {WS_KVF + 512}
          v_lshl_add_u32 v6, v6, 7, {t0}
          v_cndmask_b32 v6, v7, v6, {MK_LO}""")
def poll_lanes(load, tagreg, sleep=0):
    L, E = uid("L_pm"), uid("L_pme")
    a(f"s_mov_b32 {sSPIN}, {OPT['spin']}")
    a.label(L)
    a(f"""{load}
          s_waitcnt vmcnt(0)
          v_cmp_ne_u32 vcc, {sTAG}, {tagreg}
          s_cbranch_vccz {E}
          s_mov_b64 exec, vcc""")
    if sleep: a(f"s_sleep {sleep}")
    a(f"s_sub_u32 {sSPIN}, {sSPIN}, 1\ns_cbranch_scc0 {L}")
    a.label(E)
    a("s_mov_b64 exec, -1")
def kv_ready(grp):
    if grp == "A":
        for _ in range(OPT.get("kvdelay", 0)): a("s_sleep 4")
        poll_lanes(f"global_load_dwordx2 v[140:141], v6, {WS} sc1", "v140", OPT.get("kvsleep", 0))
        stamp(28)
        kv_first_loads()
        a(f"""v_cmp_ne_u32 vcc, {sLOCAL}, v141
              s_cmp_eq_u32 vcc_hi, 0
              s_cselect_b32 {sLOCAL}, {0 if OPT.get("nolocal") else 1}, 0
              s_lshl_b32 {t0}, {sLOCAL}, 8
              s_add_u32 {t0}, {t0}, 1
              v_mov_b32 v142, {L_CNT + C_KVR}
              v_mov_b32 v143, {t0}
              s_mov_b64 exec, 1
              ds_add_u32 v142, v143
              s_mov_b64 exec, -1""")
    else:
        L = uid("L_kr")
        a(f"v_mov_b32 v142, {L_CNT + C_KVR}\ns_mov_b32 {sSPIN}, {OPT['spin'] * 8}")
        a.label(L)
        a(f"""ds_read_b32 v143, v142
              s_waitcnt lgkmcnt(0)
              v_readfirstlane_b32 {t5}, v143
              s_bitcmp1_b32 {t5}, 2
              s_cbranch_scc1 {L}_e
              s_sleep 1
              s_sub_u32 {sSPIN}, {sSPIN}, 1
              s_cbranch_scc0 {L}""")
        a.label(L + "_e")
        a(f"s_lshr_b32 {sLOCAL}, {t5}, 10")
        stamp(28)
        kv_first_loads()

def touch_addr(grp):
    a(f"""s_lshr_b32 {t0}, s2, 3
          s_lshl_b32 {t0}, {t0}, 2
          s_add_u32 {t0}, {t0}, {sW4}
          s_mov_b64 {OB0}, {WG}
          s_mov_b64 {OB1}, {WU}""")
    if grp == "B":
        a(f"""s_mul_i32 {t1}, {t0}, 6400
              v_min_u32 v8, 49, {vL}
              v_lshl_add_u32 v8, v8, 7, {t1}
              v_min_u32 v9, 9, {vL}
              v_lshlrev_b32 v9, 7, v9
              v_mov_b32 v10, 0
              v_mov_b32 v11, 0
              v_mov_b32 v12, 0""")
        if OPT.get("notouch") == 2: a("v_mov_b32 v8, 0\nv_mov_b32 v9, 0")
        return
    a(f"""s_and_b32 {t1}, s2, 7
          s_sub_u32 {t2}, {t1}, 3
          s_add_u32 {t3}, {t1}, 5
          s_cmp_lt_u32 {t1}, 3
          s_cselect_b32 {t2}, {t3}, {t2}
          s_cmp_gt_u32 {t1}, 4
          s_cselect_b32 {t3}, {t2}, {t3}
          s_sub_u32 {t3}, {t3}, {t2}
          s_lshl_b32 {t2}, {t2}, 7
          s_lshl_b32 {t3}, {t3}, 7
          s_mul_i32 {t0}, {t0}, 27
          v_min_u32 v12, 26, {vL}
          v_add_u32 v12, {t0}, v12
          v_and_b32 v5, 1, v12
          v_lshrrev_b32 v12, 1, v12
          v_mul_u32_u24 v12, 1280, v12
          v_mad_u32_u24 v12, v5, {t3}, v12
          v_add_u32 v12, {t2}, v12
          s_mul_i32 {t0}, {sCB}, 80
          s_mul_i32 {t1}, {sW4}, 20
          s_add_u32 {t0}, {t0}, {t1}
          v_min_u32 v10, 19, {vL}
          v_add_u32 v10, {t0}, v10
          v_mul_u32_u24 v10, 3456, v10
          s_lshl_b32 {t0}, {sP8}, 4
          v_add_u32 v10, {t0}, v10
          s_cmp_lt_u32 {sP8}, 216
          s_cselect_b64 {T1}, -1, 0
          v_cndmask_b32 v10, 0, v10, {T1}
          v_mov_b32 v11, v10""")
    if OPT.get("notouch"): a("v_mov_b32 v10, 0\nv_mov_b32 v11, 0\nv_mov_b32 v12, 0")

def attention():
    wait = group_sync("v134", "v135")
    kv_poll_addr()
    for j in range(4): a(f"v_mov_b64 {vr(QB+2*j,2)}, 0")
    a(f"""v_add_u32 v4, {sNXT}, {vKA}
          v_lshl_add_u32 v5, {vL}, 3, {sNXT}""")
    for j in range(4):
        a(f"""s_add_u32 {t0}, {sW4}, {j + 1}
              s_and_b32 {t0}, {t0}, 3
              s_mul_i32 {t1}, {t0}, 1280
              v_add_u32 {vr(8+j)}, {t1}, v4
              v_add_u32 {vr(12+j)}, {t1}, v5""")
    wait()
    for j in range(4): a(f"ds_read_b128 {vr(QA+4*j,4)}, {vr(8+j)}")
    a(f"s_mov_b64 exec, {MK_LO}")
    for j in range(4): a(f"ds_read_b64 {vr(QB+2*j,2)}, {vr(12+j)} offset:1024")
    a(f"""s_mov_b64 exec, -1
          s_cmp_lg_u32 {sWH}, 0
          s_cbranch_scc1 L_goB""")
    touch_addr("A")
    kv_ready("A")
    a("s_branch L_go")
    a.label("L_goB")
    a("s_setprio 3")
    touch_addr("B")
    kv_ready("B")
    a(f"global_load_dword v228, v8, {WO}\nglobal_load_dword v229, v9, {WR}")
    a(f"s_cmp_eq_u32 {sCG}, 0\ns_cbranch_scc1 L_nom3")
    sil, wr = mod_reads(96, 116)
    a(sil); a("s_waitcnt vmcnt(14)"); a(wr)
    a("s_waitcnt lgkmcnt(0)")
    mod_finish(96, 116, 136, sM2, C_P1, "L_nom3", False, 160)
    a.label("L_nom3")
    a(f"s_setprio 1\ns_waitcnt vmcnt(9) lgkmcnt(0)")
    a("s_branch L_go2")
    a.label("L_attn")
    kv_first_loads()
    a.label("L_go")
    a("s_waitcnt vmcnt(7) lgkmcnt(0)")
    a.label("L_go2")
    stamp(6)
    if OPT.get("alone"): a(f"s_cmp_lg_u32 {sWH}, 0\ns_cbranch_scc1 L_end")
    a("\n".join([q8(0, 0, 0), q16(0, 0, 0), q8(0, 0, 1), q16(0, 0, 1)]))
    a(f"""s_mov_b32 {sLOOP}, 0
          s_mov_b32 {t1}, {sNXT}
          s_add_u32 {t2}, {t1}, {KVREC}""")
    lds_signal(L_CNT + C_BRD, "v4", "v5")
    a("s_nop 0")
    a(".p2align 6")
    a.label("L_loop")
    LP = OPT.get("lp", 0)
    for p in range(2):
        for s in range(8):
            pre, mid = [], []
            touch = [f"global_load_dword v230, v10, {OB0}"] if p == 0 else []
            rot = ["v_mov_b32 v10, v11", "v_mov_b32 v11, v12", f"s_mov_b64 {OB0}, {OB1}", f"s_mov_b64 {OB1}, {WD}"] if p == 0 else []
            adv = [f"s_mov_b32 {t1}, {t2}", f"s_add_u32 {t2}, {t2}, {KVREC}"]
            if p == 1: adv += [f"s_add_u32 {sLOOP}, {sLOOP}, 1", f"s_cmp_lt_u32 {sLOOP}, 3"]
            if LP == 0:
                if s == 1: pre = [ld_v(1 - p, 1, 0, t1), ld_v(1 - p, 1, 1, t1)]
                if s == 2: pre = [ld_ka(p, 0, t2)]
                if s == 4: mid = [f"s_waitcnt vmcnt({8 + p})"]
                if s == 5: pre = [ld_v(p, 0, 0, t2), ld_v(p, 0, 1, t2)]
                if s == 6: pre = [f"s_waitcnt vmcnt({5 + p})", ld_ka(p, 1, t2), ld_kb(p, t2)] + touch; mid = rot
                if s == 7: pre = adv
            if LP == 1:
                if s == 1: pre = [ld_v(1 - p, 1, 0, t1), ld_v(1 - p, 1, 1, t1)]
                if s == 4: mid = [f"s_waitcnt vmcnt({7 + p})"]
                if s == 6: pre = [f"s_waitcnt vmcnt({2 + p})", ld_ka(p, 0, t2), ld_v(p, 0, 0, t2), ld_v(p, 0, 1, t2), ld_ka(p, 1, t2), ld_kb(p, t2)] + touch + adv + rot
            if LP == 9:
                if s == 4: mid = ["s_waitcnt vmcnt(0)"]
                if s == 7: pre = adv
            if LP == 8:
                if s == 4: mid = ["s_waitcnt vmcnt(0)"]
                if s == 6: pre = [ld_v(1 - p, 1, 0, t1), ld_v(1 - p, 1, 1, t1), ld_ka(p, 0, t2), ld_v(p, 0, 0, t2), ld_v(p, 0, 1, t2), ld_ka(p, 1, t2), ld_kb(p, t2)] + adv
            if LP == 7:
                one = {0: ld_v(1 - p, 1, 0, t1), 1: ld_v(1 - p, 1, 1, t1), 2: ld_ka(p, 0, t2), 4: ld_v(p, 0, 0, t2), 5: ld_v(p, 0, 1, t2), 6: ld_kb(p, t2), 7: ld_ka(p, 1, t2)}
                if s in one: pre = [one[s]]
                if s == 4: mid = ["s_waitcnt vmcnt(6)"]
                if s == 6: pre = ["s_waitcnt vmcnt(5)"] + pre
                if s == 7: pre += adv
            tile(p, s, pre, mid)
    a("s_cbranch_scc1 L_loop")
    for s in range(6):
        pre = [ld_v(1, 1, 0, t1), ld_v(1, 1, 1, t1)] if s == 1 else []
        if s == 3:
            pre = [f"s_cmp_eq_u32 {sWH}, 0", f"s_cselect_b32 {t0}, {L_CNT + C_BRD}, {t3}", f"s_cselect_b32 {t3}, 8, 4", f"v_mov_b32 v224, {t0}", "ds_read_b32 v225, v224"]
        if s == 2: pre = [f"s_mov_b32 {t3}, {L_CNT + C_ADONE}"]
        tile(0, s, pre, ["s_waitcnt vmcnt(7)"] if s == 4 else [])
    def sends(j):
        out = [f"ds_write_b128 {vr(VSEND+j)}, {vr(OA+16*j+4*r,4)} offset:{3072*j + 1024*r}" for r in range(3)] if j < 3 else []
        return out + [f"ds_write_b32 {vr(VLW+j)}, {vr(OA+16*j+8)}"]
    a(f"""s_waitcnt vmcnt(0) lgkmcnt(0)
          v_readfirstlane_b32 {t5}, v225
          s_cmp_ge_u32 {t5}, {t3}
          s_cbranch_scc1 L_free""")
    if not OPT.get("diag"): lds_wait(t3, "v224", "v225", sleep=2)
    a.label("L_free")
    a(f"""s_add_u32 {sGEN}, {sGEN}, 4
          v_mov_b32 v226, {sGC}
          v_mov_b32 v227, 1
          s_or_b32 {t0}, {sWH}, {sPASS}
          s_cmp_lg_u32 {t0}, 0
          s_cbranch_scc1 L_lastB""")
    if OPT.get("diag") == 1: a("s_branch L_lastB")
    a(f"""s_mul_i32 {t0}, {sW4}, {5*40960}
          s_mul_i32 {t1}, {sCB}, 160
          s_add_u32 {t0}, {t0}, {t1}
          s_add_u32 {lo(T0)}, {lo(WO)}, {t0}
          s_addc_u32 {hi(T0)}, {hi(WO)}, 0
          s_mul_i32 {t2}, {sW4}, 25600""")
    for var in "AB":
        if var == "B": a.label("L_lastB")
        k = 0
        for p, s in [(0, 6), (0, 7)] + [(1, s) for s in range(8)]:
            dma = [[], [], []]
            if var == "A":
                for slot in range(3 if (s % 2 == 0) else 2):
                    dma[slot] = [f"s_add_u32 m0, {t2}, {L_W + 1024*k}", "s_nop 0", f"global_load_lds_dwordx4 {vr(PAT + k%5)}, {T0}"]
                    if k % 5 == 4: dma[slot] += [f"s_add_u32 {lo(T0)}, {lo(T0)}, 40960", f"s_addc_u32 {hi(T0)}, {hi(T0)}, 0"]
                    k += 1
            pre = sends(s - 6) if (p == 1 and s >= 6) else []
            a("\n".join(dma[2]))
            tile(p, s, pre + dma[0], dma[1], qk=not (p == 1 and s >= 6))
        if var == "A": a("s_branch L_lastE")
    a.label("L_lastE")
    a(pv(1, 1, 3, 1))
    a("\n".join(sends(2) + sends(3)))
    stamp(7)
    if OPT.get("diag"): a(f"s_mov_b64 exec, 1\nv_mov_b32 v4, 0\nv_mov_b32 v5, {sTAG}\nglobal_store_dword v4, v5, {WS}\ns_branch L_end")
    a("""s_waitcnt lgkmcnt(0)
         s_mov_b64 exec, 1
         ds_add_u32 v226, v227
         s_mov_b64 exec, -1""")
    stamp(23)
    lds_wait(sGEN, "v226", "v227")
    stamp(24)
    P = SB
    a(f"""ds_read_b128 {vr(P+44,4)}, {vALO}
          ds_read_b128 {vr(P+36,4)}, {vAXL}
          ds_read_b128 {vr(P+40,4)}, {vAXL} offset:1024""")
    for r in range(3):
        for jj in range(3): a(f"ds_read_b128 {vr(P+12*jj+4*r,4)}, {vr(VSEND+3)} offset:{3072*jj + 1024*r}")
    a("s_waitcnt lgkmcnt(9)")
    for k in (44, 36, 40):
        a(f"v_pk_add_f32 {vr(P+k,2)}, {vr(P+k,2)}, {vr(P+k+2,2)}\nv_add_f32 {vr(P+k)}, {vr(P+k)}, {vr(P+k+1)}")
    lo_ = f2u(2.0 ** -60); span = f2u(2.0 ** 60) - lo_
    a(f"""v_rcp_f32 {vr(P+46)}, {vr(P+44)}
          v_subrev_u32 {vr(P+36)}, {hex(lo_)}, {vr(P+36)}
          v_subrev_u32 {vr(P+40)}, {hex(lo_)}, {vr(P+40)}
          v_max_u32 {vr(P+36)}, {vr(P+36)}, {vr(P+40)}
          v_cmp_lt_u32 vcc, {hex(span)}, {vr(P+36)}""")
    if OPT["force_slow"]: a("s_mov_b64 vcc, -1")
    a(f"""s_cbranch_vccz L_fin
          s_cmp_eq_u32 {sPASS}, 0
          s_cbranch_scc1 L_slow""")
    a.label("L_fin")
    R = P + 48
    for i in range(6):
        if i % 2 == 0: a(f"s_waitcnt lgkmcnt({6 - 3*(i//2)})")
        a(f"""v_pk_add_f32 {vr(OA+48+2*i,2)}, {vr(OA+48+2*i,2)}, {vr(P+2*i,2)}
              v_pk_add_f32 {vr(P+12+2*i,2)}, {vr(P+12+2*i,2)}, {vr(P+24+2*i,2)}
              v_pk_add_f32 {vr(OA+48+2*i,2)}, {vr(OA+48+2*i,2)}, {vr(P+12+2*i,2)}
              v_pk_mul_f32 {vr(OA+48+2*i,2)}, {vr(OA+48+2*i,2)}, {vr(P+46,2)} op_sel_hi:[1,0]
              v_cvt_pk_bf16_f32 {vr(R+i)}, {vr(OA+48+2*i)}, {vr(OA+48+2*i+1)}""")
        if i % 2 == 0: a(f"v_min_u32 {vr(R+i)}, -2, {vr(R+i)}")
        if i == 4: a(f"v_permlane32_swap_b32 {vr(R)}, {vr(R+2)}\nv_permlane32_swap_b32 {vr(R+1)}, {vr(R+3)}")
    a(f"s_bitcmp1_b32 {sW4}, 0\ns_cbranch_scc1 L_finodd")
    peer_store(f"""global_store_dwordx4 {vOX}, {vr(R,4)}, {WS} @
                   s_mov_b64 exec, {MK_LO}
                   global_store_dwordx2 {vOX2}, {vr(R+4,2)}, {WS} offset:512 @""")
    a("s_branch L_fine")
    a.label("L_finodd")
    a(f"""v_permlane32_swap_b32 {vr(R)}, {vr(R+4)}
          v_permlane32_swap_b32 {vr(R+1)}, {vr(R+5)}
          v_cndmask_b32 {vr(R+4)}, {vr(R)}, {vr(R+4)}, {MK_LO}
          v_cndmask_b32 {vr(R+5)}, {vr(R+1)}, {vr(R+5)}, {MK_LO}""")
    peer_store(f"""global_store_dwordx4 {vOX}, {vr(R+2,4)}, {WS} @
                   s_mov_b64 exec, {MK_LO}
                   global_store_dwordx2 {vOX2}, {vr(R,2)}, {WS} offset:512 @""")
    a.label("L_fine")
    a("s_mov_b64 exec, -1")
    stamp(8)
    a(f"s_cmp_lg_u32 {sWH}, 0\ns_cbranch_scc1 L_ffn")

def slow_path():
    a.label("L_slow")
    a(f"""s_waitcnt vmcnt(0) lgkmcnt(0)
          s_mov_b32 {sPASS}, 1
          s_mul_i32 {sSOFF}, {sW4}, {8*KVREC}
          s_mov_b32 {sLOOP}, 0""")
    for j in range(4): a(f"v_mov_b32 {vr(OA+j)}, 0xff800000")
    a.label("L_mx")
    a("\n".join([ld_ka(0, 0, sSOFF), ld_ka(0, 1, sSOFF), ld_kb(0, sSOFF), "s_waitcnt vmcnt(0)"]))
    for T in range(2):
        for j in range(4): a(q8(0, T, j) + "\n" + q16(0, T, j))
        for j in range(4):
            for i in range(8): a(f"v_max3_f32 {vr(OA+j)}, {vr(OA+j)}, {vr(SB+16*j+2*i)}, {vr(SB+16*j+2*i+1)}")
    a(f"""s_add_u32 {sSOFF}, {sSOFF}, {KVREC}
          s_add_u32 {sLOOP}, {sLOOP}, 1
          s_cmp_lt_u32 {sLOOP}, 8
          s_cbranch_scc1 L_mx""")
    for j in range(4):
        a(f"""v_mov_b32 v4, {vr(OA+j)}
              v_permlane32_swap_b32 v4, {vr(OA+j)}
              v_max_f32 {vr(OA+j)}, v4, {vr(OA+j)}
              v_lshrrev_b32 v4, 5, {vL}
              v_lshl_add_u32 {vr(OA+4+j)}, v4, 11, {vr(VLW+j)}
              ds_write_b32 {vr(OA+4+j)}, {vr(OA+j)}""")
    a(f"s_add_u32 {sGEN}, {sGEN}, 4")
    lds_signal(sGC, "v226", "v227")
    lds_wait(sGEN, "v226", "v227")
    a(f"s_lshl_b32 {t0}, {sW4}, 2")
    for j in range(4):
        a(f"v_subrev_u32 {vr(OA+4+j)}, {t0}, {vr(OA+4+j)}\nds_read_b128 {vr(SB+4*j,4)}, {vr(OA+4+j)}")
    a(f"s_add_u32 {sGEN}, {sGEN}, 4")
    lds_signal(sGC, "v226", "v227")
    lds_wait(sGEN, "v226", "v227")
    a(f"s_not_b64 exec, {MK_LO}")
    for j in range(4):
        m = SB + 4 * j
        a(f"""v_max3_f32 {vr(m)}, {vr(m)}, {vr(m+1)}, {vr(m+2)}
              v_max_f32 {vr(m)}, {vr(m)}, {vr(m+3)}
              v_xor_b32 {vr(m)}, 0x80000000, {vr(m)}
              v_and_b32 {vr(m+1)}, 0xffff0000, {vr(m)}
              v_sub_f32 {vr(m)}, {vr(m)}, {vr(m+1)}
              v_and_b32 {vr(m+2)}, 0xffff0000, {vr(m)}
              v_sub_f32 {vr(m)}, {vr(m)}, {vr(m+2)}
              v_lshrrev_b32 {vr(m+1)}, 16, {vr(m+1)}
              v_or_b32 {vr(QB+2*j)}, {vr(m+1)}, {vr(m+2)}
              v_lshrrev_b32 {vr(QB+2*j+1)}, 16, {vr(m)}""")
    a("s_mov_b64 exec, -1")
    attn_zero()
    a("s_branch L_attn")

def allreduce_g(regs, tmp, op="v_add_f32"):
    for swap in ("v_permlane32_swap_b32", "v_permlane16_swap_b32"):
        for i, r in enumerate(regs): a(f"v_mov_b32 {vr(tmp+i)}, {vr(r)}")
        for i, r in enumerate(regs): a(f"{swap} {vr(tmp+i)}, {vr(r)}")
        for i, r in enumerate(regs): a(f"{op} {vr(r)}, {vr(tmp+i)}, {vr(r)}")

def row_allreduce(regs, op):
    for k in (8, 4, 2, 1):
        for r in regs: a(f"{op}_dpp {vr(r)}, {vr(r)}, {vr(r)} row_ror:{k} row_mask:0xf bank_mask:0xf")

OF, OAC, OT, OW = 16, 56, 76, 116
def outproj():
    lds_signal(L_CNT + C_ADONE, "v8", "v9")
    def granule_addr(dst, chunk, tmp, base):
        a(f"""v_lshrrev_b32 {dst}, 2, {chunk}
              v_and_b32 {tmp}, 3, {chunk}
              v_lshlrev_b32 {dst}, 7, {dst}
              v_lshl_add_u32 {dst}, {tmp}, 4, {dst}
              v_add_u32 {dst}, {base}, {dst}""")
    a(f"""v_min_u32 v66, 19, {vL}
          s_mul_i32 {t0}, {sCB}, 20
          v_add_u32 v15, {t0}, v66
          s_mul_i32 {t1}, {sW4}, 5120
          s_add_u32 {t1}, {t1}, {WS_MODG + 80*128}""")
    granule_addr("v8", "v15", "v10", t1)
    a(f"""v_lshlrev_b32 v15, 3, v15
          global_load_dwordx2 v[56:57], v15, {WR}
          v_min_u32 v15, 39, {vL}
          s_mul_i32 {t0}, {sW4}, 40
          v_add_u32 v15, {t0}, v15""")
    granule_addr("v9", "v15", "v10", WS_MODG + 160*128)
    a(f"""v_lshlrev_b32 v15, 3, v15
          global_load_dwordx2 v[58:59], v15, {WR}
          s_lshl_b32 {t1}, {sRB}, 2
          s_add_u32 {t1}, {t1}, {sTT}
          s_lshl_b32 {t2}, {t1}, 4
          v_add_u32 v11, {t2}, {vN}
          v_mul_u32_u24 v11, 1280, v11
          v_mul_u32_u24 v14, 40, {vG}
          s_mul_i32 {t2}, {sCB}, 160
          s_mul_i32 {t3}, {sKH}, 24
          s_add_u32 {t2}, {t2}, {t3}
          v_add_u32 v14, {t2}, v14
          v_add_u32 v11, v14, v11
          s_lshl_b32 {t3}, {sKH}, 4
          v_subrev_u32 v15, {t3}, v11
          global_load_dwordx4 v[4:7], v11, {X}
          global_load_dwordx2 v[12:13], v15, {X} offset:16
          s_lshl_b32 {t0}, {sTT}, 1
          s_or_b32 {t0}, {t0}, {sKH}
          s_mul_i32 {t0}, {t0}, 320
          s_add_u32 {t0}, {t0}, {L_VEC}
          v_lshl_add_u32 v66, v66, 4, {t0}""")
    poll(f"global_load_dwordx4 v[16:19], v8, {WS} sc1\nglobal_load_dwordx4 v[20:23], v9, {WS} sc1",
         f"""v_min3_u32 v24, v17, v19, v21
             v_max3_u32 v25, v17, v19, v21
             v_min_u32 v24, v24, v23
             v_max_u32 v25, v25, v23
             v_xor_b32 v24, {sTAG}, v24
             v_xor_b32 v25, {sTAG}, v25
             v_or_b32 v24, v24, v25
             v_cmp_ne_u32 vcc, 0, v24""", sleep=4)
    def unp4(dst, r0, r1): unpack(vr(dst), vr(dst+1), vr(r0)); unpack(vr(dst+2), vr(dst+3), vr(r1))
    stamp(32)
    unp4(80, 16, 18)
    a(f"""ds_write_b128 v66, v[80:83]
          s_cmp_lg_u32 {sW4}, 2
          s_cbranch_scc1 L_noav""")
    unp4(84, 56, 57)
    a("""v_pk_mul_f32 v[84:85], v[84:85], v[80:81]
         v_pk_mul_f32 v[86:87], v[86:87], v[82:83]
         ds_write_b128 v66, v[84:87] offset:960""")
    a.label("L_noav")
    unp4(88, 20, 22); unp4(92, 58, 59)
    a(f"""v_pk_mul_f32 v[88:89], v[88:89], v[92:93]
          v_pk_fma_f32 v[88:89], v[90:91], v[94:95], v[88:89]
          v_cmp_gt_u32 vcc, 40, {vL}
          v_add_f32 v100, v88, v89
          s_lshl_b32 {t0}, {sW4}, 2
          s_add_u32 {t0}, {t0}, {L_YP}
          v_cndmask_b32 v100, 0, v100, vcc
          v_mov_b32 v101, {t0}""")
    row_allreduce((100,), "v_add_f32")
    allreduce_g((100,), 104)
    a("ds_write_b32 v101, v100")
    lds_signal(L_CNT + C_WO, "v102", "v103")
    a(f"""v_mul_u32_u24 v8, 40, {vL}
          s_mul_i32 {t0}, {sKH}, 51200
          v_add_u32 v8, {t0}, v8
          v_lshlrev_b32 v9, 4, {vL}
          v_mul_u32_u24 v15, 80, {vG}
          s_mul_i32 {t0}, {sKH}, 48
          s_add_u32 {t0}, {t0}, {L_VEC}
          v_add_u32 v15, {t0}, v15
          s_lshl_b32 {t1}, {sRB}, 2
          s_add_u32 {t1}, {t1}, {sTT}
          s_mul_i32 {t2}, {t1}, 20480
          s_mul_i32 {t3}, {sKH}, 10240
          s_add_u32 {t2}, {t2}, {t3}
          s_add_u32 {t2}, {t2}, {WS_OX + 4096}
          s_add_u32 {lo(OB0)}, {lo(WS)}, {t2}
          s_addc_u32 {hi(OB0)}, {hi(WS)}, 0
          s_add_u32 {lo(OB1)}, {lo(OB0)}, 0x2000
          s_addc_u32 {hi(OB1)}, {hi(OB0)}, 0
          s_lshl_b32 {t2}, {t1}, 12
          s_lshl_b32 {t3}, {sCB}, 9
          s_add_u32 {t2}, {t2}, {t3}
          s_lshl_b32 {t3}, {sKH}, 8
          s_add_u32 {t2}, {t2}, {t3}
          s_add_u32 {sSTS}, {t2}, {WS_ST}
          s_lshl_b32 {t4}, {sTT}, 2
          s_add_u32 {t4}, {t4}, {L_CNT + C_PAIR}""")
    orders = ([7, 0, 1, 2, 3, 4, 5, 6, 8, 9], [9, 0, 1, 2, 3, 4, 5, 6, 8, 7])
    def o_load(s): return f"global_load_dwordx4 {vr(OF+4*s,4)}, v9, {OB0 if s < 8 else OB1} offset:{1024*(s%8) - 4096} sc1"
    for s in orders[0]: a(o_load(s))
    lds_wait(4, "v102", "v103", sleep=2)
    stamp(33)
    def wo_reads(s, r):
        return "\n".join(f"ds_read_b64_tr_b16 {vr(r+4*t+2*j,2)}, v8 offset:{s*5120 + j*2560 + 8*t}" for t in range(5) for j in range(2))
    for s in range(7): a(wo_reads(s, OW + 20*s))
    a(wo_reads(7, OT)); a(wo_reads(8, OT + 20))
    lds_signal(L_CNT + C_WC, "v56", "v57")
    stamp(29)
    GA, AV, EX, S1, G = 16, 28, 40, 68, 16
    retry = []
    def stage1(cg):
        order = orders[cg]
        a(f"s_mov_b32 {sSPIN}, {OPT['spin']}")
        for i, s in enumerate(order):
            a(f"s_waitcnt vmcnt({9-i})" + (" lgkmcnt(6)" if i == 9 else ""))
            a.label(f"L_oc{cg}_{s}")
            a(f"""v_max_u32 v10, {vr(OF+4*s)}, {vr(OF+4*s+2)}
                  v_cmp_eq_u32 vcc, -1, v10
                  s_cbranch_vccnz L_or{cg}_{s}""")
            a.label(f"L_ob{cg}_{s}")
            w = {7: OT, 8: OT + 20, 9: OT}.get(s, OW + 20*s)
            for t in range(5):
                a(f"v_mfma_f32_16x16x32_bf16 {vr(OAC+4*t,4)}, {vr(w+4*t,4)}, {vr(OF+4*s,4)}, {'0' if i == 0 else vr(OAC+4*t,4)}")
            if s == 0: a(wo_reads(order[9], OT))
            if s == 6:
                for arr, r in ((0, GA), (4, AV)):
                    for k in range(3): a(f"ds_read_b128 {vr(r+4*k,4)}, v15 offset:{320*arr + 16*k}")
            retry.append(f"""L_or{cg}_{s}:
                  s_sub_u32 {sSPIN}, {sSPIN}, 1
                  s_cbranch_scc1 L_ob{cg}_{s}
                  """ + "\n".join(o_load(k) for k in order[i:]) + f"""
                  s_waitcnt vmcnt({9-i})
                  s_branch L_oc{cg}_{s}""")
        stamp(10 if cg else 34)
        if cg == 0 and OPT.get("lowprio", 2) == 2: a("s_setprio 0")
        a(f"""s_mul_i32 {t0}, {sW4}, 3072
              s_add_u32 {t0}, {t0}, {L_OXC}
              v_add_u32 v10, {t0}, v9
              s_xor_b32 {t0}, {sW4}, 2
              s_mul_i32 {t0}, {t0}, 3072
              s_add_u32 {t0}, {t0}, {L_OXC}
              v_add_u32 v52, {t0}, v9
              s_cmp_lg_u32 {sKH}, 0
              s_cbranch_scc1 L_oe1{cg}""")
        for kh, (keep, send) in enumerate((((0, 1, 2), (3, 4)), ((3, 4), (0, 1, 2)))):
            nk = len(keep)
            if kh: a.label(f"L_oe1{cg}")
            for i, t in enumerate(send): a(f"ds_write_b128 v10, {vr(OAC+4*t,4)} offset:{1024*i}")
            for i, r in enumerate((4, 6, 12)[:nk]):
                unpack(vr(EX+4*i), vr(EX+4*i+1), vr(r)); unpack(vr(EX+4*i+2), vr(EX+4*i+3), vr(r+1))
            lds_signal(t4, "v54", "v55")
            if cg == 0:
                a(f"""v_add_u32 v11, {32*1280}, v11
                      global_load_dwordx4 v[4:7], v11, {X}""")
                if kh == 0: a(f"global_load_dwordx2 v[12:13], v11, {X} offset:16")
            for i, t in enumerate(keep):
                for h in range(2):
                    a(f"v_pk_fma_f32 {vr(X1+4*i+2*h,2)}, {vr(OAC+4*t+2*h,2)}, {vr(GA+4*i+2*h,2)}, {vr(EX+4*i+2*h,2)}")
            lds_wait(2 + 2*cg, "v54", "v55")
            for i in range(nk): a(f"ds_read_b128 {vr(EX+4*i,4)}, v52 offset:{1024*i}")
            for i in range(nk):
                a(f"s_waitcnt lgkmcnt({nk-1-i})")
                for h in range(2):
                    x = X1 + 4*i + 2*h
                    a(f"v_pk_fma_f32 {vr(x,2)}, {vr(EX+4*i+2*h,2)}, {vr(GA+4*i+2*h,2)}, {vr(x,2)}")
                    if i == 0 and h == 0:
                        a(f"""v_pk_mul_f32 {vr(S1+2,2)}, {vr(x,2)}, {vr(x,2)}
                              v_pk_mul_f32 {vr(S1+4,2)}, {vr(x,2)}, {vr(AV,2)}""")
                    else:
                        a(f"""v_pk_add_f32 {vr(S1,2)}, {vr(S1 if (i, h) != (0, 1) else X1,2)}, {vr(x,2)}
                              v_pk_fma_f32 {vr(S1+2,2)}, {vr(x,2)}, {vr(x,2)}, {vr(S1+2,2)}
                              v_pk_fma_f32 {vr(S1+4,2)}, {vr(x,2)}, {vr(AV+4*i+2*h,2)}, {vr(S1+4,2)}""")
            if not kh: a(f"s_branch L_oe2{cg}")
        a.label(f"L_oe2{cg}")
        a(f"""v_add_f32 {vr(G)}, {vr(S1)}, {vr(S1+1)}
              v_add_f32 {vr(G+1)}, {vr(S1+2)}, {vr(S1+3)}
              v_add_f32 {vr(G+2)}, {vr(S1+4)}, {vr(S1+5)}
              v_mov_b32 {vr(G+3)}, {sTAG}
              v_add_u32 v10, {sSTS}, v9""")
        allreduce_g((G, G + 1, G + 2), S1)
        a("s_mov_b64 exec, 0xffff")
        peer_store(f"global_store_dwordx4 v10, {vr(G,4)}, {WS} @")
        a("s_mov_b64 exec, -1")

    FP = OPT.get("fpace", 1)
    a(f"""v_lshrrev_b32 v60, 1, {vL}
          v_and_b32 v61, 1, {vL}
          v_lshlrev_b32 v66, 7, {vL}
          v_add_u32 v66, {40960 - 4096}, v66""")
    lds_wait(4, "v56", "v57", sleep=1)
    a(f"""s_cmp_ge_u32 {sFR}, 148
          s_cbranch_scc1 L_fde
          s_cmp_ge_u32 {sFR}, 108
          s_cbranch_scc1 L_fd2
          s_cmp_eq_u32 {sKH}, 0
          s_cselect_b64 {T0}, {WG}, {WU}
          s_mul_i32 {t0}, {sTT}, {320*3456}
          s_lshl_b32 {t1}, {sFR}, 5
          s_add_u32 {t0}, {t0}, {t1}
          s_add_u32 {lo(T0)}, {lo(T0)}, {t0}
          s_addc_u32 {hi(T0)}, {hi(T0)}, 0
          v_mul_u32_u24 v60, 3456, v60
          v_lshl_add_u32 v60, v61, 4, v60
          s_mul_i32 {t1}, {sTT}, 10240
          s_mul_i32 {t2}, {sKH}, 51200
          s_add_u32 {t2}, {t2}, {t1}""")
    for s in range(10):
        a(f"s_add_u32 m0, {t2}, {L_W + 1024*s}\nglobal_load_lds_dwordx4 v60, {T0}")
        if s < 9: base_add(T0, T0, 32*3456)
        a(f"s_waitcnt vmcnt({FP})")
    a("s_branch L_fde")
    a.label("L_fd2")
    a(f"""s_mul_i32 {t0}, {sW4}, 14
          s_min_u32 {t0}, {t0}, 40
          s_mul_i32 {t0}, {t0}, 40960
          s_sub_u32 {t1}, {sFR}, 108
          s_lshl_b32 {t1}, {t1}, 5
          s_add_u32 {t0}, {t0}, {t1}
          s_add_u32 {lo(T0)}, {lo(WD)}, {t0}
          s_addc_u32 {hi(T0)}, {hi(WD)}, 0
          v_mul_u32_u24 v60, 1280, v60
          v_lshl_add_u32 v60, v61, 4, v60
          s_mul_i32 {t1}, {sTT}, 14336
          s_mul_i32 {t2}, {sKH}, 51200
          s_add_u32 {t2}, {t2}, {t1}""")
    for s in range(14):
        a(f"s_add_u32 m0, {t2}, {L_W + 1024*s}\nglobal_load_lds_dwordx4 v60, {T0}")
        if s < 13: base_add(T0, T0, 40960)
        a(f"s_waitcnt vmcnt({FP})")
    a.label("L_fde")
    a(f"""global_load_dword v67, v66, {OB0} sc1
          global_load_dword v68, v66, {OB0} offset:2048 sc1
          s_waitcnt vmcnt(0)""")
    stamp(36)
    if OPT.get("lowprio", 2) == 1: a("s_setprio 0")
    stage1(0)
    stamp(30)
    stash_addr("v10")
    for i in range(3): a(f"ds_write_b128 v10, {vr(X1+4*i,4)} offset:{1024*i}")
    a(f"s_add_u32 {sSTS}, {sSTS}, 0x2000")
    base_add(OB0, OB0, 40960); base_add(OB1, OB1, 40960)
    a("s_setprio 2\ns_waitcnt vmcnt(0) lgkmcnt(0)")
    stamp(22)
    a("s_barrier")
    stamp(9)
    for s in orders[1]: a(o_load(s))
    stage1(1)
    stamp(11)
    a("s_branch L_stage2")
    for r in retry: a(r)

X1, ST, VE, HP, WN, OP, vOUT = 56, 112, 148, 196, 204, 208, "v214"
def stash_addr(dst):
    a(f"""s_mul_i32 {t0}, {sTT}, 3072
          s_mul_i32 {t1}, {sKH}, 51200
          s_add_u32 {t0}, {t0}, {t1}
          s_add_u32 {t0}, {t0}, {L_W + 28672}
          v_add_u32 {dst}, {t0}, v9""")

def stage2():
    a.label("L_ffn")
    a(f"""v_lshlrev_b32 v9, 4, {vL}
          v_mul_u32_u24 v15, 80, {vG}
          s_mul_i32 {t0}, {sKH}, 48
          s_add_u32 {t0}, {t0}, {L_VEC}
          v_add_u32 v15, {t0}, v15
          s_barrier
          s_setprio 0
          s_lshl_b32 {t1}, {sRB}, 2
          s_add_u32 {t1}, {t1}, {sTT}
          s_lshl_b32 {t2}, {t1}, 4
          v_add_u32 v11, {t2}, {vN}
          v_mul_u32_u24 v11, 1280, v11
          v_mul_u32_u24 v14, 40, {vG}
          s_mul_i32 {t2}, {sCB}, 160
          s_mul_i32 {t3}, {sKH}, 24
          s_add_u32 {t2}, {t2}, {t3}
          v_add_u32 v14, {t2}, v14
          v_add_u32 v11, v14, v11""")
    stash_addr("v10")
    for i in range(3): a(f"ds_read_b128 {vr(X1+4*i,4)}, v10 offset:{1024*i}")
    a.label("L_stage2")
    st_loads = "\n".join(f"global_load_dwordx4 {vr(ST+16*u+4*i,4)}, v105, {WS} offset:{4096*(u-1) + 256*i} sc1" for u in range(2) for i in range(4))
    a(f"""s_lshl_b32 {sCAND}, {sRB}, 1
          s_add_u32 {sCAND}, {sCAND}, 1
          s_sub_u32 {sCAND}, {sCAND}, {sWH}
          s_lshl_b32 {t2}, {sCAND}, 13
          s_add_u32 {t2}, {t2}, {WS_ST + 4096}
          v_lshlrev_b32 v105, 10, {vG}
          v_lshl_add_u32 v105, {vN}, 4, v105
          v_add_u32 v105, {t2}, v105
          v_mov_b32 v4, {L_YP}
          ds_read_b128 v[100:103], v4""")
    for arr in (1, 2, 3):
        for k in range(3): a(f"ds_read_b128 {vr(VE+12*(arr-1)+4*k,4)}, v15 offset:{320*arr + 16*k}")
    a(st_loads)
    a(f"""v_mov_b32 {vOUT}, v11
          v_mov_b32 {vr(WN+2)}, 0
          v_mov_b32 {vr(WN+3)}, {sTAG}
          s_cmp_lg_u32 {sTT}, 0
          s_cselect_b64 {T1}, -1, 0
          s_mul_i32 {t1}, {sCAND}, 1280
          v_add_u32 v13, {t1}, v14
          v_lshlrev_b32 v12, 1, v13
          v_add_u32 v12, {WS_BASE}, v12
          v_add_u32 v13, {WS_H2}, v13
          s_lshl_b32 {t2}, {sCAND}, 7
          s_add_u32 {t2}, {t2}, {WS_WIN}
          v_add_u32 v4, {t2}, v9
          s_waitcnt lgkmcnt(9)
          v_pk_add_f32 v[100:101], v[100:101], v[102:103]
          v_add_f32 v100, v100, v101""")
    bad = [f"v_min_u32 v5, {vr(ST+3)}, {vr(ST+7)}\nv_max_u32 v6, {vr(ST+3)}, {vr(ST+7)}"]
    bad += [f"v_min3_u32 v5, v5, {vr(ST+3+8*i)}, {vr(ST+7+8*i)}\nv_max3_u32 v6, v6, {vr(ST+3+8*i)}, {vr(ST+7+8*i)}" for i in range(1, 4)]
    bad += [f"v_xor_b32 v5, {sTAG}, v5\nv_xor_b32 v6, {sTAG}, v6\nv_or_b32 v5, v5, v6\nv_cmp_ne_u32 vcc, 0, v5"]
    poll(st_loads, "\n".join(bad), issued=True)
    stamp(12)
    for u in range(2):
        b = ST + 16 * u
        a(f"""v_pk_add_f32 {vr(b,2)}, {vr(b,2)}, {vr(b+4,2)}
              v_pk_add_f32 {vr(b+8,2)}, {vr(b+8,2)}, {vr(b+12,2)}
              v_add_f32 {vr(b+2)}, {vr(b+2)}, {vr(b+6)}
              v_add_f32 {vr(b+10)}, {vr(b+10)}, {vr(b+14)}
              v_pk_add_f32 {vr(b,2)}, {vr(b,2)}, {vr(b+8,2)}
              v_add_f32 {vr(b+2)}, {vr(b+2)}, {vr(b+10)}""")
    for i in range(3): a(f"v_permlane16_swap_b32 {vr(ST+i)}, {vr(ST+16+i)}")
    a(f"""v_pk_add_f32 {vr(ST,2)}, {vr(ST,2)}, {vr(ST+16,2)}
          v_add_f32 {vr(ST+2)}, {vr(ST+2)}, {vr(ST+18)}
          v_mov_b64 {vr(ST+16,2)}, {vr(ST,2)}
          v_mov_b32 {vr(ST+18)}, {vr(ST+2)}""")
    for i in range(3): a(f"v_permlane32_swap_b32 {vr(ST+i)}, {vr(ST+16+i)}")
    a(f"""v_pk_add_f32 {vr(ST,2)}, {vr(ST,2)}, {vr(ST+16,2)}
          v_add_f32 {vr(ST+2)}, {vr(ST+2)}, {vr(ST+18)}
          v_mul_f32 {vr(ST)}, {hex(f2u(-1/640))}, {vr(ST)}
          v_mul_f32 {vr(ST+1)}, {hex(f2u(1/640))}, {vr(ST+1)}
          v_fma_f32 {vr(ST+1)}, -{vr(ST)}, {vr(ST)}, {vr(ST+1)}
          v_max_f32 {vr(ST+1)}, 0, {vr(ST+1)}
          v_add_f32 {vr(ST+1)}, {hex(f2u(1e-5))}, {vr(ST+1)}
          v_rsq_f32 {vr(ST+4)}, {vr(ST+1)}
          v_fmac_f32 {vr(ST+2)}, {vr(ST)}, v100
          v_mul_f32 {vr(ST+2)}, {vr(ST+2)}, {vr(ST+4)}
          v_mul_f32 {vr(ST+6)}, {vr(ST)}, {vr(ST+4)}
          v_mov_b32 {vr(WN)}, {vr(ST+2)}
          v_mov_b32 v5, {vr(ST+2)}
          v_mov_b32 {vr(ST+5)}, {vr(ST+4)}
          v_mov_b32 {vr(ST+7)}, {vr(ST+6)}
          v_permlane16_swap_b32 {vr(WN)}, v5
          v_permlane16_swap_b32 {vr(ST+4)}, {vr(ST+5)}
          v_max_f32 {vr(WN)}, {vr(WN)}, v5
          v_permlane16_swap_b32 {vr(ST+6)}, {vr(ST+7)}""")
    fill = [f"v_cndmask_b32 {vr(ST+4)}, {vr(ST+4)}, {vr(ST+5)}, {T1}", f"v_cndmask_b32 {vr(ST+6)}, {vr(ST+6)}, {vr(ST+7)}, {T1}",
            f"s_lshl_b32 {t2}, {sCAND}, 5", f"s_or_b32 {t1}, {sCB}, {sW4}", f"s_lshl_b32 {t3}, {sTT}, 4", "s_waitcnt lgkmcnt(0)"]
    for n, k in enumerate((8, 4, 2, 1)):
        a(f"v_max_f32_dpp {vr(WN)}, {vr(WN)}, {vr(WN)} row_ror:{k} row_mask:0xf bank_mask:0xf")
        a("\n".join(fill[2*n:2*n+2]))
    a(f"""v_cmp_eq_f32 vcc, {vr(ST+2)}, {vr(WN)}
          s_ff1_i32_b32 {sWINT}, vcc_lo
          s_and_b32 {sWINT}, {sWINT}, 31
          s_cmp_lg_u32 {t1}, 0
          s_cbranch_scc1 L_nowin
          s_add_u32 {t2}, {t2}, {sWINT}
          v_mov_b32 {vr(WN+1)}, {t2}
          s_mov_b64 exec, 0xff
          global_store_dwordx4 v4, {vr(WN,4)}, {WS} sc1
          s_mov_b64 exec, -1""")
    a.label("L_nowin")
    a(f"s_sub_u32 {t1}, {sWINT}, {t3}\nv_cmp_eq_u32 {MK_B}, {t1}, {vN}")
    for i in range(6):
        x, h = X1 + 2*i, ST + 8 + 2*i
        a(f"""v_pk_fma_f32 {vr(h,2)}, {vr(x,2)}, {vr(ST+4,2)}, {vr(ST+6,2)} op_sel_hi:[1,0,0]
              v_pk_fma_f32 {vr(h,2)}, {vr(h,2)}, {vr(VE+2*i,2)}, {vr(VE+12+2*i,2)}
              v_cvt_pk_bf16_f32 {vr(HP+i)}, {vr(h)}, {vr(h+1)}""")
        if i % 2 == 0: a(f"v_min_u32 {vr(HP+i)}, -2, {vr(HP+i)}")
    a(f"""s_and_saveexec_b64 {T0}, {MK_B}
          s_cbranch_execz L_noh2
          global_store_dwordx4 v13, {vr(HP,4)}, {WS} sc1
          s_cmp_lg_u32 {sKH}, 0
          s_cbranch_scc1 L_noh2
          global_store_dwordx2 v13, {vr(HP+4,2)}, {WS} offset:16 sc1""")
    a.label("L_noh2")
    a("s_mov_b64 exec, -1")
    for i in range(6):
        x, h = X1 + 2*i, ST + 8 + 2*i
        a(f"""v_pk_fma_f32 {vr(x,2)}, {vr(h,2)}, {vr(VE+24+2*i,2)}, {vr(x,2)}
              v_cvt_pk_bf16_f32 {vr(OP+i)}, {vr(x)}, {vr(x+1)}""")
        if i % 2 == 0: a(f"v_min_u32 {vr(x)}, -2, {vr(x)}")
    a(f"""s_and_saveexec_b64 {T0}, {MK_B}
          s_cbranch_execz L_nobase
          global_store_dwordx4 v12, {vr(X1,4)}, {WS} sc1
          global_store_dwordx4 v12, {vr(X1+4,4)}, {WS} offset:16 sc1
          s_cmp_lg_u32 {sKH}, 0
          s_cbranch_scc1 L_nobase
          global_store_dwordx4 v12, {vr(X1+8,4)}, {WS} offset:32 sc1""")
    a.label("L_nobase")
    a("s_mov_b64 exec, -1")
    stamp(25)

def out_rows():
    E = uid("L_or")
    fl = OPT.get("outflags", "")
    a(f"""s_not_b64 exec, {MK_B}
          global_store_dwordx4 {vOUT}, {vr(OP,4)}, {OUT} {fl}
          s_cmp_lg_u32 {sKH}, 0
          s_cbranch_scc1 {E}
          global_store_dwordx2 {vOUT}, {vr(OP+4,2)}, {OUT} offset:16 {fl}""")
    a.label(E)
    a("s_mov_b64 exec, -1")

def poll_value(loads, regs):
    L, E = uid("L_pv"), uid("L_pve")
    a(f"s_mov_b32 {sSPIN}, {OPT['spin']}")
    a.label(L)
    a(loads)
    a("s_waitcnt vmcnt(0)")
    a(f"v_max_u32 v10, {regs[0]}, {regs[1]}")
    for i in range(2, len(regs), 2): a(f"v_max3_u32 v10, v10, {regs[i]}, {regs[i+1]}")
    a(f"""v_cmp_eq_u32 vcc, -1, v10
          s_cbranch_vccz {E}
          s_mov_b64 exec, vcc
          s_sub_u32 {sSPIN}, {sSPIN}, 1
          s_cbranch_scc0 {L}""")
    a.label(E)
    a("s_mov_b64 exec, -1")

def gemv_bcast(n, FW, FA):
    def bc(s):
        src, dst = FA + 4 * (s // 16), FA + 8 + 4 * (s % 3)
        return "\n".join(f"v_mov_b64_dpp {vr(dst+2*h,2)}, {vr(src+2*h,2)} row_newbcast:{s % 16} row_mask:0xf bank_mask:0xf" for h in range(2))
    a(bc(0))
    for s in range(n):
        if s + 1 < n: a(bc(s + 1))
        d = 176 + 4 * (s % 2)
        a(f"v_mfma_f32_16x16x32_bf16 {vr(d,4)}, {vr(FW+4*s,4)}, {vr(FA+8+4*(s%3),4)}, {'0' if s < 2 else vr(d,4)}")

def find_winner():
    a(f"v_lshlrev_b32 v8, 7, {vL}\nv_add_u32 v8, {WS_WIN}, v8")
    poll_lanes(f"global_load_dwordx4 v[4:7], v8, {WS} sc1", "v7")
    a("v_mov_b32 v9, v4")
    row_allreduce((9,), "v_max_f32")
    allreduce_g((9,), 10, "v_max_f32")
    a(f"""v_cmp_eq_f32 vcc, v4, v9
          s_ff1_i32_b64 {t3}, vcc
          s_and_b32 {t3}, {t3}, 63
          v_readlane_b32 {sWINT}, v5, {t3}
          v_readlane_b32 {sWINR}, v4, {t3}""")

def ffn():
    FW, FA = 16, 96
    a(f"""v_lshlrev_b32 v14, 8, {vG}
          v_lshl_add_u32 v14, {vN}, 3, v14
          s_cmp_ge_u32 {sFR}, 108
          s_cbranch_scc1 L_ffn2
          s_and_b32 {t0}, {sW}, 6
          s_cmp_eq_u32 {t0}, 4
          s_cbranch_scc1 L_ffn1
          s_barrier
          s_barrier""")
    a.label("L_rows")
    stamp(13)
    out_rows()
    endpgm()
    a.label("L_ffn1")
    a(f"""v_and_b32 v4, 2, {vN}
          v_mul_u32_u24 v4, {25600 - 8}, v4
          s_lshl_b32 {t0}, {sTT}, 4
          v_add3_u32 v14, v14, v4, {t0}""")
    for s in range(20):
        a(f"ds_read_b64_tr_b16 {vr(FW+4*s,2)}, v14 offset:{1024*s}\nds_read_b64_tr_b16 {vr(FW+4*s+2,2)}, v14 offset:{1024*s+128}")
    a(f"""v_lshlrev_b32 v12, 4, {vG}
          v_add_u32 v12, {WS_H2}, v12
          v_and_b32 v13, 3, {vN}
          v_lshl_add_u32 v13, v13, 6, v12
          v_add_u32 v13, 1024, v13
          v_lshl_add_u32 v12, {vN}, 6, v12
          s_lshl_b32 {t0}, {sFR}, 1
          s_add_u32 {t0}, {t0}, {sTT}
          s_lshl_b32 {t0}, {t0}, {ASH}
          s_add_u32 {t0}, {t0}, {WS_ACT}
          v_lshl_add_u32 v15, {vG}, 3, {t0}
          s_setprio 3
          s_waitcnt lgkmcnt(0)
          s_barrier""")
    stamp(14)
    find_winner()
    stamp(15)
    a(f"""s_mul_i32 {t0}, {t3}, 1280
          v_add_u32 v12, {t0}, v12
          v_add_u32 v13, {t0}, v13""")
    poll_value(f"global_load_dwordx4 {vr(FA,4)}, v12, {WS} sc1\nglobal_load_dwordx4 {vr(FA+4,4)}, v13, {WS} sc1", [vr(FA+2*i) for i in range(4)])
    gemv_bcast(20, FW, FA)
    a("v_pk_add_f32 v[176:177], v[176:177], v[180:181]\nv_pk_add_f32 v[178:179], v[178:179], v[182:183]")
    for i in range(4): a(f"v_mov_b32 {vr(180+i)}, {vr(176+i)}")
    for i in range(4): a(f"v_permlane32_swap_b32 {vr(176+i)}, {vr(180+i)}")
    for i in range(4): a(f"v_mul_f32 {vr(184+i)}, {hex(f2u(-math.log2(math.e)))}, {vr(176+i)}")
    for i in range(4): a(f"v_exp_f32 {vr(184+i)}, {vr(184+i)}")
    for i in range(4): a(f"v_add_f32 {vr(184+i)}, 1.0, {vr(184+i)}")
    for i in range(4): a(f"v_rcp_f32 {vr(184+i)}, {vr(184+i)}")
    for i in range(4): a(f"v_mul_f32 {vr(176+i)}, {vr(176+i)}, {vr(180+i)}")
    for i in range(4): a(f"v_mul_f32 {vr(176+i)}, {vr(176+i)}, {vr(184+i)}")
    a(f"""v_cvt_pk_bf16_f32 v12, v176, v177
          v_cvt_pk_bf16_f32 v13, v178, v179
          v_min_u32 v12, -2, v12
          s_mov_b64 exec, 0x10001
          global_store_dwordx2 v15, v[12:13], {WS} sc1
          s_mov_b64 exec, -1
          s_barrier""")
    stamp(16)
    a(f"""s_cmp_lg_u32 s2, 0
          s_cbranch_scc1 L_rows
          v_mov_b32 v4, 0
          v_mov_b32 v5, {sTAG}
          s_mov_b64 exec, 1
          global_store_dword v4, v5, {WS}
          s_branch L_rows""")
    a.label("L_ffn2")
    sQ, sS0 = sSTS, sSTL
    a(f"""s_cmp_lt_u32 {sFR}, 148
          s_cselect_b32 {t0}, {sWH}, 0
          s_cmp_lg_u32 {t0}, 0
          s_cbranch_scc1 L_ffn2B
          s_barrier
          s_branch L_rows""")
    a.label("L_ffn2B")
    a(f"""s_sub_u32 {sQ}, {sFR}, 108
          s_mul_i32 {sS0}, {sW4}, 14
          s_min_u32 {sS0}, {sS0}, 40
          s_and_b32 {t1}, {sW4}, 1
          s_mul_i32 {t1}, {t1}, 14336
          s_lshr_b32 {t2}, {sW4}, 1
          s_mul_i32 {t2}, {t2}, 51200
          s_add_u32 {t2}, {t2}, {t1}
          v_add_u32 v14, {t2}, v14
          s_lshl_b32 {t0}, {sQ}, 7
          s_add_u32 {t0}, {t0}, {WS_MODG + 200*128}
          v_lshl_add_u32 v12, {vG}, 4, {t0}""")
    for s in range(14):
        a(f"ds_read_b64_tr_b16 {vr(FW+4*s,2)}, v14 offset:{1024*s}\nds_read_b64_tr_b16 {vr(FW+4*s+2,2)}, v14 offset:{1024*s+128}")
    a(f"""s_waitcnt lgkmcnt(0)
          s_cmp_lg_u32 {sW4}, 3
          s_cbranch_scc1 L_f2full""")
    for i in range(8): a(f"v_mov_b32 {vr(FW+i)}, 0")
    a.label("L_f2full")
    a(f"s_cmp_lg_u32 {sW4}, 0\ns_cbranch_scc1 L_noc0")
    for k in range(3):
        a(f"""v_add_u32 v4, {64*k}, {vL}
              v_min_u32 v4, 159, v4
              v_lshlrev_b32 v5, 3, v4
              global_load_dwordx2 {vr(112+2*k,2)}, v5, {WR}
              v_lshrrev_b32 {vr(96+k)}, 2, v4
              v_and_b32 v4, 3, v4
              v_lshlrev_b32 {vr(96+k)}, 7, {vr(96+k)}
              v_lshl_add_u32 {vr(96+k)}, v4, 4, {vr(96+k)}
              v_add_u32 {vr(96+k)}, {WS_MODG + 120*128}, {vr(96+k)}""")
    poll("\n".join(f"global_load_dwordx4 {vr(100+4*k,4)}, {vr(96+k)}, {WS} sc1" for k in range(3)),
         f"""v_min3_u32 v4, v101, v103, v105
             v_max3_u32 v5, v101, v103, v105
             v_min3_u32 v4, v4, v107, v109
             v_max3_u32 v5, v5, v107, v109
             v_min_u32 v4, v4, v111
             v_max_u32 v5, v5, v111
             v_xor_b32 v4, {sTAG}, v4
             v_xor_b32 v5, {sTAG}, v5
             v_or_b32 v4, v4, v5
             v_cmp_ne_u32 vcc, 0, v4""", sleep=4)
    a("v_mov_b32 v128, 0")
    for k in range(3):
        unpack("v120", "v121", vr(100+4*k)); unpack("v122", "v123", vr(102+4*k))
        unpack("v124", "v125", vr(112+2*k)); unpack("v126", "v127", vr(113+2*k))
        if k == 2: a(f"s_mov_b64 exec, {MK_LO}")
        for i in range(4): a(f"v_fmac_f32 v128, {vr(120+i)}, {vr(124+i)}")
    a("s_mov_b64 exec, -1")
    row_allreduce((128,), "v_add_f32")
    allreduce_g((128,), 129)
    a(f"v_readfirstlane_b32 {sC0}, v128")
    a.label("L_noc0")
    a("s_barrier")
    out_rows()
    stamp(14)
    find_winner()
    stamp(15)
    a(f"""global_load_dwordx4 v[188:191], v12, {WS} sc1
          s_lshl_b32 {t0}, {sW4}, 4
          v_add_u32 v8, {t0}, {vN}
          v_lshlrev_b32 v9, 2, v8
          ds_bpermute_b32 v10, v9, v5
          v_cmp_ne_u32 {MK_A}, {t3}, v8
          v_mul_u32_u24 v8, 2560, v8
          s_lshl_b32 {t0}, {sQ}, 6
          s_add_u32 {t0}, {t0}, {WS_BASE}
          v_lshl_add_u32 v9, {vG}, 4, {t0}
          v_add_u32 v8, v9, v8
          s_mul_i32 {t0}, {t3}, 2560
          v_add_u32 v9, {t0}, v9
          s_lshl_b32 {t0}, {sQ}, 5
          v_lshl_add_u32 v11, {vG}, 3, {t0}
          s_waitcnt lgkmcnt(0)
          v_and_b32 v10, 2047, v10
          v_mul_u32_u24 v10, 1280, v10
          v_add_u32 v15, v11, v10
          s_and_b32 {sWINT}, {sWINT}, 2047
          s_mul_i32 {t0}, {sWINT}, 1280
          v_add_u32 v11, {t0}, v11""")
    poll(f"global_load_dwordx4 v[196:199], v8, {WS} sc1\nglobal_load_dwordx4 v[200:203], v9, {WS} sc1",
         "v_max_u32 v10, v196, v200\nv_cmp_eq_u32 vcc, -1, v10")
    unpack("v192", "v193", "v188"); unpack("v194", "v195", "v190")
    a(f"""v_cvt_pk_bf16_f32 v12, v196, v197
          v_cvt_pk_bf16_f32 v13, v198, v199
          s_mov_b64 exec, {MK_A}
          global_store_dwordx2 v15, v[12:13], {OUT}
          s_mov_b64 exec, -1
          v_mov_b32 v204, {sWINR}
          v_add_f32 v204, {sC0}, v204
          v_mul_f32 v204, {hex(f2u(-math.log2(math.e)))}, v204
          v_exp_f32 v204, v204
          s_lshl_b32 {t0}, {sS0}, {ASH + 2}
          s_add_u32 {t0}, {t0}, {WS_ACT}
          v_add_f32 v204, 1.0, v204
          v_rcp_f32 v204, v204
          v_min_u32 v8, 13, {vN}
          v_lshl_add_u32 v8, v8, 2, {vG}
          v_lshl_add_u32 v8, v8, {ASH}, {t0}
          v_pk_mul_f32 v[192:193], v[192:193], v[204:205] op_sel_hi:[1,0]
          v_pk_mul_f32 v[194:195], v[194:195], v[204:205] op_sel_hi:[1,0]
          s_lshl_b32 {t0}, {sW4}, 6
          s_add_u32 {t0}, {t0}, {L_YP}
          v_lshl_add_u32 v9, {vG}, 4, {t0}""")
    stamp(38)
    for _ in range(OPT.get("actdelay", 0)): a("s_sleep 4")
    poll_value(f"global_load_dwordx4 {vr(FA,4)}, v8, {WS} sc1", [vr(FA), vr(FA+2)])
    stamp(16)
    gemv_bcast(14, FW, FA)
    a(f"""v_pk_add_f32 v[176:177], v[176:177], v[180:181]
          v_pk_add_f32 v[178:179], v[178:179], v[182:183]
          s_cmp_eq_u32 {sW4}, 0
          s_cbranch_scc1 L_f2fin
          s_mov_b64 exec, {MK_N0}
          ds_write_b128 v9, v[176:179]
          s_mov_b64 exec, -1""")
    lds_signal(L_CNT + C_Y, "v4", "v5")
    endpgm()
    a.label("L_f2fin")
    a(f"v_mov_b32 v4, {L_CNT + C_Y}")
    lds_wait(3, "v4", "v5")
    a(f"""ds_read_b128 v[180:183], v9 offset:64
          ds_read_b128 v[184:187], v9 offset:128
          ds_read_b128 v[188:191], v9 offset:192
          s_waitcnt lgkmcnt(0)
          v_pk_add_f32 v[176:177], v[176:177], v[180:181]
          v_pk_add_f32 v[178:179], v[178:179], v[182:183]
          v_pk_add_f32 v[184:185], v[184:185], v[188:189]
          v_pk_add_f32 v[186:187], v[186:187], v[190:191]
          v_pk_add_f32 v[176:177], v[176:177], v[184:185]
          v_pk_add_f32 v[178:179], v[178:179], v[186:187]
          v_pk_fma_f32 v[200:201], v[176:177], v[192:193], v[200:201]
          v_pk_fma_f32 v[202:203], v[178:179], v[194:195], v[202:203]
          v_cvt_pk_bf16_f32 v12, v200, v201
          v_cvt_pk_bf16_f32 v13, v202, v203
          s_mov_b64 exec, {MK_N0}
          global_store_dwordx2 v11, v[12:13], {OUT}
          s_mov_b64 exec, -1""")
    stamp(17)
    a.label("L_end")
    endpgm()
    a.label("L_exit")
    a("s_endpgm")

def build(**opt):
    global a
    OPT.update(opt)
    a.lines.clear(); _uid[0] = 0
    prologue(); layernorm1(); qkv(); attention(); outproj(); stage2(); ffn(); slow_path()
    rep = []
    lines, nn = insert_nops(a.lines, rep)
    errs = check_waits(lines)
    head = open(f"cdna_kernels/{NAME}.s.ref").read().split("; Override launch")[0]
    out = head + f"; @launch grid=(256,1,1) block=(512,1,1) lds={LDS_BYTES}\n"
    out += f""".amdgcn_target "amdgcn-amd-amdhsa--gfx950"
.text
.globl {NAME}_kernel
.p2align 8
.type {NAME}_kernel,@function
{NAME}_kernel:
"""
    out += "\n".join(l if l.endswith(":") or l.startswith(".") else "    " + l for l in lines)
    out += f"""
.section .rodata,"a"
.p2align 6
.amdhsa_kernel {NAME}_kernel
  .amdhsa_next_free_vgpr 256
  .amdhsa_next_free_sgpr 100
  .amdhsa_accum_offset 256
  .amdhsa_group_segment_fixed_size 0
  .amdhsa_kernarg_size 120
  .amdhsa_user_sgpr_count 2
  .amdhsa_user_sgpr_kernarg_segment_ptr 1
  .amdhsa_system_sgpr_workgroup_id_x 1
  .amdhsa_float_denorm_mode_32 3
.end_amdhsa_kernel
"""
    return out, rep, errs

if __name__ == "__main__":
    opts = {}
    path = f"cdna_kernels/{NAME}.s"
    for arg in sys.argv[1:]:
        if arg.startswith("-o"): path = arg[2:]
        else:
            k, _, v = arg.partition("="); opts[k] = (int(v) if v.lstrip('-').isdigit() else v.replace('+', ' ')) if v else True
    out, rep, errs = build(**opts)
    open(path, "w").write(out)
    print(f"{path}: {out.count(chr(10))} lines, {len(rep)} nop sites, {sum(r[0] for r in rep)} states")
    if opts.get("verbose"):
        for r in rep: print("  nop", r)
    for e in errs: print("WAIT ERROR:", e)
```

```python
import sys, math, struct
from asmlib import Asm, insert_nops, check_waits

NAME = "adaLN_cond__grouped_kv_mqa__moe_arch_mod__prompt"
OPT = dict(stamps=False, force_slow=False, spin=1 << 17)

def f2u(x): return struct.unpack("<I", struct.pack("<f", x))[0]

WS_MODG = 0x1000
WS_KVF  = 0x9000
WS_XF   = 0x20000
WS_KV   = 0x40000
KVREC   = 5376
WS_OX   = 0x80000
WS_ST   = 0x300000
WS_WIN  = 0x380000
WS_H2   = 0x384000
WS_BASE = 0x3A0000
WS_ACT  = 0x3D0000
ASH = 7
WS_DBG  = 0x1000000
L_W    = 0
L_WKV  = 102400
L_R2   = 128000
L_MODV = 152576
L_MISC = 157696
L_SIL  = L_MISC
L_P0P  = L_MISC + 1280
L_LN   = L_MISC + 1536
L_CNT  = L_MISC + 2560
L_VEC  = L_MISC + 2816
L_YP   = L_MISC + 4608
L_AX   = L_WKV
L_AL   = L_WKV + 36864
L_AM   = L_AL + 2048
L_OXC  = L_AM + 2048
LDS_BYTES = 163840
assert L_OXC + 12288 <= L_MISC and L_YP + 256 <= LDS_BYTES
C_P0, C_GA, C_GB, C_ADONE, C_WO, C_PAIR, C_Y, C_P1, C_WC, C_BRD, C_KVS, C_KVR = 0, 4, 8, 12, 16, 20, 36, 40, 44, 48, 52, 56
L_Q = (L_MODV, L_WKV + 20480)
PAT = 232

X, WQ, WK, WV, WO, WR, WG, WU, WD, CC, WM, OUT, DBG, WS = (f"s[{i}:{i+1}]" for i in (8, 10, 12, 14, 16, 20, 22, 24, 26, 28, 30, 32, 34, 36))
def lo(p): return "s" + p[2:].split(":")[0]
def hi(p): return "s" + p[2:-1].split(":")[1]
sW, sW4, sWH, sRB, sCB, sTAG, sPASS, sGEN, sCG, sSPIN = (f"s{i}" for i in range(38, 48))
SRD = "s[48:51]"
T0, T1, T2 = "s[52:53]", "s[54:55]", "s[56:57]"
t0, t1, t2, t3, t4, t5 = (f"s{i}" for i in range(58, 64))
sSA, sC0, sWINR, sWINT, sSOFF, sLOOP, sTT, sKH, sGC, sBLK = (f"s{i}" for i in range(64, 74))
sP4, sP8 = "s82", "s83"
MK_N0, MK_LO, MK_A, MK_B = "s[74:75]", "s[76:77]", "s[78:79]", "s[80:81]"
OB0, OB1 = "s[84:85]", "s[86:87]"
sSTS, sSTL, sCAND, sLOCAL = "s88", "s89", "s90", "s91"
sNXT, sM2, sFR = "s92", "s93", "s97"
sST = 94
vL, vN, vG = "v1", "v2", "v3"
def vr(a, n=1): return f"v{a}" if n == 1 else f"v[{a}:{a+n-1}]"

a = Asm()
_uid = [0]
def uid(p):
    _uid[0] += 1; return f"{p}_{_uid[0]}"

def stamp(i):
    if not OPT["stamps"]: return
    if OPT.get("light") and i not in (31, 6, 7, 17): return
    a(f"""{"s_memtime" if OPT.get("clk") else "s_memrealtime"} s[{sST}:{sST+1}]
          s_waitcnt lgkmcnt(0)
          v_writelane_b32 v0, s{sST}, {i}""")

def endpgm():
    if OPT.get("padto"):
        L = uid("L_pad")
        if "padwg" in OPT: a(f"s_cmp_lg_u32 s2, {OPT['padwg']}\ns_cbranch_scc1 {L}_e")
        a.label(L)
        a(f"""s_memrealtime s[4:5]
              s_waitcnt lgkmcnt(0)
              s_sub_u32 s4, s4, s98
              s_cmp_lt_u32 s4, {OPT["padto"]}
              s_cbranch_scc1 {L}""")
        a.label(L + "_e")
    if OPT["stamps"]:
        a(f"""s_mov_b64 exec, -1
              v_lshl_add_u32 v4, {vL}, 2, s{sST+2}
              global_store_dword v4, v0, {WS}""")
    if OPT.get("dbgstamps"):
        for wg, wave, base, ids in ((0, 0, 0, (31, 21, 3, 6, 7, 10, 12, 13)), (128, 4, 32, (31, 0, 6, 7, 8, 15, 16, 17))):
            L = uid("L_dbg")
            a(f"""s_cmp_lg_u32 s2, {wg}
                  s_cbranch_scc1 {L}
                  s_cmp_lg_u32 {sW}, {wave}
                  s_cbranch_scc1 {L}
                  v_mov_b32 v4, 0""")
            for i, k in enumerate(ids):
                a(f"""v_readlane_b32 {t0}, v0, {k}
                      s_and_b32 {t0}, {t0}, 0xfffff
                      v_mov_b32 v5, {t0}
                      global_store_dword v4, v5, {DBG} offset:{base + 4*i}""")
            a.label(L)
    a("s_endpgm")

def base_add(dst, src, off):
    a(f"s_add_u32 {lo(dst)}, {lo(src)}, {off}\ns_addc_u32 {hi(dst)}, {hi(src)}, 0")

def lds_signal(cnt, va, vb):
    a(f"""v_mov_b32 {va}, {cnt}
          v_mov_b32 {vb}, 1
          s_waitcnt lgkmcnt(0)
          s_mov_b64 exec, 1
          ds_add_u32 {va}, {vb} 
          s_mov_b64 exec, -1""")

def lds_wait(target, va, vb, sleep=0):
    L, E = uid("L_lw"), uid("L_lwe")
    a(f"s_mov_b32 {sSPIN}, {OPT['spin'] * 8}")
    a.label(L)
    a(f"""ds_read_b32 {vb}, {va}
          s_waitcnt lgkmcnt(0)
          v_readfirstlane_b32 {t5}, {vb}
          s_cmp_ge_u32 {t5}, {target}
          s_cbranch_scc1 {E}""")
    if sleep: a(f"s_sleep {sleep}")
    a(f"s_sub_u32 {sSPIN}, {sSPIN}, 1\ns_cbranch_scc0 {L}")
    a.label(E)

def poll(loads, bad, sleep=0, issued=False, first_wait=None):
    L, E, F = uid("L_pl"), uid("L_ple"), uid("L_plf")
    a(f"s_mov_b32 {sSPIN}, {OPT['spin']}")
    if issued: a(f"s_waitcnt vmcnt({first_wait or 0})\ns_branch {F}")
    a.label(L)
    a(loads)
    a("s_waitcnt vmcnt(0)")
    if issued: a.label(F)
    a(bad)
    a(f"s_cbranch_vccz {E}")
    if sleep: a(f"s_sleep {sleep}")
    a(f"s_sub_u32 {sSPIN}, {sSPIN}, 1\ns_cbranch_scc0 {L}")
    a.label(E)

def peer_store(stores):
    G, E = uid("L_psg"), uid("L_pse")
    a(f"s_cmp_eq_u32 {sLOCAL}, 0\ns_cbranch_scc1 {G}")
    a(stores.replace(" @", ""))
    a(f"s_branch {E}")
    a.label(G)
    a(stores.replace(" @", " sc1"))
    a.label(E)

def unpack(dlo, dhi, src):
    a(f"v_lshlrev_b32 {dlo}, 16, {src}\nv_and_b32 {dhi}, 0xffff0000, {src}")

def w_dma_patterns(dst):
    for i in range(5):
        d = vr(dst + i)
        a(f"""v_add_u32 v4, {64*i}, {vL}
              v_mul_u32_u24 v5, 6554, v4
              v_lshrrev_b32 v5, 16, v5
              v_mul_u32_u24 v6, 10, v5
              v_sub_u32 v6, v4, v6
              v_and_b32 v7, 12, v5
              v_lshlrev_b32 v7, 1, v7
              v_and_or_b32 v7, v5, 3, v7
              v_lshrrev_b32 v5, 2, v5
              v_and_or_b32 v7, v5, 4, v7
              v_mul_u32_u24 v7, 1280, v7
              v_lshl_add_u32 {d}, v6, 4, v7""")

def w_unit_base(src, unit, base, lds):
    a(f"""s_mul_i32 {t0}, {unit}, 40960
          s_mul_i32 {t1}, {sCB}, 160
          s_add_u32 {t0}, {t0}, {t1}
          s_add_u32 {lo(base)}, {lo(src)}, {t0}
          s_addc_u32 {hi(base)}, {hi(src)}, 0
          s_mul_i32 {lds}, {unit}, 5120""")
def w_piece(base, lds, k):
    return f"s_add_u32 m0, {lds}, {L_W + k*1024}\ns_nop 0\nglobal_load_lds_dwordx4 {vr(PAT + k % 5)}, {base}"

def mod_dma(slice_):
    a(f"""v_lshrrev_b32 v10, 1, {vL}
          s_mul_i32 {t1}, {sW4}, 160
          v_add_u32 v10, {t1}, v10
          v_mul_u32_u24 v10, 7680, v10
          v_and_b32 v11, 1, {vL}
          v_lshl_add_u32 v10, v11, 4, v10
          s_lshl_b32 {t1}, {slice_}, 5
          v_add_u32 v10, {t1}, v10
          s_mul_i32 {t2}, {sW4}, 5120
          s_add_u32 {t2}, {t2}, {L_WKV}""")
def mod_dma_issue(rot=True):
    for i in range(5):
        a(f"""s_add_u32 {t0}, {sCB if rot else 0}, {i}
              s_cmp_ge_u32 {t0}, 5
              s_cselect_b32 {t1}, 5, 0
              s_sub_u32 {t0}, {t0}, {t1}
              s_lshl_b32 {t1}, {t0}, 10
              s_mul_i32 {t0}, {t0}, 245760
              s_add_u32 m0, {t2}, {t1}
              v_add_u32 v11, {t0}, v10
              global_load_lds_dwordx4 v11, {WM}""")

def mod_reads(S, W):
    a(f"""s_mul_i32 {t0}, {sW4}, 320
          s_add_u32 {t0}, {t0}, {L_SIL}
          v_lshl_add_u32 v4, {vG}, 4, {t0}
          v_lshlrev_b32 v5, 8, {vG}
          v_lshl_add_u32 v5, {vN}, 3, v5
          s_mul_i32 {t0}, {sW4}, 5120
          s_add_u32 {t0}, {t0}, {L_WKV}
          v_add_u32 v5, {t0}, v5""")
    sil = [f"ds_read_b128 {vr(S+4*i,4)}, v4 offset:{64*i}" for i in range(5)]
    wr = [f"ds_read_b64_tr_b16 {vr(W+4*i+2*j,2)}, v5 offset:{1024*i+128*j}" for i in range(5) for j in range(2)]
    return "\n".join(sil), "\n".join(wr)

def mod_finish(S, W, D, slice_, cnt, done, counted, scale0):
    for i in range(5):
        if counted: a(f"s_waitcnt lgkmcnt({8-2*i})")
        a(f"v_mfma_f32_16x16x32_bf16 {vr(D,4)}, {vr(W+4*i,4)}, {vr(S+4*i,4)}, {'0' if i == 0 else vr(D,4)}")
    fin = uid("L_mf")
    a(f"""s_lshl_b32 {t0}, {sW4}, 6
          s_add_u32 {t0}, {t0}, {L_P0P}
          v_lshl_add_u32 v6, {vG}, 4, {t0}
          s_cmp_eq_u32 {sW4}, 0
          s_cbranch_scc1 {fin}
          ds_write_b128 v6, {vr(D,4)}""")
    lds_signal(L_CNT + cnt, "v4", "v5")
    a(f"s_branch {done}")
    a.label(fin)
    a(f"""v_mov_b32 v4, {L_CNT + cnt}
          s_lshl_b32 {t0}, {slice_}, 7
          s_add_u32 {t0}, {t0}, {WS_MODG}
          v_lshl_add_u32 v7, {vG}, 4, {t0}
          v_lshl_add_u32 v7, {vN}, 6, v7
          v_mov_b32 {vr(S+13)}, {sTAG}
          v_mov_b32 {vr(S+15)}, {sTAG}""")
    lds_wait(3, "v4", "v5")
    a(f"""ds_read_b128 {vr(S,4)}, v6 offset:64
          ds_read_b128 {vr(S+4,4)}, v6 offset:128
          ds_read_b128 {vr(S+8,4)}, v6 offset:192
          s_mov_b32 {lo(T0)}, 0x00030003
          s_mov_b32 {hi(T0)}, 0x00030003
          s_sub_u32 {t0}, {slice_}, {scale0}
          s_cmp_lt_u32 {t0}, 40
          s_waitcnt lgkmcnt(0)
          v_pk_add_f32 {vr(D,2)}, {vr(D,2)}, {vr(S,2)}
          v_pk_add_f32 {vr(D+2,2)}, {vr(D+2,2)}, {vr(S+2,2)}
          v_pk_add_f32 {vr(S+4,2)}, {vr(S+4,2)}, {vr(S+8,2)}
          v_pk_add_f32 {vr(S+6,2)}, {vr(S+6,2)}, {vr(S+10,2)}
          v_pk_add_f32 {vr(D,2)}, {vr(D,2)}, {vr(S+4,2)}
          v_pk_add_f32 {vr(D+2,2)}, {vr(D+2,2)}, {vr(S+6,2)}
          v_cvt_pk_bf16_f32 {vr(S+12)}, {vr(D)}, {vr(D+1)}
          v_cvt_pk_bf16_f32 {vr(S+14)}, {vr(D+2)}, {vr(D+3)}
          s_cbranch_scc0 {fin}_s""")
    unpack(vr(D), vr(D+1), vr(S+12)); unpack(vr(D+2), vr(D+3), vr(S+14))
    a(f"""v_pk_add_f32 {vr(D,2)}, {vr(D,2)}, 1.0 op_sel_hi:[1,0]
          v_pk_add_f32 {vr(D+2,2)}, {vr(D+2,2)}, 1.0 op_sel_hi:[1,0]
          v_cvt_pk_bf16_f32 {vr(S+12)}, {vr(D)}, {vr(D+1)}
          v_cvt_pk_bf16_f32 {vr(S+14)}, {vr(D+2)}, {vr(D+3)}""")
    a.label(fin + "_s")
    a(f"""s_mov_b64 exec, {T0}
          global_store_dwordx4 v7, {vr(S+12,4)}, {WS} sc1
          s_mov_b64 exec, -1""")

def x_dma():
    a(f"s_mul_i32 {t2}, {sW}, 10240")
    for s in range(10):
        a(f"s_add_u32 m0, {t2}, {L_W + 960*s}\nglobal_load_lds_dwordx4 v8, {X} offset:{64*s}")

def swz(dst, q, tmp):
    a(f"""v_lshrrev_b32 {dst}, 1, {q}
          v_xor_b32 {tmp}, {q}, {dst}
          v_and_b32 {tmp}, 1, {tmp}
          v_lshl_or_b32 {dst}, {tmp}, 1, {dst}""")

XR, NR, KVA, KVW = 16, 56, 136, 144
A_XRD, A_LNW, A_LNR, A_KVW, A_PO1, A_PO2 = (f"v{i}" for i in range(184, 190))
def prologue():
    a(f"""s_cmp_ge_u32 s2, 256
          s_cbranch_scc1 L_exit
          {"s_memrealtime s[98:99]" if OPT.get("padto") else ""}
          s_load_dwordx16 s[8:23], s[0:1], 0
          s_load_dwordx8 s[24:31], s[0:1], 64
          s_load_dwordx4 s[32:35], s[0:1], 96
          s_load_dwordx2 s[36:37], s[0:1], 112
          v_and_b32 {vL}, 63, v0
          v_lshrrev_b32 v4, 6, v0
          v_and_b32 {vN}, 15, v0
          v_readfirstlane_b32 {sW}, v4
          v_lshrrev_b32 {vG}, 4, {vL}
          s_and_b32 {t0}, s2, 7
          s_lshr_b32 {t1}, s2, 3
          s_and_b32 {sCB}, {t1}, 7
          s_lshr_b32 {t1}, {t1}, 3
          s_lshl_b32 {t2}, {t0}, 2
          s_add_u32 {sRB}, {t2}, {t1}
          s_lshl_b32 {t3}, {t1}, 5
          s_add_u32 {t3}, {t3}, {t2}
          s_add_u32 {sP4}, {t3}, {sCB}
          s_lshl_b32 {sP8}, {t0}, 3
          s_or_b32 {sP8}, {sP8}, {sCB}
          s_and_b32 {t2}, s2, 0xc0
          s_or_b32 {sP8}, {sP8}, {t2}
          s_and_b32 {sW4}, {sW}, 3
          s_lshr_b32 {sWH}, {sW}, 2
          s_and_b32 {sTT}, {sW}, 1
          s_lshr_b32 {sKH}, {sW4}, 1
          s_lshl_b32 {sBLK}, {sRB}, 3
          s_add_u32 {sBLK}, {sBLK}, {sCB}
          v_min_u32 v9, 19, {vL}
          s_lshl_b32 {t0}, {sRB}, 6
          s_lshl_b32 {t1}, {sWH}, 5
          s_add_u32 {t0}, {t0}, {t1}
          s_lshl_b32 {t1}, {sTT}, 4
          s_add_u32 {t0}, {t0}, {t1}
          v_lshrrev_b32 v8, 2, {vL}
          v_add_u32 v8, {t0}, v8
          v_mul_u32_u24 v8, 1280, v8""")
    swz("v4", vG, "v5")
    a(f"""v_xor_b32 v4, v4, {vL}
          v_and_b32 v4, 3, v4
          s_mul_i32 {t1}, {sKH}, 640
          v_lshl_add_u32 v8, v4, 4, v8
          v_add_u32 v8, {t1}, v8""")
    if OPT["stamps"]:
        a(f"""s_lshl_b32 s{sST+2}, s2, 3
              s_add_u32 s{sST+2}, s{sST+2}, {sW}
              s_lshl_b32 s{sST+2}, s{sST+2}, 8
              s_add_u32 s{sST+2}, s{sST+2}, {WS_DBG}
              v_mov_b32 v0, 0""")
        stamp(31)
    a(f"""s_cmp_lg_u32 {sWH}, 0
          s_cbranch_scc1 L_proQ
          s_setprio 2
          v_mov_b32 v4, 0
          v_lshlrev_b32 v5, 2, {vN}
          v_add_u32 v5, {L_CNT}, v5
          ds_write_b32 v5, v4
          s_mul_i32 {t0}, {sCB}, 80
          s_mul_i32 {t1}, {sW4}, 20
          s_add_u32 {t0}, {t0}, {t1}
          v_add_u32 v9, {t0}, v9
          v_mul_u32_u24 v9, 7680, v9
          s_lshl_b32 {t3}, {t3}, 5
          v_add_u32 v9, {t3}, v9
          v_min_u32 v102, 39, {vL}
          s_mul_i32 {t0}, {sW4}, 320
          v_lshl_add_u32 v102, v102, 3, {t0}""")
    mod_dma(sP4)
    a(f"""s_waitcnt lgkmcnt(0)
          global_load_dword v103, v9, {WM}
          s_load_dword {sTAG}, {WS}, 0
          s_cmp_ge_u32 {sCB}, 4
          s_cbranch_scc1 L_proK
          global_load_dwordx2 v[100:101], v102, {CC}""")
    if OPT.get("mfirst"): mod_dma_issue(False)
    a("s_barrier")
    if not OPT.get("mfirst"): mod_dma_issue(False)
    a("s_branch L_prox")
    a.label("L_proK")
    a("s_barrier\ns_branch L_prox")
    a.label("L_proQ")
    if OPT.get("codepf", 1):
        a(f"""s_getpc_b64 s[4:5]
              L_pc:
              s_lshr_b32 {t0}, s2, 3
              s_lshl_b32 {t0}, {t0}, 2
              s_add_u32 {t0}, {t0}, {sW4}
              s_mul_i32 {t0}, {t0}, 384
              v_min_u32 v4, 2, {vL}
              v_lshl_add_u32 v4, v4, 7, {t0}
              v_min_u32 v4, L_codeend-L_pc-4, v4
              global_load_dword v104, v4, s[4:5]""")
    a(f"""s_setprio 1
          s_mul_i32 {t0}, {sBLK}, 10240
          s_mul_i32 {t1}, {sW4}, 2560
          s_add_u32 {t0}, {t0}, {t1}
          v_lshl_add_u32 v9, v9, 7, {t0}
          s_waitcnt lgkmcnt(0)
          global_load_dword v103, v9, {X}
          s_load_dword {sTAG}, {WS}, 0
          s_barrier""")
    a.label("L_prox")
    x_dma()
    a(f"""s_cmp_eq_u32 {sWH}, 0
          s_cbranch_scc1 L_setup
          s_cmp_lt_u32 {sCB}, 4
          s_cbranch_scc1 L_nowkv
          s_bitcmp1_b32 {sCB}, 0
          s_cselect_b64 {T0}, {WV}, {WK}
          v_lshlrev_b32 v10, 4, {vL}
          s_mul_i32 {t0}, {sW4}, 7""")
    for i in range(7):
        a(f"""s_add_u32 {t1}, {t0}, {i}
              s_min_u32 {t1}, {t1}, 24
              s_lshl_b32 {t1}, {t1}, 10
              s_add_u32 m0, {t1}, {L_WKV}
              v_add_u32 v11, {t1}, v10
              global_load_lds_dwordx4 v11, {T0}""")
    a.label("L_nowkv")
    a(f"""s_lshr_b32 {t0}, s2, 3
          s_mul_i32 {t0}, {t0}, 25600
          s_mul_i32 {t1}, {sW4}, 6400
          s_add_u32 {t0}, {t0}, {t1}
          v_min_u32 v10, 49, {vL}
          v_lshl_add_u32 v10, v10, 7, {t0}
          global_load_dword v190, v10, {WQ}
          s_and_b32 {t0}, {sCB}, 3
          s_lshl_b32 {t0}, {t0}, 2
          s_add_u32 {t0}, {t0}, {sW4}
          s_mul_i32 {t0}, {t0}, 384
          s_min_u32 {t0}, {t0}, {KVREC - 384}
          s_mul_i32 {t1}, {sRB}, {KVREC}
          s_add_u32 {t0}, {t0}, {t1}
          s_add_u32 {t0}, {t0}, {WS_KV}
          v_lshl_add_u32 v9, {vL}, 7, {t0}
          s_lshl_b32 {t0}, {sBLK}, 7
          s_add_u32 {t0}, {t0}, {WS_KVF}
          v_mov_b32 v10, {t0}
          v_cmp_gt_u32 vcc, 3, {vL}
          v_cndmask_b32 v9, v10, v9, vcc
          global_load_dword v191, v9, {WS} sc1""")
    a.label("L_setup")
    stamp(0)
    setup()
    a(f"""s_waitcnt lgkmcnt(0)
          s_mul_i32 {sTAG}, {sTAG}, 1664525
          s_add_u32 {sTAG}, {sTAG}, 1013904223
          v_mov_b32 v238, {sTAG}
          s_cmp_lg_u32 {sWH}, 0
          s_cbranch_scc1 L_xwQ
          s_cmp_ge_u32 {sCB}, 4
          s_cbranch_scc1 L_xw0""")
    sil, wr = mod_reads(56, 76)
    a("s_waitcnt vmcnt(15)")
    unpack("v56", "v57", "v100"); unpack("v58", "v59", "v101")
    for i in range(4): a(f"v_mul_f32 v{60+i}, {hex(f2u(-math.log2(math.e)))}, v{56+i}")
    for i in range(4): a(f"v_exp_f32 v{60+i}, v{60+i}")
    for i in range(4): a(f"v_add_f32 v{60+i}, 1.0, v{60+i}")
    for i in range(4): a(f"v_rcp_f32 v{60+i}, v{60+i}")
    for i in range(4): a(f"v_mul_f32 v{60+i}, v{56+i}, v{60+i}")
    a(f"""v_cvt_pk_bf16_f32 v100, v60, v61
          v_cvt_pk_bf16_f32 v101, v62, v63
          v_add_u32 v102, {L_SIL}, v102
          ds_write_b64 v102, v[100:101]
          s_waitcnt lgkmcnt(0)""")
    a(sil)
    a("s_waitcnt vmcnt(10)")
    stamp(20)
    a(wr)
    mod_finish(56, 76, 96, sP4, C_P0, "L_xw0", True, 40)
    stamp(21)
    a("s_waitcnt vmcnt(1)\ns_branch L_ln")
    a.label("L_xwQ")
    a(f"""s_waitcnt vmcnt(9)
          s_cmp_ge_u32 {sCB}, 4
          s_cbranch_scc1 L_ln
          s_waitcnt vmcnt(2)
          s_branch L_ln""")
    a.label("L_xw0")
    a("s_waitcnt vmcnt(0)")

def setup():
    w_dma_patterns(PAT)
    a(f"""v_cmp_eq_u32 {MK_N0}, 0, {vN}
          s_mov_b32 {lo(MK_LO)}, -1
          s_mov_b32 {hi(MK_LO)}, 0
          s_lshl_b32 {sGC}, {sWH}, 2
          s_add_u32 {sGC}, {sGC}, {L_CNT + C_GA}
          s_getreg_b32 {sLOCAL}, hwreg(HW_REG_XCC_ID)
          v_mov_b32 v239, {sLOCAL}
          s_and_b32 {t0}, s2, 7
          s_lshl_b32 {t0}, {t0}, 2
          s_and_b32 {t1}, {sCB}, 3
          s_or_b32 {t0}, {t0}, {t1}
          s_and_b32 {t1}, s2, 0xe0
          s_or_b32 {sFR}, {t0}, {t1}""")
    attn_setup()
    a(f"v_lshrrev_b32 v6, 2, {vN}")
    swz("v4", "v6", "v5")
    a(f"""v_xor_b32 v4, v4, {vG}
          v_lshlrev_b32 v4, 4, v4
          v_lshl_add_u32 v4, {vN}, 6, v4
          s_mul_i32 {t0}, {sW}, 10240
          v_add_u32 {A_XRD}, {t0}, v4
          v_cmp_eq_u32 {OB0}, v6, {vG}
          s_lshl_b32 {t0}, {sW}, 7
          s_add_u32 {t0}, {t0}, {L_LN}
          v_lshl_add_u32 {A_LNW}, {vN}, 3, {t0}
          s_lshl_b32 {t1}, {sKH}, 8
          s_sub_u32 {t0}, {t0}, {t1}
          v_lshl_add_u32 {A_LNR}, {vN}, 3, {t0}
          v_lshl_add_u32 v4, {vG}, 3, v6
          v_mul_u32_u24 v5, 40, v4
          v_and_b32 v4, 3, {vN}
          v_cmp_eq_u32 {OB1}, 1, v4
          v_cmp_eq_u32 {T1}, 2, v4
          v_cmp_eq_u32 {T2}, 3, v4
          v_lshlrev_b32 v4, 3, v4
          s_bitcmp1_b32 {sCB}, 1
          s_cselect_b64 vcc, -1, 0
          v_cndmask_b32 v4, v4, 32, vcc
          s_mul_i32 {t0}, {sKH}, 12800
          s_add_u32 {t0}, {t0}, {L_WKV}
          v_add3_u32 {A_KVW}, v5, v4, {t0}
          v_mul_u32_u24 v8, 40, {vL}
          s_mul_i32 {t0}, {sKH}, 51200
          v_add_u32 v8, {t0}, v8
          s_mul_i32 {t0}, {sKH}, 1280
          s_add_u32 {t0}, {t0}, {L_MODV}
          v_lshl_add_u32 v10, {vG}, 5, {t0}
          s_lshl_b32 {t0}, {sWH}, 10
          s_add_u32 {t0}, {t0}, 2048
          s_mul_i32 {t0}, {t0}, {sTT}
          s_lshl_b32 {t1}, {sWH}, 12
          s_add_u32 {t0}, {t0}, {t1}
          s_lshl_b32 {t1}, {sKH}, 10
          s_add_u32 {t0}, {t0}, {t1}
          s_add_u32 {t0}, {t0}, {L_R2 + 10240}
          v_add_u32 v9, {t0}, {vKA}
          v_lshl_add_u32 v4, {sW}, 6, {vL}
          v_lshrrev_b32 v14, 2, v4
          v_lshlrev_b32 v14, 7, v14
          v_and_b32 v5, 3, v4
          v_lshl_add_u32 v14, v5, 4, v14
          v_add_u32 v14, {WS_MODG}, v14
          v_lshlrev_b32 v15, 4, v4
          v_add_u32 v15, {L_MODV}, v15
          v_mov_b64 v[188:189], 0
          v_mov_b32 v11, 0
          v_mov_b32 v237, 0
          s_cmp_eq_u32 {sWH}, 0
          s_cbranch_scc1 L_setupE""")
    a(f"""v_lshl_add_u32 v7, {sTT}, 4, {vN}
          v_lshrrev_b32 v4, 1, {vG}
          v_and_b32 v5, 1, {vG}
          s_mov_b64 {MK_A}, -1
          s_mov_b64 {MK_B}, 0
          v_mov_b32 v12, 0x3f803f80
          v_mov_b32 v13, 0x3f803f80
          s_bitcmp1_b32 {sCB}, 0
          s_cbranch_scc1 L_kvaV
          s_bitcmp1_b32 {sCB}, 1
          s_cbranch_scc1 L_kvaKr
          s_lshl_b32 {t0}, {sKH}, 10
          v_lshl_add_u32 v11, v4, 9, {t0}
          v_lshl_add_u32 v11, v7, 4, v11
          v_lshl_add_u32 v11, v5, 3, v11
          s_branch L_kvaE""")
    a.label("L_kvaKr")
    a(f"""s_lshl_b32 {t0}, {sKH}, 3
          s_add_u32 {t0}, {t0}, 2048
          v_lshl_add_u32 v11, v7, 4, {t0}
          v_lshlrev_b32 v4, 3, {vN}
          v_add_u32 v4, 2560, v4
          s_mov_b64 {MK_B}, 0x30000
          s_mov_b64 {MK_A}, 0x3ffff
          v_cndmask_b32 v11, v11, v4, {MK_B}
          v_mov_b32 v13, 0x3f80
          s_branch L_kvaE""")
    a.label("L_kvaV")
    a(f"""s_mul_i32 {t0}, {sW4}, 672
          s_add_u32 {t0}, {t0}, 2688
          v_mul_u32_u24 v11, 336, v4
          v_lshl_add_u32 v11, {vN}, 4, v11
          v_lshl_add_u32 v11, v5, 3, v11
          v_add_u32 v11, {t0}, v11
          s_bitcmp1_b32 {sCB}, 1
          s_cbranch_scc0 L_kvaE
          v_add_u32 v11, 256, v11
          v_cmp_ge_u32 {MK_A}, 4, {vN}
          v_cmp_eq_u32 {MK_B}, 4, {vN}""")
    a.label("L_kvaE")
    a(f"""s_mul_i32 {t0}, {sRB}, {KVREC}
          s_add_u32 {t0}, {t0}, {WS_KV}
          v_add_u32 v11, {t0}, v11
          s_lshl_b32 {t0}, {sBLK}, 7
          s_add_u32 {t0}, {t0}, {WS_KVF}
          v_lshl_add_u32 v237, {vL}, 3, {t0}
          s_lshl_b32 {t0}, {sRB}, 2
          s_add_u32 {t0}, {t0}, {sW4}
          s_mul_i32 {t0}, {t0}, 20480
          s_mul_i32 {t1}, {sCB}, 2560
          s_add_u32 {t0}, {t0}, {t1}
          s_add_u32 {t0}, {t0}, {WS_OX}
          v_add_u32 {A_PO1}, {t0}, {vKA}
          s_lshl_b32 {t0}, {sRB}, 1
          s_add_u32 {t0}, {t0}, {sTT}
          s_mul_i32 {t1}, {t0}, 1280
          s_mul_i32 {t2}, {sCB}, 160
          s_add_u32 {t1}, {t1}, {t2}
          s_lshl_b32 {t2}, {t1}, 1
          s_add_u32 {t1}, {t1}, {WS_H2}
          s_add_u32 {t2}, {t2}, {WS_BASE - 160}
          v_min_u32 v4, 29, {vL}
          v_mov_b32 v5, {t1}
          v_mov_b32 v6, {t2}
          v_cmp_gt_u32 vcc, 10, v4
          s_lshl_b32 {t0}, {sP8}, {ASH}
          s_add_u32 {t0}, {t0}, {WS_ACT}
          v_cndmask_b32 v5, v6, v5, vcc
          v_lshl_add_u32 v5, v4, 4, v5
          v_mov_b32 v6, {t0}
          s_cmp_lg_u32 {sKH}, 0
          s_cselect_b64 vcc, -1, 0
          v_cndmask_b32 {A_PO2}, v5, v6, vcc
          v_mov_b32 v192, -1
          v_mov_b32 v193, -1
          v_mov_b32 v194, -1
          v_mov_b32 v195, -1""")
    a.label("L_setupE")
    for i in range(4): a(f"v_mov_b32 v{136+i}, 0x3f803f80")

def layernorm1():
    a.label("L_ln")
    stamp(1)
    for s in range(10): a(f"ds_read_b128 {vr(XR+4*s,4)}, {A_XRD} offset:{L_W + 1024*s}")
    a(f"s_lshl_b32 {t3}, {sW}, 1")
    w_unit_base(WQ, t3, T0, t2)
    for s in range(10):
        c1, c2 = ("0", "0") if s == 0 else ("v[140:143]", "v[144:147]")
        a(f"s_waitcnt lgkmcnt({9-s})")
        a(f"v_mfma_f32_16x16x32_bf16 v[140:143], v[136:139], {vr(XR+4*s,4)}, {c1}")
        a(f"v_mfma_f32_16x16x32_bf16 v[144:147], {vr(XR+4*s,4)}, {vr(XR+4*s,4)}, {c2}")
        unpack(vr(NR+8*s), vr(NR+8*s+1), vr(XR+4*s))
        if s >= 5: a(w_piece(T0, t2, s - 5))
    for s in range(3): unpack(vr(NR+8*s+2), vr(NR+8*s+3), vr(XR+4*s+1))
    base_add(T0, T0, 40960)
    a(f"""v_cndmask_b32 v141, v144, v145, {OB1}
          v_cndmask_b32 v141, v141, v146, {T1}
          v_cndmask_b32 v141, v141, v147, {T2}
          s_mov_b64 exec, {OB0}
          ds_write_b64 {A_LNW}, v[140:141]
          s_mov_b64 exec, -1""")
    for s in range(3, 10): unpack(vr(NR+8*s+2), vr(NR+8*s+3), vr(XR+4*s+1))
    a(f"""s_waitcnt vmcnt(7) lgkmcnt(0)
          s_barrier
          ds_read_b64 v[4:5], {A_LNR}
          ds_read_b64 v[6:7], {A_LNR} offset:256""")
    for s in range(10):
        unpack(vr(NR+8*s+4), vr(NR+8*s+5), vr(XR+4*s+2)); unpack(vr(NR+8*s+6), vr(NR+8*s+7), vr(XR+4*s+3))
        if s % 2: a(w_piece(T0, t2, 5 + s // 2))
    a(f"""s_waitcnt lgkmcnt(0)
          v_pk_add_f32 v[4:5], v[4:5], v[6:7]
          v_mul_f32 v4, {hex(f2u(-1/640))}, v4
          v_mul_f32 v5, {hex(f2u(1/640))}, v5
          v_fma_f32 v5, -v4, v4, v5
          v_max_f32 v5, 0, v5
          v_add_f32 v5, {hex(f2u(1e-5))}, v5
          v_rsq_f32 v6, v5
          s_add_u32 {t3}, {sW4}, 16
          v_mul_f32 v4, v4, v6""")
    w_unit_base(WQ, t3, T0, t2)
    a(f"s_cmp_eq_u32 {sWH}, 0\ns_cbranch_scc1 L_nrmA")
    for grp in "BA":
        if grp == "A": a.label("L_nrmA")
        for s in range(10):
            for j in range(2): a(f"ds_read_b64_tr_b16 {vr(KVW+4*s+2*j,2)}, {A_KVW} offset:{s*1280 + j*160}")
            for i in range(4):
                r = NR + 8*s + 2*i
                a(f"v_pk_fma_f32 {vr(r,2)}, {vr(r,2)}, v[6:7], v[4:5] op_sel_hi:[1,0,0]")
            if grp == "B":
                if s < 5: a(w_piece(T0, t2, s))
                elif s < 8: a(f"global_store_dwordx4 {A_PO1}, v[192:195], {WS} offset:{(0, 1024, 1536)[s-5]} sc1")
                elif s == 8: a(f"global_store_dwordx4 {A_PO2}, v[192:195], {WS} sc1")
        if grp == "B": a("s_branch L_nrmE")
    a.label("L_nrmE")

QAC, QW = 96, (56, 76, 116)
def wq_read(k):
    s, t = divmod(k, 5)
    return "\n".join(f"ds_read_b64_tr_b16 {vr(QW[s % 3]+4*t+2*j,2)}, v8 offset:{s*5120 + j*2560 + 8*t}" for j in range(2))
def as_reads(s):
    r = (184, 200, 216)[s % 3]
    return "\n".join([f"ds_read_b128 {vr(r,4)}, v10 offset:{2560 + s*128}", f"ds_read_b128 {vr(r+8,4)}, v10 offset:{s*128}",
                      f"ds_read_b128 {vr(r+4,4)}, v10 offset:{2560 + s*128 + 16}", f"ds_read_b128 {vr(r+12,4)}, v10 offset:{s*128 + 16}"])
def group_sync(va, vb):
    a(f"s_add_u32 {sGEN}, {sGEN}, 4")
    lds_signal(sGC, va, vb)
    return lambda: lds_wait(sGEN, va, vb)

QD = 7
def qkv():
    stamp(2)
    a(f"s_cmp_ge_u32 {sW}, 5\ns_cbranch_scc1 L_modok")
    poll(f"global_load_dwordx4 v[16:19], v14, {WS} sc1",
         f"v_cmp_ne_u32 vcc, {sTAG}, v17\nv_cmp_ne_u32 {T0}, {sTAG}, v19\ns_or_b64 vcc, vcc, {T0}")
    unpack("v20", "v21", "v16"); unpack("v22", "v23", "v18")
    a("ds_write_b128 v15, v[20:23]")
    a.label("L_modok")
    a("s_waitcnt vmcnt(0) lgkmcnt(0)\ns_barrier")
    stamp(3)
    a(as_reads(0)); a(as_reads(1))
    a(f"""s_cmp_lg_u32 {sW}, 7
          s_cbranch_scc1 L_noxf
          s_lshl_b32 {t0}, {sBLK}, 7
          s_add_u32 {t0}, {t0}, {WS_XF}
          v_lshl_add_u32 v4, {vL}, 3, {t0}
          s_mov_b64 exec, 0xffff
          global_store_dwordx2 v4, v[238:239], {WS} sc1
          s_mov_b64 exec, -1""")
    a.label("L_noxf")
    a(f"""s_add_u32 {sM2}, {sP4}, 128
          s_cmp_lt_u32 {sCB}, 4
          s_cselect_b32 {sCG}, {sWH}, 0
          s_cmp_lt_u32 {sM2}, 240
          s_cselect_b32 {sCG}, {sCG}, 0
          s_cmp_eq_u32 {sCG}, 0
          s_cbranch_scc1 L_nom2
          v_mov_b32 v14, v10""")
    mod_dma(sM2)
    mod_dma_issue()
    a("v_mov_b32 v10, v14")
    a.label("L_nom2")
    a(f"s_bitcmp1_b32 {sCB}, 0\ns_cbranch_scc1 L_hV")
    for typ in "KV":
        if typ == "V": a.label("L_hV")
        for s in range(10):
            r, h = (184, 200, 216)[s % 3], XR + 4 * s
            if s < 8: a(as_reads(s + 2))
            a(f"s_waitcnt lgkmcnt({8 if s < 8 else (4 if s == 8 else 0)})")
            for i in range(4):
                a(f"v_pk_fma_f32 {vr(NR+8*s+2*i,2)}, {vr(NR+8*s+2*i,2)}, {vr(r+2*i,2)}, {vr(r+8+2*i,2)}")
                if i == 1 and s > 0:
                    A, B = vr(KVW+4*(s-1), 4), vr(h-4, 4)
                    if typ == "V": A, B = B, A
                    a(f"v_mfma_f32_16x16x32_bf16 {vr(KVA,4)}, {A}, {B}, {'0' if s == 1 else vr(KVA,4)}")
            for i in range(4):
                a(f"v_cvt_pk_bf16_f32 {vr(h+i)}, {vr(NR+8*s+2*i)}, {vr(NR+8*s+2*i+1)}")
        A, B = vr(KVW+36, 4), vr(XR+36, 4)
        if typ == "V": A, B = B, A
        a(f"v_mfma_f32_16x16x32_bf16 {vr(KVA,4)}, {A}, {B}, {vr(KVA,4)}")
        if typ == "K": a("s_branch L_hdone")
    a.label("L_hdone")
    stamp(4)
    a(f"""s_mul_i32 {t2}, {sWH}, 10240
          s_add_u32 {t2}, {t2}, {L_R2}
          s_lshl_b32 {t0}, {sTT}, 11
          s_mul_i32 {t1}, {sTT}, 3072
          s_add_u32 {t1}, {t1}, 4096
          s_cmp_eq_u32 {sKH}, 0
          s_cselect_b32 {t3}, {t0}, {t1}
          s_cselect_b32 {t1}, {t1}, {t0}
          ds_write_b128 v9, {vr(KVA,4)}
          s_add_u32 {t3}, {t3}, {t2}
          s_add_u32 {t1}, {t1}, {t2}
          v_add_u32 v4, {t3}, {vKA}
          v_add_u32 v5, {t1}, {vKA}
          s_cmp_lg_u32 {sWH}, 0
          s_cbranch_scc1 L_kvB""")
    for k in range(QD): a(wq_read(k))
    a(f"s_waitcnt lgkmcnt({2*QD})\ns_barrier\ns_branch L_kvE")
    a.label("L_kvB")
    a(f"""s_waitcnt lgkmcnt(0)
          s_barrier
          s_cmp_lt_u32 {sCB}, 4
          s_cbranch_scc1 L_kvB2
          s_setprio 3
          ds_read_b128 v[136:139], v4
          ds_read_b128 v[140:143], v4 offset:1024
          s_waitcnt lgkmcnt(0)
          v_pk_add_f32 v[136:137], v[136:137], v[140:141]
          v_pk_add_f32 v[138:139], v[138:139], v[142:143]
          v_cvt_pk_bf16_f32 v14, v136, v137
          v_cvt_pk_bf16_f32 v15, v138, v139
          v_cndmask_b32 v14, v14, v12, {MK_B}
          v_cndmask_b32 v15, v15, v13, {MK_B}
          s_mov_b64 exec, {MK_A}
          global_store_dwordx2 v11, v[14:15], {WS} sc1
          s_mov_b64 exec, 1
          v_mov_b32 v12, {L_CNT + C_KVS}
          v_mov_b32 v13, 1""")
    stamp(37)
    a(f"""s_waitcnt vmcnt(0)
          ds_add_rtn_u32 v13, v12, v13
          s_waitcnt lgkmcnt(0)
          v_readfirstlane_b32 {t0}, v13
          s_mov_b64 exec, 0xffff
          s_cmp_lg_u32 {t0}, 3
          s_cbranch_scc1 L_nokf
          global_store_dwordx2 v237, v[238:239], {WS} sc1""")
    a.label("L_nokf")
    a("s_mov_b64 exec, -1\ns_setprio 1")
    stamp(5)
    a.label("L_kvB2")
    for k in range(QD): a(wq_read(k))
    a.label("L_kvE")
    stamp(26)
    for k in range(50):
        s, t = divmod(k, 5)
        if k % 2 == 0: a(f"s_waitcnt lgkmcnt({2 * min(QD - 2, 48 - k)})")
        a(f"v_mfma_f32_16x16x32_bf16 {vr(QAC+4*t,4)}, {vr(QW[s % 3]+4*t,4)}, {vr(XR+4*s,4)}, {'0' if s == 0 else vr(QAC+4*t,4)}")
        if k + QD < 50: a(wq_read(k + QD))
    stamp(27)
    a(f"""s_mul_i32 {sNXT}, {sWH}, {L_Q[0] - L_Q[1]}
          s_sub_u32 {sNXT}, {L_Q[0]}, {sNXT}
          v_mul_u32_u24 v6, 1280, {vG}
          v_add_u32 v6, {sNXT}, v6
          v_lshl_add_u32 v7, {sTT}, 4, {vN}
          v_lshl_add_u32 v9, v7, 4, v6
          v_lshl_add_u32 v10, v7, 3, v6
          s_mov_b32 {lo(T1)}, {hex(f2u(math.log2(math.e) / math.sqrt(20)))}
          s_cmp_lg_u32 {sKH}, 0
          s_cbranch_scc1 L_ex1""")
    for kh, (keep, send) in enumerate((((0, 1, 4), (2, 3)), ((2, 3), (0, 1, 4)))):
        if kh: a.label("L_ex1")
        for i, t in enumerate(send): a(f"ds_write_b128 v4, {vr(QAC+4*t,4)} offset:{1024*i}")
        wait = group_sync("v11", "v12")
        attn_zero()
        wait()
        for i in range(len(keep)): a(f"ds_read_b128 {vr(116+4*i,4)}, v5 offset:{1024*i}")
        for i, t in enumerate(keep):
            r = QAC + 4 * t
            a(f"""s_waitcnt lgkmcnt({len(keep)-1-i})
                  v_pk_add_f32 {vr(r,2)}, {vr(r,2)}, {vr(116+4*i,2)}
                  v_pk_add_f32 {vr(r+2,2)}, {vr(r+2,2)}, {vr(118+4*i,2)}
                  v_pk_mul_f32 {vr(r,2)}, {vr(r,2)}, {T1} op_sel_hi:[1,0]
                  v_pk_mul_f32 {vr(r+2,2)}, {vr(r+2,2)}, {T1} op_sel_hi:[1,0]
                  v_cvt_pk_bf16_f32 {vr(128+2*i)}, {vr(r)}, {vr(r+1)}
                  v_cvt_pk_bf16_f32 {vr(129+2*i)}, {vr(r+2)}, {vr(r+3)}""")
        a(f"ds_write_b128 v9, v[128:131] offset:{512*kh}")
        if not kh: a(f"ds_write_b64 v10, v[132:133] offset:1024\ns_branch L_exd")
    a.label("L_exd")

QA, QB, KVB, SB, OA = 16, 32, 40, 96, 160
vKA, vKB, vV, vIDX, vALO, vOX, vOX2, vAXL = (f"v{i}" for i in range(240, 248))
VSEND, VLW = 248, 252
def kvreg(p):
    b = KVB + 28 * p
    return dict(KA=(b, b + 4), KB=b + 8, V=((b + 12, b + 16), (b + 20, b + 24)))
def ld_ka(p, T, so): return f"buffer_load_dwordx4 {vr(kvreg(p)['KA'][T],4)}, {vKA}, {SRD}, {so} offen offset:{1024*T} sc1"
def ld_kb(p, so): return f"buffer_load_dwordx4 {vr(kvreg(p)['KB'],4)}, {vKB}, {SRD}, {so} offen sc1"
def ld_v(p, T, j, so): return f"buffer_load_dwordx4 {vr(kvreg(p)['V'][T][j],4)}, {vV}, {SRD}, {so} offen offset:{1344*T + 672*j} sc1"
def q8(p, T, j): return f"v_mfma_f32_32x32x8bf16_1k {vr(SB+16*j,16)}, {vr(kvreg(p)['KB']+2*T,2)}, {vr(QB+2*j,2)}, 0"
def q16(p, T, j): return f"v_mfma_f32_32x32x16_bf16 {vr(SB+16*j,16)}, {vr(kvreg(p)['KA'][T],4)}, {vr(QA+4*j,4)}, {vr(SB+16*j,16)}"
def pv(p, T, j, h): return f"v_smfmac_f32_32x32x32_bf16 {vr(OA+16*j,16)}, {vr(kvreg(p)['V'][T][h],4)}, {vr(SB+16*j+8*h,8)}, {vIDX}"

def tile(p, s, pre=(), mid=(), qk=True):
    T, j = s // 4, s % 4
    X_ = SB + 16 * j
    e = lambda i: f"v_exp_f32 {vr(X_+i)}, {vr(X_+i)}"
    pp, pT, pj = (p, (s - 1) // 4, (s - 1) % 4) if s else (1 - p, 1, 3)
    np_, nT, nj = (p, (s + 2) // 4, (s + 2) % 4) if s < 6 else (1 - p, 0, s - 6)
    a("\n".join([e(0), e(1), pv(pp, pT, pj, 1)] + list(pre) + [e(2), e(3), e(4), e(5), q8(np_, nT, nj) if qk else "", e(6), e(7), e(8), e(9)] +
                list(mid) + [pv(p, T, j, 0), e(10), e(11), e(12), e(13), q16(np_, nT, nj) if qk else "", e(14), e(15)]))

def attn_zero():
    z = kvreg(1)['V'][1][1]
    for i in range(4): a(f"v_mov_b32 {vr(z+i)}, 0")
    for d in (SB + 48, OA, OA + 16, OA + 32, OA + 48):
        a(f"v_mfma_f32_32x32x8bf16_1k {vr(d,16)}, {vr(z,2)}, {vr(z,2)}, 0")

def attn_setup():
    a(f"""v_lshlrev_b32 {vKA}, 4, {vL}
          v_min_u32 {vKB}, 32, {vL}
          v_lshlrev_b32 {vKB}, 4, {vKB}
          v_add_u32 {vKB}, 2048, {vKB}
          v_lshrrev_b32 v4, 5, {vL}
          v_and_b32 v5, 31, {vL}
          v_mul_u32_u24 {vV}, 336, v4
          v_lshl_add_u32 {vV}, v5, 4, {vV}
          v_add_u32 {vV}, 2688, {vV}
          v_mov_b32 v6, 0x40000000
          v_cmp_gt_u32 vcc, 21, v5
          v_mov_b32 {vIDX}, 0xdddddddd
          s_add_u32 s48, {lo(WS)}, {WS_KV}
          v_cndmask_b32 {vV}, v6, {vV}, vcc
          s_addc_u32 s49, {hi(WS)}, 0
          s_mov_b32 s50, {32*KVREC}
          s_mov_b32 s51, 0x20000
          s_mov_b32 {sPASS}, 0
          s_mov_b32 {sGEN}, 0
          v_add_u32 {vAXL}, {L_AL}, {vKA}
          s_lshl_b32 {t0}, {sW4}, 2
          s_add_u32 {t0}, {t0}, {L_AL + 2048}
          v_lshl_add_u32 v14, v5, 4, {t0}
          v_lshlrev_b32 v6, 11, v4
          v_sub_u32 v14, v14, v6
          s_lshl_b32 {t0}, {sW4}, 9
          s_add_u32 {t0}, {t0}, {L_AL}
          v_lshl_add_u32 {vALO}, v5, 4, {t0}
          s_lshl_b32 {t0}, {sRB}, 1
          s_add_u32 {t0}, {t0}, {sWH}
          s_mul_i32 {t1}, {t0}, 40960
          s_mul_i32 {t2}, {sCB}, 2560
          s_add_u32 {t1}, {t1}, {t2}
          s_lshr_b32 {t2}, {sW4}, 1
          s_mul_i32 {t2}, {t2}, 1280
          s_add_u32 {t1}, {t1}, {t2}
          s_add_u32 {t1}, {t1}, {WS_OX}
          v_and_b32 v6, 1, {vG}
          v_mul_u32_u24 v6, 20480, v6
          v_lshl_add_u32 v6, {vN}, 4, v6
          s_and_b32 {t2}, {sW4}, 1
          s_lshl_b32 {t3}, {t2}, 3
          s_add_u32 {t3}, {t3}, {t1}
          v_add_u32 {vOX2}, {t3}, v6
          s_mul_i32 {t2}, {t2}, 768
          s_add_u32 {t1}, {t1}, {t2}
          v_lshl_add_u32 v6, v4, 8, v6
          v_add_u32 {vOX}, {t1}, v6""")
    for j in range(4):
        a(f"""s_add_u32 {t0}, {sW4}, {j + 1}
              s_and_b32 {t0}, {t0}, 3
              s_mul_i32 {t1}, {t0}, 9216
              s_add_u32 {t1}, {t1}, {L_AX}
              v_add_u32 {vr(VSEND+j)}, {t1}, {vKA}
              s_lshl_b32 {t1}, {t0}, 9
              v_add_u32 {vr(VLW+j)}, {t1}, v14""")

def kv_first_loads():
    a(f"""s_mul_i32 {sSOFF}, {sW4}, {8*KVREC}
          s_add_u32 {sNXT}, {sSOFF}, {KVREC}""")
    a("\n".join([ld_ka(0, 0, sSOFF), ld_kb(0, sSOFF), ld_v(0, 0, 0, sSOFF), ld_v(0, 0, 1, sSOFF), ld_ka(0, 1, sSOFF),
                 ld_v(0, 1, 0, sSOFF), ld_v(0, 1, 1, sSOFF), ld_ka(1, 0, sNXT), ld_v(1, 0, 0, sNXT), ld_v(1, 0, 1, sNXT), ld_ka(1, 1, sNXT), ld_kb(1, sNXT)]))

def kv_poll_addr():
    a(f"""s_lshl_b32 {t0}, {sRB}, 10
          s_add_u32 {t0}, {t0}, {WS_XF}
          v_and_b32 v7, 7, {vL}
          v_lshl_add_u32 v7, v7, 7, {t0}
          v_lshrrev_b32 v6, 2, {vL}
          v_and_b32 v13, 3, {vL}
          v_lshl_add_u32 v6, v6, 3, v13
          s_lshl_b32 {t0}, {sW4}, 13
          s_add_u32 {t0}, {t0}, {WS_KVF + 512}
          v_lshl_add_u32 v6, v6, 7, {t0}
          v_cndmask_b32 v6, v7, v6, {MK_LO}""")
def poll_lanes(load, tagreg, sleep=0):
    L, E = uid("L_pm"), uid("L_pme")
    a(f"s_mov_b32 {sSPIN}, {OPT['spin']}")
    a.label(L)
    a(f"""{load}
          s_waitcnt vmcnt(0)
          v_cmp_ne_u32 vcc, {sTAG}, {tagreg}
          s_cbranch_vccz {E}
          s_mov_b64 exec, vcc""")
    if sleep: a(f"s_sleep {sleep}")
    a(f"s_sub_u32 {sSPIN}, {sSPIN}, 1\ns_cbranch_scc0 {L}")
    a.label(E)
    a("s_mov_b64 exec, -1")
def kv_ready(grp):
    if grp == "A":
        for _ in range(OPT.get("kvdelay", 0)): a("s_sleep 4")
        poll_lanes(f"global_load_dwordx2 v[140:141], v6, {WS} sc1", "v140", OPT.get("kvsleep", 0))
        stamp(28)
        kv_first_loads()
        a(f"""v_cmp_ne_u32 vcc, {sLOCAL}, v141
              s_cmp_eq_u32 vcc_hi, 0
              s_cselect_b32 {sLOCAL}, {0 if OPT.get("nolocal") else 1}, 0
              s_lshl_b32 {t0}, {sLOCAL}, 8
              s_add_u32 {t0}, {t0}, 1
              v_mov_b32 v142, {L_CNT + C_KVR}
              v_mov_b32 v143, {t0}
              s_mov_b64 exec, 1
              ds_add_u32 v142, v143
              s_mov_b64 exec, -1""")
    else:
        L = uid("L_kr")
        a(f"v_mov_b32 v142, {L_CNT + C_KVR}\ns_mov_b32 {sSPIN}, {OPT['spin'] * 8}")
        a.label(L)
        a(f"""ds_read_b32 v143, v142
              s_waitcnt lgkmcnt(0)
              v_readfirstlane_b32 {t5}, v143
              s_bitcmp1_b32 {t5}, 2
              s_cbranch_scc1 {L}_e
              s_sleep 1
              s_sub_u32 {sSPIN}, {sSPIN}, 1
              s_cbranch_scc0 {L}""")
        a.label(L + "_e")
        a(f"s_lshr_b32 {sLOCAL}, {t5}, 10")
        stamp(28)
        kv_first_loads()

def touch_addr(grp):
    a(f"""s_lshr_b32 {t0}, s2, 3
          s_lshl_b32 {t0}, {t0}, 2
          s_add_u32 {t0}, {t0}, {sW4}
          s_mov_b64 {OB0}, {WG}
          s_mov_b64 {OB1}, {WU}""")
    if grp == "B":
        a(f"""s_mul_i32 {t1}, {t0}, 6400
              v_min_u32 v8, 49, {vL}
              v_lshl_add_u32 v8, v8, 7, {t1}
              v_min_u32 v9, 9, {vL}
              v_lshlrev_b32 v9, 7, v9
              v_mov_b32 v10, 0
              v_mov_b32 v11, 0
              v_mov_b32 v12, 0""")
        if OPT.get("notouch") == 2: a("v_mov_b32 v8, 0\nv_mov_b32 v9, 0")
        return
    a(f"""s_and_b32 {t1}, s2, 7
          s_sub_u32 {t2}, {t1}, 3
          s_add_u32 {t3}, {t1}, 5
          s_cmp_lt_u32 {t1}, 3
          s_cselect_b32 {t2}, {t3}, {t2}
          s_cmp_gt_u32 {t1}, 4
          s_cselect_b32 {t3}, {t2}, {t3}
          s_sub_u32 {t3}, {t3}, {t2}
          s_lshl_b32 {t2}, {t2}, 7
          s_lshl_b32 {t3}, {t3}, 7
          s_mul_i32 {t0}, {t0}, 27
          v_min_u32 v12, 26, {vL}
          v_add_u32 v12, {t0}, v12
          v_and_b32 v5, 1, v12
          v_lshrrev_b32 v12, 1, v12
          v_mul_u32_u24 v12, 1280, v12
          v_mad_u32_u24 v12, v5, {t3}, v12
          v_add_u32 v12, {t2}, v12
          s_mul_i32 {t0}, {sCB}, 80
          s_mul_i32 {t1}, {sW4}, 20
          s_add_u32 {t0}, {t0}, {t1}
          v_min_u32 v10, 19, {vL}
          v_add_u32 v10, {t0}, v10
          v_mul_u32_u24 v10, 3456, v10
          s_lshl_b32 {t0}, {sP8}, 4
          v_add_u32 v10, {t0}, v10
          s_cmp_lt_u32 {sP8}, 216
          s_cselect_b64 {T1}, -1, 0
          v_cndmask_b32 v10, 0, v10, {T1}
          v_mov_b32 v11, v10""")
    if OPT.get("notouch"): a("v_mov_b32 v10, 0\nv_mov_b32 v11, 0\nv_mov_b32 v12, 0")

def attention():
    wait = group_sync("v134", "v135")
    kv_poll_addr()
    for j in range(4): a(f"v_mov_b64 {vr(QB+2*j,2)}, 0")
    a(f"""v_add_u32 v4, {sNXT}, {vKA}
          v_lshl_add_u32 v5, {vL}, 3, {sNXT}""")
    for j in range(4):
        a(f"""s_add_u32 {t0}, {sW4}, {j + 1}
              s_and_b32 {t0}, {t0}, 3
              s_mul_i32 {t1}, {t0}, 1280
              v_add_u32 {vr(8+j)}, {t1}, v4
              v_add_u32 {vr(12+j)}, {t1}, v5""")
    wait()
    for j in range(4): a(f"ds_read_b128 {vr(QA+4*j,4)}, {vr(8+j)}")
    a(f"s_mov_b64 exec, {MK_LO}")
    for j in range(4): a(f"ds_read_b64 {vr(QB+2*j,2)}, {vr(12+j)} offset:1024")
    a(f"""s_mov_b64 exec, -1
          s_cmp_lg_u32 {sWH}, 0
          s_cbranch_scc1 L_goB""")
    touch_addr("A")
    kv_ready("A")
    a("s_branch L_go")
    a.label("L_goB")
    a("s_setprio 3")
    touch_addr("B")
    kv_ready("B")
    a(f"global_load_dword v228, v8, {WO}\nglobal_load_dword v229, v9, {WR}")
    a(f"s_cmp_eq_u32 {sCG}, 0\ns_cbranch_scc1 L_nom3")
    sil, wr = mod_reads(96, 116)
    a(sil); a("s_waitcnt vmcnt(14)"); a(wr)
    a("s_waitcnt lgkmcnt(0)")
    mod_finish(96, 116, 136, sM2, C_P1, "L_nom3", False, 160)
    a.label("L_nom3")
    a(f"s_setprio 1\ns_waitcnt vmcnt(9) lgkmcnt(0)")
    a("s_branch L_go2")
    a.label("L_attn")
    kv_first_loads()
    a.label("L_go")
    a("s_waitcnt vmcnt(7) lgkmcnt(0)")
    a.label("L_go2")
    stamp(6)
    if OPT.get("alone"): a(f"s_cmp_lg_u32 {sWH}, 0\ns_cbranch_scc1 L_end")
    a("\n".join([q8(0, 0, 0), q16(0, 0, 0), q8(0, 0, 1), q16(0, 0, 1)]))
    a(f"""s_mov_b32 {sLOOP}, 0
          s_mov_b32 {t1}, {sNXT}
          s_add_u32 {t2}, {t1}, {KVREC}""")
    lds_signal(L_CNT + C_BRD, "v4", "v5")
    a("s_nop 0")
    a(".p2align 6")
    a.label("L_loop")
    LP = OPT.get("lp", 0)
    for p in range(2):
        for s in range(8):
            pre, mid = [], []
            touch = [f"global_load_dword v230, v10, {OB0}"] if p == 0 else []
            rot = ["v_mov_b32 v10, v11", "v_mov_b32 v11, v12", f"s_mov_b64 {OB0}, {OB1}", f"s_mov_b64 {OB1}, {WD}"] if p == 0 else []
            adv = [f"s_mov_b32 {t1}, {t2}", f"s_add_u32 {t2}, {t2}, {KVREC}"]
            if p == 1: adv += [f"s_add_u32 {sLOOP}, {sLOOP}, 1", f"s_cmp_lt_u32 {sLOOP}, 3"]
            if LP == 0:
                if s == 1: pre = [ld_v(1 - p, 1, 0, t1), ld_v(1 - p, 1, 1, t1)]
                if s == 2: pre = [ld_ka(p, 0, t2)]
                if s == 4: mid = [f"s_waitcnt vmcnt({8 + p})"]
                if s == 5: pre = [ld_v(p, 0, 0, t2), ld_v(p, 0, 1, t2)]
                if s == 6: pre = [f"s_waitcnt vmcnt({5 + p})", ld_ka(p, 1, t2), ld_kb(p, t2)] + touch; mid = rot
                if s == 7: pre = adv
            if LP == 1:
                if s == 1: pre = [ld_v(1 - p, 1, 0, t1), ld_v(1 - p, 1, 1, t1)]
                if s == 4: mid = [f"s_waitcnt vmcnt({7 + p})"]
                if s == 6: pre = [f"s_waitcnt vmcnt({2 + p})", ld_ka(p, 0, t2), ld_v(p, 0, 0, t2), ld_v(p, 0, 1, t2), ld_ka(p, 1, t2), ld_kb(p, t2)] + touch + adv + rot
            if LP == 9:
                if s == 4: mid = ["s_waitcnt vmcnt(0)"]
                if s == 7: pre = adv
            if LP == 8:
                if s == 4: mid = ["s_waitcnt vmcnt(0)"]
                if s == 6: pre = [ld_v(1 - p, 1, 0, t1), ld_v(1 - p, 1, 1, t1), ld_ka(p, 0, t2), ld_v(p, 0, 0, t2), ld_v(p, 0, 1, t2), ld_ka(p, 1, t2), ld_kb(p, t2)] + adv
            if LP == 7:
                one = {0: ld_v(1 - p, 1, 0, t1), 1: ld_v(1 - p, 1, 1, t1), 2: ld_ka(p, 0, t2), 4: ld_v(p, 0, 0, t2), 5: ld_v(p, 0, 1, t2), 6: ld_kb(p, t2), 7: ld_ka(p, 1, t2)}
                if s in one: pre = [one[s]]
                if s == 4: mid = ["s_waitcnt vmcnt(6)"]
                if s == 6: pre = ["s_waitcnt vmcnt(5)"] + pre
                if s == 7: pre += adv
            tile(p, s, pre, mid)
    a("s_cbranch_scc1 L_loop")
    for s in range(6):
        pre = [ld_v(1, 1, 0, t1), ld_v(1, 1, 1, t1)] if s == 1 else []
        if s == 3:
            pre = [f"s_cmp_eq_u32 {sWH}, 0", f"s_cselect_b32 {t0}, {L_CNT + C_BRD}, {t3}", f"s_cselect_b32 {t3}, 8, 4", f"v_mov_b32 v224, {t0}", "ds_read_b32 v225, v224"]
        if s == 2: pre = [f"s_mov_b32 {t3}, {L_CNT + C_ADONE}"]
        tile(0, s, pre, ["s_waitcnt vmcnt(7)"] if s == 4 else [])
    def sends(j):
        out = [f"ds_write_b128 {vr(VSEND+j)}, {vr(OA+16*j+4*r,4)} offset:{3072*j + 1024*r}" for r in range(3)] if j < 3 else []
        return out + [f"ds_write_b32 {vr(VLW+j)}, {vr(OA+16*j+8)}"]
    a(f"""s_waitcnt vmcnt(0) lgkmcnt(0)
          v_readfirstlane_b32 {t5}, v225
          s_cmp_ge_u32 {t5}, {t3}
          s_cbranch_scc1 L_free""")
    if not OPT.get("diag"): lds_wait(t3, "v224", "v225", sleep=2)
    a.label("L_free")
    a(f"""s_add_u32 {sGEN}, {sGEN}, 4
          v_mov_b32 v226, {sGC}
          v_mov_b32 v227, 1
          s_or_b32 {t0}, {sWH}, {sPASS}
          s_cmp_lg_u32 {t0}, 0
          s_cbranch_scc1 L_lastB""")
    if OPT.get("diag") == 1: a("s_branch L_lastB")
    a(f"""s_mul_i32 {t0}, {sW4}, {5*40960}
          s_mul_i32 {t1}, {sCB}, 160
          s_add_u32 {t0}, {t0}, {t1}
          s_add_u32 {lo(T0)}, {lo(WO)}, {t0}
          s_addc_u32 {hi(T0)}, {hi(WO)}, 0
          s_mul_i32 {t2}, {sW4}, 25600""")
    for var in "AB":
        if var == "B": a.label("L_lastB")
        k = 0
        for p, s in [(0, 6), (0, 7)] + [(1, s) for s in range(8)]:
            dma = [[], [], []]
            if var == "A":
                for slot in range(3 if (s % 2 == 0) else 2):
                    dma[slot] = [f"s_add_u32 m0, {t2}, {L_W + 1024*k}", "s_nop 0", f"global_load_lds_dwordx4 {vr(PAT + k%5)}, {T0}"]
                    if k % 5 == 4: dma[slot] += [f"s_add_u32 {lo(T0)}, {lo(T0)}, 40960", f"s_addc_u32 {hi(T0)}, {hi(T0)}, 0"]
                    k += 1
            pre = sends(s - 6) if (p == 1 and s >= 6) else []
            a("\n".join(dma[2]))
            tile(p, s, pre + dma[0], dma[1], qk=not (p == 1 and s >= 6))
        if var == "A": a("s_branch L_lastE")
    a.label("L_lastE")
    a(pv(1, 1, 3, 1))
    a("\n".join(sends(2) + sends(3)))
    stamp(7)
    if OPT.get("diag"): a(f"s_mov_b64 exec, 1\nv_mov_b32 v4, 0\nv_mov_b32 v5, {sTAG}\nglobal_store_dword v4, v5, {WS}\ns_branch L_end")
    a("""s_waitcnt lgkmcnt(0)
         s_mov_b64 exec, 1
         ds_add_u32 v226, v227
         s_mov_b64 exec, -1""")
    stamp(23)
    lds_wait(sGEN, "v226", "v227")
    stamp(24)
    P = SB
    a(f"""ds_read_b128 {vr(P+44,4)}, {vALO}
          ds_read_b128 {vr(P+36,4)}, {vAXL}
          ds_read_b128 {vr(P+40,4)}, {vAXL} offset:1024""")
    for r in range(3):
        for jj in range(3): a(f"ds_read_b128 {vr(P+12*jj+4*r,4)}, {vr(VSEND+3)} offset:{3072*jj + 1024*r}")
    a("s_waitcnt lgkmcnt(9)")
    for k in (44, 36, 40):
        a(f"v_pk_add_f32 {vr(P+k,2)}, {vr(P+k,2)}, {vr(P+k+2,2)}\nv_add_f32 {vr(P+k)}, {vr(P+k)}, {vr(P+k+1)}")
    lo_ = f2u(2.0 ** -60); span = f2u(2.0 ** 60) - lo_
    a(f"""v_rcp_f32 {vr(P+46)}, {vr(P+44)}
          v_subrev_u32 {vr(P+36)}, {hex(lo_)}, {vr(P+36)}
          v_subrev_u32 {vr(P+40)}, {hex(lo_)}, {vr(P+40)}
          v_max_u32 {vr(P+36)}, {vr(P+36)}, {vr(P+40)}
          v_cmp_lt_u32 vcc, {hex(span)}, {vr(P+36)}""")
    if OPT["force_slow"]: a("s_mov_b64 vcc, -1")
    a(f"""s_cbranch_vccz L_fin
          s_cmp_eq_u32 {sPASS}, 0
          s_cbranch_scc1 L_slow""")
    a.label("L_fin")
    R = P + 48
    for i in range(6):
        if i % 2 == 0: a(f"s_waitcnt lgkmcnt({6 - 3*(i//2)})")
        a(f"""v_pk_add_f32 {vr(OA+48+2*i,2)}, {vr(OA+48+2*i,2)}, {vr(P+2*i,2)}
              v_pk_add_f32 {vr(P+12+2*i,2)}, {vr(P+12+2*i,2)}, {vr(P+24+2*i,2)}
              v_pk_add_f32 {vr(OA+48+2*i,2)}, {vr(OA+48+2*i,2)}, {vr(P+12+2*i,2)}
              v_pk_mul_f32 {vr(OA+48+2*i,2)}, {vr(OA+48+2*i,2)}, {vr(P+46,2)} op_sel_hi:[1,0]
              v_cvt_pk_bf16_f32 {vr(R+i)}, {vr(OA+48+2*i)}, {vr(OA+48+2*i+1)}""")
        if i % 2 == 0: a(f"v_min_u32 {vr(R+i)}, -2, {vr(R+i)}")
        if i == 4: a(f"v_permlane32_swap_b32 {vr(R)}, {vr(R+2)}\nv_permlane32_swap_b32 {vr(R+1)}, {vr(R+3)}")
    a(f"s_bitcmp1_b32 {sW4}, 0\ns_cbranch_scc1 L_finodd")
    peer_store(f"""global_store_dwordx4 {vOX}, {vr(R,4)}, {WS} @
                   s_mov_b64 exec, {MK_LO}
                   global_store_dwordx2 {vOX2}, {vr(R+4,2)}, {WS} offset:512 @""")
    a("s_branch L_fine")
    a.label("L_finodd")
    a(f"""v_permlane32_swap_b32 {vr(R)}, {vr(R+4)}
          v_permlane32_swap_b32 {vr(R+1)}, {vr(R+5)}
          v_cndmask_b32 {vr(R+4)}, {vr(R)}, {vr(R+4)}, {MK_LO}
          v_cndmask_b32 {vr(R+5)}, {vr(R+1)}, {vr(R+5)}, {MK_LO}""")
    peer_store(f"""global_store_dwordx4 {vOX}, {vr(R+2,4)}, {WS} @
                   s_mov_b64 exec, {MK_LO}
                   global_store_dwordx2 {vOX2}, {vr(R,2)}, {WS} offset:512 @""")
    a.label("L_fine")
    a("s_mov_b64 exec, -1")
    stamp(8)
    a(f"s_cmp_lg_u32 {sWH}, 0\ns_cbranch_scc1 L_ffn")

def slow_path():
    a.label("L_slow")
    a(f"""s_waitcnt vmcnt(0) lgkmcnt(0)
          s_mov_b32 {sPASS}, 1
          s_mul_i32 {sSOFF}, {sW4}, {8*KVREC}
          s_mov_b32 {sLOOP}, 0""")
    for j in range(4): a(f"v_mov_b32 {vr(OA+j)}, 0xff800000")
    a.label("L_mx")
    a("\n".join([ld_ka(0, 0, sSOFF), ld_ka(0, 1, sSOFF), ld_kb(0, sSOFF), "s_waitcnt vmcnt(0)"]))
    for T in range(2):
        for j in range(4): a(q8(0, T, j) + "\n" + q16(0, T, j))
        for j in range(4):
            for i in range(8): a(f"v_max3_f32 {vr(OA+j)}, {vr(OA+j)}, {vr(SB+16*j+2*i)}, {vr(SB+16*j+2*i+1)}")
    a(f"""s_add_u32 {sSOFF}, {sSOFF}, {KVREC}
          s_add_u32 {sLOOP}, {sLOOP}, 1
          s_cmp_lt_u32 {sLOOP}, 8
          s_cbranch_scc1 L_mx""")
    for j in range(4):
        a(f"""v_mov_b32 v4, {vr(OA+j)}
              v_permlane32_swap_b32 v4, {vr(OA+j)}
              v_max_f32 {vr(OA+j)}, v4, {vr(OA+j)}
              v_lshrrev_b32 v4, 5, {vL}
              v_lshl_add_u32 {vr(OA+4+j)}, v4, 11, {vr(VLW+j)}
              ds_write_b32 {vr(OA+4+j)}, {vr(OA+j)}""")
    a(f"s_add_u32 {sGEN}, {sGEN}, 4")
    lds_signal(sGC, "v226", "v227")
    lds_wait(sGEN, "v226", "v227")
    a(f"s_lshl_b32 {t0}, {sW4}, 2")
    for j in range(4):
        a(f"v_subrev_u32 {vr(OA+4+j)}, {t0}, {vr(OA+4+j)}\nds_read_b128 {vr(SB+4*j,4)}, {vr(OA+4+j)}")
    a(f"s_add_u32 {sGEN}, {sGEN}, 4")
    lds_signal(sGC, "v226", "v227")
    lds_wait(sGEN, "v226", "v227")
    a(f"s_not_b64 exec, {MK_LO}")
    for j in range(4):
        m = SB + 4 * j
        a(f"""v_max3_f32 {vr(m)}, {vr(m)}, {vr(m+1)}, {vr(m+2)}
              v_max_f32 {vr(m)}, {vr(m)}, {vr(m+3)}
              v_xor_b32 {vr(m)}, 0x80000000, {vr(m)}
              v_and_b32 {vr(m+1)}, 0xffff0000, {vr(m)}
              v_sub_f32 {vr(m)}, {vr(m)}, {vr(m+1)}
              v_and_b32 {vr(m+2)}, 0xffff0000, {vr(m)}
              v_sub_f32 {vr(m)}, {vr(m)}, {vr(m+2)}
              v_lshrrev_b32 {vr(m+1)}, 16, {vr(m+1)}
              v_or_b32 {vr(QB+2*j)}, {vr(m+1)}, {vr(m+2)}
              v_lshrrev_b32 {vr(QB+2*j+1)}, 16, {vr(m)}""")
    a("s_mov_b64 exec, -1")
    attn_zero()
    a("s_branch L_attn")
    a.label("L_codeend")

def allreduce_g(regs, tmp, op="v_add_f32"):
    for swap in ("v_permlane32_swap_b32", "v_permlane16_swap_b32"):
        for i, r in enumerate(regs): a(f"v_mov_b32 {vr(tmp+i)}, {vr(r)}")
        for i, r in enumerate(regs): a(f"{swap} {vr(tmp+i)}, {vr(r)}")
        for i, r in enumerate(regs): a(f"{op} {vr(r)}, {vr(tmp+i)}, {vr(r)}")

def row_allreduce(regs, op):
    for k in (8, 4, 2, 1):
        for r in regs: a(f"{op}_dpp {vr(r)}, {vr(r)}, {vr(r)} row_ror:{k} row_mask:0xf bank_mask:0xf")

OF, OAC, OT, OW = 16, 56, 76, 116
def outproj():
    lds_signal(L_CNT + C_ADONE, "v8", "v9")
    def granule_addr(dst, chunk, tmp, base):
        a(f"""v_lshrrev_b32 {dst}, 2, {chunk}
              v_and_b32 {tmp}, 3, {chunk}
              v_lshlrev_b32 {dst}, 7, {dst}
              v_lshl_add_u32 {dst}, {tmp}, 4, {dst}
              v_add_u32 {dst}, {base}, {dst}""")
    a(f"""v_min_u32 v66, 19, {vL}
          s_mul_i32 {t0}, {sCB}, 20
          v_add_u32 v15, {t0}, v66
          s_mul_i32 {t1}, {sW4}, 5120
          s_add_u32 {t1}, {t1}, {WS_MODG + 80*128}""")
    granule_addr("v8", "v15", "v10", t1)
    a(f"""v_lshlrev_b32 v15, 3, v15
          global_load_dwordx2 v[56:57], v15, {WR}
          v_min_u32 v15, 39, {vL}
          s_mul_i32 {t0}, {sW4}, 40
          v_add_u32 v15, {t0}, v15""")
    granule_addr("v9", "v15", "v10", WS_MODG + 160*128)
    a(f"""v_lshlrev_b32 v15, 3, v15
          global_load_dwordx2 v[58:59], v15, {WR}
          s_lshl_b32 {t1}, {sRB}, 2
          s_add_u32 {t1}, {t1}, {sTT}
          s_lshl_b32 {t2}, {t1}, 4
          v_add_u32 v11, {t2}, {vN}
          v_mul_u32_u24 v11, 1280, v11
          v_mul_u32_u24 v14, 40, {vG}
          s_mul_i32 {t2}, {sCB}, 160
          s_mul_i32 {t3}, {sKH}, 24
          s_add_u32 {t2}, {t2}, {t3}
          v_add_u32 v14, {t2}, v14
          v_add_u32 v11, v14, v11
          s_lshl_b32 {t3}, {sKH}, 4
          v_subrev_u32 v15, {t3}, v11
          global_load_dwordx4 v[4:7], v11, {X}
          global_load_dwordx2 v[12:13], v15, {X} offset:16
          s_lshl_b32 {t0}, {sTT}, 1
          s_or_b32 {t0}, {t0}, {sKH}
          s_mul_i32 {t0}, {t0}, 320
          s_add_u32 {t0}, {t0}, {L_VEC}
          v_lshl_add_u32 v66, v66, 4, {t0}""")
    poll(f"global_load_dwordx4 v[16:19], v8, {WS} sc1\nglobal_load_dwordx4 v[20:23], v9, {WS} sc1",
         f"""v_min3_u32 v24, v17, v19, v21
             v_max3_u32 v25, v17, v19, v21
             v_min_u32 v24, v24, v23
             v_max_u32 v25, v25, v23
             v_xor_b32 v24, {sTAG}, v24
             v_xor_b32 v25, {sTAG}, v25
             v_or_b32 v24, v24, v25
             v_cmp_ne_u32 vcc, 0, v24""", sleep=4)
    def unp4(dst, r0, r1): unpack(vr(dst), vr(dst+1), vr(r0)); unpack(vr(dst+2), vr(dst+3), vr(r1))
    stamp(32)
    unp4(80, 16, 18)
    a(f"""ds_write_b128 v66, v[80:83]
          s_cmp_lg_u32 {sW4}, 2
          s_cbranch_scc1 L_noav""")
    unp4(84, 56, 57)
    a("""v_pk_mul_f32 v[84:85], v[84:85], v[80:81]
         v_pk_mul_f32 v[86:87], v[86:87], v[82:83]
         ds_write_b128 v66, v[84:87] offset:960""")
    a.label("L_noav")
    unp4(88, 20, 22); unp4(92, 58, 59)
    a(f"""v_pk_mul_f32 v[88:89], v[88:89], v[92:93]
          v_pk_fma_f32 v[88:89], v[90:91], v[94:95], v[88:89]
          v_cmp_gt_u32 vcc, 40, {vL}
          v_add_f32 v100, v88, v89
          s_lshl_b32 {t0}, {sW4}, 2
          s_add_u32 {t0}, {t0}, {L_YP}
          v_cndmask_b32 v100, 0, v100, vcc
          v_mov_b32 v101, {t0}""")
    row_allreduce((100,), "v_add_f32")
    allreduce_g((100,), 104)
    a("ds_write_b32 v101, v100")
    lds_signal(L_CNT + C_WO, "v102", "v103")
    a(f"""v_mul_u32_u24 v8, 40, {vL}
          s_mul_i32 {t0}, {sKH}, 51200
          v_add_u32 v8, {t0}, v8
          v_lshlrev_b32 v9, 4, {vL}
          v_mul_u32_u24 v15, 80, {vG}
          s_mul_i32 {t0}, {sKH}, 48
          s_add_u32 {t0}, {t0}, {L_VEC}
          v_add_u32 v15, {t0}, v15
          s_lshl_b32 {t1}, {sRB}, 2
          s_add_u32 {t1}, {t1}, {sTT}
          s_mul_i32 {t2}, {t1}, 20480
          s_mul_i32 {t3}, {sKH}, 10240
          s_add_u32 {t2}, {t2}, {t3}
          s_add_u32 {t2}, {t2}, {WS_OX + 4096}
          s_add_u32 {lo(OB0)}, {lo(WS)}, {t2}
          s_addc_u32 {hi(OB0)}, {hi(WS)}, 0
          s_add_u32 {lo(OB1)}, {lo(OB0)}, 0x2000
          s_addc_u32 {hi(OB1)}, {hi(OB0)}, 0
          s_lshl_b32 {t2}, {t1}, 12
          s_lshl_b32 {t3}, {sCB}, 9
          s_add_u32 {t2}, {t2}, {t3}
          s_lshl_b32 {t3}, {sKH}, 8
          s_add_u32 {t2}, {t2}, {t3}
          s_add_u32 {sSTS}, {t2}, {WS_ST}
          s_lshl_b32 {t4}, {sTT}, 2
          s_add_u32 {t4}, {t4}, {L_CNT + C_PAIR}""")
    orders = ([7, 0, 1, 2, 3, 4, 5, 6, 8, 9], [9, 0, 1, 2, 3, 4, 5, 6, 8, 7])
    def o_load(s): return f"global_load_dwordx4 {vr(OF+4*s,4)}, v9, {OB0 if s < 8 else OB1} offset:{1024*(s%8) - 4096} sc1"
    for s in orders[0]: a(o_load(s))
    lds_wait(4, "v102", "v103", sleep=2)
    stamp(33)
    def wo_reads(s, r):
        return "\n".join(f"ds_read_b64_tr_b16 {vr(r+4*t+2*j,2)}, v8 offset:{s*5120 + j*2560 + 8*t}" for t in range(5) for j in range(2))
    for s in range(7): a(wo_reads(s, OW + 20*s))
    a(wo_reads(7, OT)); a(wo_reads(8, OT + 20))
    lds_signal(L_CNT + C_WC, "v56", "v57")
    stamp(29)
    GA, AV, EX, S1, G = 16, 28, 40, 68, 16
    retry = []
    def stage1(cg):
        order = orders[cg]
        a(f"s_mov_b32 {sSPIN}, {OPT['spin']}")
        for i, s in enumerate(order):
            a(f"s_waitcnt vmcnt({9-i})" + (" lgkmcnt(6)" if i == 9 else ""))
            a.label(f"L_oc{cg}_{s}")
            a(f"""v_max_u32 v10, {vr(OF+4*s)}, {vr(OF+4*s+2)}
                  v_cmp_eq_u32 vcc, -1, v10
                  s_cbranch_vccnz L_or{cg}_{s}""")
            a.label(f"L_ob{cg}_{s}")
            w = {7: OT, 8: OT + 20, 9: OT}.get(s, OW + 20*s)
            for t in range(5):
                a(f"v_mfma_f32_16x16x32_bf16 {vr(OAC+4*t,4)}, {vr(w+4*t,4)}, {vr(OF+4*s,4)}, {'0' if i == 0 else vr(OAC+4*t,4)}")
            if s == 0: a(wo_reads(order[9], OT))
            if s == 6:
                for arr, r in ((0, GA), (4, AV)):
                    for k in range(3): a(f"ds_read_b128 {vr(r+4*k,4)}, v15 offset:{320*arr + 16*k}")
            retry.append(f"""L_or{cg}_{s}:
                  s_sub_u32 {sSPIN}, {sSPIN}, 1
                  s_cbranch_scc1 L_ob{cg}_{s}
                  """ + "\n".join(o_load(k) for k in order[i:]) + f"""
                  s_waitcnt vmcnt({9-i})
                  s_branch L_oc{cg}_{s}""")
        stamp(10 if cg else 34)
        if cg == 0 and OPT.get("lowprio", 2) == 2: a("s_setprio 0")
        a(f"""s_mul_i32 {t0}, {sW4}, 3072
              s_add_u32 {t0}, {t0}, {L_OXC}
              v_add_u32 v10, {t0}, v9
              s_xor_b32 {t0}, {sW4}, 2
              s_mul_i32 {t0}, {t0}, 3072
              s_add_u32 {t0}, {t0}, {L_OXC}
              v_add_u32 v52, {t0}, v9
              s_cmp_lg_u32 {sKH}, 0
              s_cbranch_scc1 L_oe1{cg}""")
        for kh, (keep, send) in enumerate((((0, 1, 2), (3, 4)), ((3, 4), (0, 1, 2)))):
            nk = len(keep)
            if kh: a.label(f"L_oe1{cg}")
            for i, t in enumerate(send): a(f"ds_write_b128 v10, {vr(OAC+4*t,4)} offset:{1024*i}")
            for i, r in enumerate((4, 6, 12)[:nk]):
                unpack(vr(EX+4*i), vr(EX+4*i+1), vr(r)); unpack(vr(EX+4*i+2), vr(EX+4*i+3), vr(r+1))
            lds_signal(t4, "v54", "v55")
            if cg == 0:
                a(f"""v_add_u32 v11, {32*1280}, v11
                      global_load_dwordx4 v[4:7], v11, {X}""")
                if kh == 0: a(f"global_load_dwordx2 v[12:13], v11, {X} offset:16")
            for i, t in enumerate(keep):
                for h in range(2):
                    a(f"v_pk_fma_f32 {vr(X1+4*i+2*h,2)}, {vr(OAC+4*t+2*h,2)}, {vr(GA+4*i+2*h,2)}, {vr(EX+4*i+2*h,2)}")
            lds_wait(2 + 2*cg, "v54", "v55")
            for i in range(nk): a(f"ds_read_b128 {vr(EX+4*i,4)}, v52 offset:{1024*i}")
            for i in range(nk):
                a(f"s_waitcnt lgkmcnt({nk-1-i})")
                for h in range(2):
                    x = X1 + 4*i + 2*h
                    a(f"v_pk_fma_f32 {vr(x,2)}, {vr(EX+4*i+2*h,2)}, {vr(GA+4*i+2*h,2)}, {vr(x,2)}")
                    if i == 0 and h == 0:
                        a(f"""v_pk_mul_f32 {vr(S1+2,2)}, {vr(x,2)}, {vr(x,2)}
                              v_pk_mul_f32 {vr(S1+4,2)}, {vr(x,2)}, {vr(AV,2)}""")
                    else:
                        a(f"""v_pk_add_f32 {vr(S1,2)}, {vr(S1 if (i, h) != (0, 1) else X1,2)}, {vr(x,2)}
                              v_pk_fma_f32 {vr(S1+2,2)}, {vr(x,2)}, {vr(x,2)}, {vr(S1+2,2)}
                              v_pk_fma_f32 {vr(S1+4,2)}, {vr(x,2)}, {vr(AV+4*i+2*h,2)}, {vr(S1+4,2)}""")
            if not kh: a(f"s_branch L_oe2{cg}")
        a.label(f"L_oe2{cg}")
        a(f"""v_add_f32 {vr(G)}, {vr(S1)}, {vr(S1+1)}
              v_add_f32 {vr(G+1)}, {vr(S1+2)}, {vr(S1+3)}
              v_add_f32 {vr(G+2)}, {vr(S1+4)}, {vr(S1+5)}
              v_mov_b32 {vr(G+3)}, {sTAG}
              v_add_u32 v10, {sSTS}, v9""")
        allreduce_g((G, G + 1, G + 2), S1)
        a("s_mov_b64 exec, 0xffff")
        peer_store(f"global_store_dwordx4 v10, {vr(G,4)}, {WS} @")
        a("s_mov_b64 exec, -1")

    FP = OPT.get("fpace", 1)
    a(f"""v_lshrrev_b32 v60, 1, {vL}
          v_and_b32 v61, 1, {vL}
          v_lshlrev_b32 v66, 7, {vL}
          v_add_u32 v66, {40960 - 4096}, v66""")
    lds_wait(4, "v56", "v57", sleep=1)
    a(f"""s_cmp_ge_u32 {sFR}, 148
          s_cbranch_scc1 L_fde
          s_cmp_ge_u32 {sFR}, 108
          s_cbranch_scc1 L_fd2
          s_cmp_eq_u32 {sKH}, 0
          s_cselect_b64 {T0}, {WG}, {WU}
          s_mul_i32 {t0}, {sTT}, {320*3456}
          s_lshl_b32 {t1}, {sFR}, 5
          s_add_u32 {t0}, {t0}, {t1}
          s_add_u32 {lo(T0)}, {lo(T0)}, {t0}
          s_addc_u32 {hi(T0)}, {hi(T0)}, 0
          v_mul_u32_u24 v60, 3456, v60
          v_lshl_add_u32 v60, v61, 4, v60
          s_mul_i32 {t1}, {sTT}, 10240
          s_mul_i32 {t2}, {sKH}, 51200
          s_add_u32 {t2}, {t2}, {t1}""")
    for s in range(10):
        a(f"s_add_u32 m0, {t2}, {L_W + 1024*s}\nglobal_load_lds_dwordx4 v60, {T0}")
        if s < 9: base_add(T0, T0, 32*3456)
        a(f"s_waitcnt vmcnt({FP})")
    a("s_branch L_fde")
    a.label("L_fd2")
    a(f"""s_mul_i32 {t0}, {sW4}, 14
          s_min_u32 {t0}, {t0}, 40
          s_mul_i32 {t0}, {t0}, 40960
          s_sub_u32 {t1}, {sFR}, 108
          s_lshl_b32 {t1}, {t1}, 5
          s_add_u32 {t0}, {t0}, {t1}
          s_add_u32 {lo(T0)}, {lo(WD)}, {t0}
          s_addc_u32 {hi(T0)}, {hi(WD)}, 0
          v_mul_u32_u24 v60, 1280, v60
          v_lshl_add_u32 v60, v61, 4, v60
          s_mul_i32 {t1}, {sTT}, 14336
          s_mul_i32 {t2}, {sKH}, 51200
          s_add_u32 {t2}, {t2}, {t1}""")
    for s in range(14):
        a(f"s_add_u32 m0, {t2}, {L_W + 1024*s}\nglobal_load_lds_dwordx4 v60, {T0}")
        if s < 13: base_add(T0, T0, 40960)
        a(f"s_waitcnt vmcnt({FP})")
    a.label("L_fde")
    a(f"""global_load_dword v67, v66, {OB0} sc1
          global_load_dword v68, v66, {OB0} offset:2048 sc1
          s_waitcnt vmcnt(0)""")
    stamp(36)
    if OPT.get("lowprio", 2) == 1: a("s_setprio 0")
    stage1(0)
    stamp(30)
    stash_addr("v10")
    for i in range(3): a(f"ds_write_b128 v10, {vr(X1+4*i,4)} offset:{1024*i}")
    a(f"s_add_u32 {sSTS}, {sSTS}, 0x2000")
    base_add(OB0, OB0, 40960); base_add(OB1, OB1, 40960)
    a("s_setprio 2\ns_waitcnt vmcnt(0) lgkmcnt(0)")
    stamp(22)
    a("s_barrier")
    stamp(9)
    for s in orders[1]: a(o_load(s))
    stage1(1)
    stamp(11)
    a("s_branch L_stage2")
    for r in retry: a(r)

X1, ST, VE, HP, WN, OP, vOUT = 56, 112, 148, 196, 204, 208, "v214"
def stash_addr(dst):
    a(f"""s_mul_i32 {t0}, {sTT}, 3072
          s_mul_i32 {t1}, {sKH}, 51200
          s_add_u32 {t0}, {t0}, {t1}
          s_add_u32 {t0}, {t0}, {L_W + 28672}
          v_add_u32 {dst}, {t0}, v9""")

def stage2():
    a.label("L_ffn")
    a(f"""v_lshlrev_b32 v9, 4, {vL}
          v_mul_u32_u24 v15, 80, {vG}
          s_mul_i32 {t0}, {sKH}, 48
          s_add_u32 {t0}, {t0}, {L_VEC}
          v_add_u32 v15, {t0}, v15
          s_barrier
          s_setprio 0
          s_lshl_b32 {t1}, {sRB}, 2
          s_add_u32 {t1}, {t1}, {sTT}
          s_lshl_b32 {t2}, {t1}, 4
          v_add_u32 v11, {t2}, {vN}
          v_mul_u32_u24 v11, 1280, v11
          v_mul_u32_u24 v14, 40, {vG}
          s_mul_i32 {t2}, {sCB}, 160
          s_mul_i32 {t3}, {sKH}, 24
          s_add_u32 {t2}, {t2}, {t3}
          v_add_u32 v14, {t2}, v14
          v_add_u32 v11, v14, v11""")
    stash_addr("v10")
    for i in range(3): a(f"ds_read_b128 {vr(X1+4*i,4)}, v10 offset:{1024*i}")
    a.label("L_stage2")
    st_loads = "\n".join(f"global_load_dwordx4 {vr(ST+16*u+4*i,4)}, v105, {WS} offset:{4096*(u-1) + 256*i} sc1" for u in range(2) for i in range(4))
    a(f"""s_lshl_b32 {sCAND}, {sRB}, 1
          s_add_u32 {sCAND}, {sCAND}, 1
          s_sub_u32 {sCAND}, {sCAND}, {sWH}
          s_lshl_b32 {t2}, {sCAND}, 13
          s_add_u32 {t2}, {t2}, {WS_ST + 4096}
          v_lshlrev_b32 v105, 10, {vG}
          v_lshl_add_u32 v105, {vN}, 4, v105
          v_add_u32 v105, {t2}, v105
          v_mov_b32 v4, {L_YP}
          ds_read_b128 v[100:103], v4""")
    for arr in (1, 2, 3):
        for k in range(3): a(f"ds_read_b128 {vr(VE+12*(arr-1)+4*k,4)}, v15 offset:{320*arr + 16*k}")
    a(st_loads)
    a(f"""v_mov_b32 {vOUT}, v11
          v_mov_b32 {vr(WN+2)}, 0
          v_mov_b32 {vr(WN+3)}, {sTAG}
          s_cmp_lg_u32 {sTT}, 0
          s_cselect_b64 {T1}, -1, 0
          s_mul_i32 {t1}, {sCAND}, 1280
          v_add_u32 v13, {t1}, v14
          v_lshlrev_b32 v12, 1, v13
          v_add_u32 v12, {WS_BASE}, v12
          v_add_u32 v13, {WS_H2}, v13
          s_lshl_b32 {t2}, {sCAND}, 7
          s_add_u32 {t2}, {t2}, {WS_WIN}
          v_add_u32 v4, {t2}, v9
          s_waitcnt lgkmcnt(9)
          v_pk_add_f32 v[100:101], v[100:101], v[102:103]
          v_add_f32 v100, v100, v101""")
    bad = [f"v_min_u32 v5, {vr(ST+3)}, {vr(ST+7)}\nv_max_u32 v6, {vr(ST+3)}, {vr(ST+7)}"]
    bad += [f"v_min3_u32 v5, v5, {vr(ST+3+8*i)}, {vr(ST+7+8*i)}\nv_max3_u32 v6, v6, {vr(ST+3+8*i)}, {vr(ST+7+8*i)}" for i in range(1, 4)]
    bad += [f"v_xor_b32 v5, {sTAG}, v5\nv_xor_b32 v6, {sTAG}, v6\nv_or_b32 v5, v5, v6\nv_cmp_ne_u32 vcc, 0, v5"]
    poll(st_loads, "\n".join(bad), issued=True)
    stamp(12)
    for u in range(2):
        b = ST + 16 * u
        a(f"""v_pk_add_f32 {vr(b,2)}, {vr(b,2)}, {vr(b+4,2)}
              v_pk_add_f32 {vr(b+8,2)}, {vr(b+8,2)}, {vr(b+12,2)}
              v_add_f32 {vr(b+2)}, {vr(b+2)}, {vr(b+6)}
              v_add_f32 {vr(b+10)}, {vr(b+10)}, {vr(b+14)}
              v_pk_add_f32 {vr(b,2)}, {vr(b,2)}, {vr(b+8,2)}
              v_add_f32 {vr(b+2)}, {vr(b+2)}, {vr(b+10)}""")
    for i in range(3): a(f"v_permlane16_swap_b32 {vr(ST+i)}, {vr(ST+16+i)}")
    a(f"""v_pk_add_f32 {vr(ST,2)}, {vr(ST,2)}, {vr(ST+16,2)}
          v_add_f32 {vr(ST+2)}, {vr(ST+2)}, {vr(ST+18)}
          v_mov_b64 {vr(ST+16,2)}, {vr(ST,2)}
          v_mov_b32 {vr(ST+18)}, {vr(ST+2)}""")
    for i in range(3): a(f"v_permlane32_swap_b32 {vr(ST+i)}, {vr(ST+16+i)}")
    a(f"""v_pk_add_f32 {vr(ST,2)}, {vr(ST,2)}, {vr(ST+16,2)}
          v_add_f32 {vr(ST+2)}, {vr(ST+2)}, {vr(ST+18)}
          v_mul_f32 {vr(ST)}, {hex(f2u(-1/640))}, {vr(ST)}
          v_mul_f32 {vr(ST+1)}, {hex(f2u(1/640))}, {vr(ST+1)}
          v_fma_f32 {vr(ST+1)}, -{vr(ST)}, {vr(ST)}, {vr(ST+1)}
          v_max_f32 {vr(ST+1)}, 0, {vr(ST+1)}
          v_add_f32 {vr(ST+1)}, {hex(f2u(1e-5))}, {vr(ST+1)}
          v_rsq_f32 {vr(ST+4)}, {vr(ST+1)}
          v_fmac_f32 {vr(ST+2)}, {vr(ST)}, v100
          v_mul_f32 {vr(ST+2)}, {vr(ST+2)}, {vr(ST+4)}
          v_mul_f32 {vr(ST+6)}, {vr(ST)}, {vr(ST+4)}
          v_mov_b32 {vr(WN)}, {vr(ST+2)}
          v_mov_b32 v5, {vr(ST+2)}
          v_mov_b32 {vr(ST+5)}, {vr(ST+4)}
          v_mov_b32 {vr(ST+7)}, {vr(ST+6)}
          v_permlane16_swap_b32 {vr(WN)}, v5
          v_permlane16_swap_b32 {vr(ST+4)}, {vr(ST+5)}
          v_max_f32 {vr(WN)}, {vr(WN)}, v5
          v_permlane16_swap_b32 {vr(ST+6)}, {vr(ST+7)}""")
    fill = [f"v_cndmask_b32 {vr(ST+4)}, {vr(ST+4)}, {vr(ST+5)}, {T1}", f"v_cndmask_b32 {vr(ST+6)}, {vr(ST+6)}, {vr(ST+7)}, {T1}",
            f"s_lshl_b32 {t2}, {sCAND}, 5", f"s_or_b32 {t1}, {sCB}, {sW4}", f"s_lshl_b32 {t3}, {sTT}, 4", "s_waitcnt lgkmcnt(0)"]
    for n, k in enumerate((8, 4, 2, 1)):
        a(f"v_max_f32_dpp {vr(WN)}, {vr(WN)}, {vr(WN)} row_ror:{k} row_mask:0xf bank_mask:0xf")
        a("\n".join(fill[2*n:2*n+2]))
    a(f"""v_cmp_eq_f32 vcc, {vr(ST+2)}, {vr(WN)}
          s_ff1_i32_b32 {sWINT}, vcc_lo
          s_and_b32 {sWINT}, {sWINT}, 31
          s_cmp_lg_u32 {t1}, 0
          s_cbranch_scc1 L_nowin
          s_add_u32 {t2}, {t2}, {sWINT}
          v_mov_b32 {vr(WN+1)}, {t2}
          s_mov_b64 exec, 0xff
          global_store_dwordx4 v4, {vr(WN,4)}, {WS} sc1
          s_mov_b64 exec, -1""")
    a.label("L_nowin")
    a(f"s_sub_u32 {t1}, {sWINT}, {t3}\nv_cmp_eq_u32 {MK_B}, {t1}, {vN}")
    for i in range(6):
        x, h = X1 + 2*i, ST + 8 + 2*i
        a(f"""v_pk_fma_f32 {vr(h,2)}, {vr(x,2)}, {vr(ST+4,2)}, {vr(ST+6,2)} op_sel_hi:[1,0,0]
              v_pk_fma_f32 {vr(h,2)}, {vr(h,2)}, {vr(VE+2*i,2)}, {vr(VE+12+2*i,2)}
              v_cvt_pk_bf16_f32 {vr(HP+i)}, {vr(h)}, {vr(h+1)}""")
        if i % 2 == 0: a(f"v_min_u32 {vr(HP+i)}, -2, {vr(HP+i)}")
    a(f"""s_and_saveexec_b64 {T0}, {MK_B}
          s_cbranch_execz L_noh2
          global_store_dwordx4 v13, {vr(HP,4)}, {WS} sc1
          s_cmp_lg_u32 {sKH}, 0
          s_cbranch_scc1 L_noh2
          global_store_dwordx2 v13, {vr(HP+4,2)}, {WS} offset:16 sc1""")
    a.label("L_noh2")
    a("s_mov_b64 exec, -1")
    for i in range(6):
        x, h = X1 + 2*i, ST + 8 + 2*i
        a(f"""v_pk_fma_f32 {vr(x,2)}, {vr(h,2)}, {vr(VE+24+2*i,2)}, {vr(x,2)}
              v_cvt_pk_bf16_f32 {vr(OP+i)}, {vr(x)}, {vr(x+1)}""")
        if i % 2 == 0: a(f"v_min_u32 {vr(x)}, -2, {vr(x)}")
    a(f"""s_and_saveexec_b64 {T0}, {MK_B}
          s_cbranch_execz L_nobase
          global_store_dwordx4 v12, {vr(X1,4)}, {WS} sc1
          global_store_dwordx4 v12, {vr(X1+4,4)}, {WS} offset:16 sc1
          s_cmp_lg_u32 {sKH}, 0
          s_cbranch_scc1 L_nobase
          global_store_dwordx4 v12, {vr(X1+8,4)}, {WS} offset:32 sc1""")
    a.label("L_nobase")
    a("s_mov_b64 exec, -1")
    stamp(25)

def out_rows():
    E = uid("L_or")
    fl = OPT.get("outflags", "")
    a(f"""s_not_b64 exec, {MK_B}
          global_store_dwordx4 {vOUT}, {vr(OP,4)}, {OUT} {fl}
          s_cmp_lg_u32 {sKH}, 0
          s_cbranch_scc1 {E}
          global_store_dwordx2 {vOUT}, {vr(OP+4,2)}, {OUT} offset:16 {fl}""")
    a.label(E)
    a("s_mov_b64 exec, -1")

def poll_value(loads, regs):
    L, E = uid("L_pv"), uid("L_pve")
    a(f"s_mov_b32 {sSPIN}, {OPT['spin']}")
    a.label(L)
    a(loads)
    a("s_waitcnt vmcnt(0)")
    a(f"v_max_u32 v10, {regs[0]}, {regs[1]}")
    for i in range(2, len(regs), 2): a(f"v_max3_u32 v10, v10, {regs[i]}, {regs[i+1]}")
    a(f"""v_cmp_eq_u32 vcc, -1, v10
          s_cbranch_vccz {E}
          s_mov_b64 exec, vcc
          s_sub_u32 {sSPIN}, {sSPIN}, 1
          s_cbranch_scc0 {L}""")
    a.label(E)
    a("s_mov_b64 exec, -1")

def gemv_bcast(n, FW, FA):
    def bc(s):
        src, dst = FA + 4 * (s // 16), FA + 8 + 4 * (s % 3)
        return "\n".join(f"v_mov_b64_dpp {vr(dst+2*h,2)}, {vr(src+2*h,2)} row_newbcast:{s % 16} row_mask:0xf bank_mask:0xf" for h in range(2))
    a(bc(0))
    for s in range(n):
        if s + 1 < n: a(bc(s + 1))
        d = 176 + 4 * (s % 2)
        a(f"v_mfma_f32_16x16x32_bf16 {vr(d,4)}, {vr(FW+4*s,4)}, {vr(FA+8+4*(s%3),4)}, {'0' if s < 2 else vr(d,4)}")

def find_winner():
    a(f"v_lshlrev_b32 v8, 7, {vL}\nv_add_u32 v8, {WS_WIN}, v8")
    poll_lanes(f"global_load_dwordx4 v[4:7], v8, {WS} sc1", "v7")
    a("v_mov_b32 v9, v4")
    row_allreduce((9,), "v_max_f32")
    allreduce_g((9,), 10, "v_max_f32")
    a(f"""v_cmp_eq_f32 vcc, v4, v9
          s_ff1_i32_b64 {t3}, vcc
          s_and_b32 {t3}, {t3}, 63
          v_readlane_b32 {sWINT}, v5, {t3}
          v_readlane_b32 {sWINR}, v4, {t3}""")

def ffn():
    FW, FA = 16, 96
    a(f"""v_lshlrev_b32 v14, 8, {vG}
          v_lshl_add_u32 v14, {vN}, 3, v14
          s_cmp_ge_u32 {sFR}, 108
          s_cbranch_scc1 L_ffn2
          s_and_b32 {t0}, {sW}, 6
          s_cmp_eq_u32 {t0}, 4
          s_cbranch_scc1 L_ffn1
          s_barrier
          s_barrier""")
    a.label("L_rows")
    stamp(13)
    out_rows()
    endpgm()
    a.label("L_ffn1")
    a(f"""v_and_b32 v4, 2, {vN}
          v_mul_u32_u24 v4, {25600 - 8}, v4
          s_lshl_b32 {t0}, {sTT}, 4
          v_add3_u32 v14, v14, v4, {t0}""")
    for s in range(20):
        a(f"ds_read_b64_tr_b16 {vr(FW+4*s,2)}, v14 offset:{1024*s}\nds_read_b64_tr_b16 {vr(FW+4*s+2,2)}, v14 offset:{1024*s+128}")
    a(f"""v_lshlrev_b32 v12, 4, {vG}
          v_add_u32 v12, {WS_H2}, v12
          v_and_b32 v13, 3, {vN}
          v_lshl_add_u32 v13, v13, 6, v12
          v_add_u32 v13, 1024, v13
          v_lshl_add_u32 v12, {vN}, 6, v12
          s_lshl_b32 {t0}, {sFR}, 1
          s_add_u32 {t0}, {t0}, {sTT}
          s_lshl_b32 {t0}, {t0}, {ASH}
          s_add_u32 {t0}, {t0}, {WS_ACT}
          v_lshl_add_u32 v15, {vG}, 3, {t0}
          s_setprio 3
          s_waitcnt lgkmcnt(0)
          s_barrier""")
    stamp(14)
    find_winner()
    stamp(15)
    a(f"""s_mul_i32 {t0}, {t3}, 1280
          v_add_u32 v12, {t0}, v12
          v_add_u32 v13, {t0}, v13""")
    poll_value(f"global_load_dwordx4 {vr(FA,4)}, v12, {WS} sc1\nglobal_load_dwordx4 {vr(FA+4,4)}, v13, {WS} sc1", [vr(FA+2*i) for i in range(4)])
    gemv_bcast(20, FW, FA)
    a("v_pk_add_f32 v[176:177], v[176:177], v[180:181]\nv_pk_add_f32 v[178:179], v[178:179], v[182:183]")
    for i in range(4): a(f"v_mov_b32 {vr(180+i)}, {vr(176+i)}")
    for i in range(4): a(f"v_permlane32_swap_b32 {vr(176+i)}, {vr(180+i)}")
    for i in range(4): a(f"v_mul_f32 {vr(184+i)}, {hex(f2u(-math.log2(math.e)))}, {vr(176+i)}")
    for i in range(4): a(f"v_exp_f32 {vr(184+i)}, {vr(184+i)}")
    for i in range(4): a(f"v_add_f32 {vr(184+i)}, 1.0, {vr(184+i)}")
    for i in range(4): a(f"v_rcp_f32 {vr(184+i)}, {vr(184+i)}")
    for i in range(4): a(f"v_mul_f32 {vr(176+i)}, {vr(176+i)}, {vr(180+i)}")
    for i in range(4): a(f"v_mul_f32 {vr(176+i)}, {vr(176+i)}, {vr(184+i)}")
    a(f"""v_cvt_pk_bf16_f32 v12, v176, v177
          v_cvt_pk_bf16_f32 v13, v178, v179
          v_min_u32 v12, -2, v12
          s_mov_b64 exec, 0x10001
          global_store_dwordx2 v15, v[12:13], {WS} sc1
          s_mov_b64 exec, -1
          s_barrier""")
    stamp(16)
    a(f"""s_cmp_lg_u32 s2, 0
          s_cbranch_scc1 L_rows
          v_mov_b32 v4, 0
          v_mov_b32 v5, {sTAG}
          s_mov_b64 exec, 1
          global_store_dword v4, v5, {WS}
          s_branch L_rows""")
    a.label("L_ffn2")
    sQ, sS0 = sSTS, sSTL
    a(f"""s_cmp_lt_u32 {sFR}, 148
          s_cselect_b32 {t0}, {sWH}, 0
          s_cmp_lg_u32 {t0}, 0
          s_cbranch_scc1 L_ffn2B
          s_barrier
          s_branch L_rows""")
    a.label("L_ffn2B")
    a(f"""s_sub_u32 {sQ}, {sFR}, 108
          s_mul_i32 {sS0}, {sW4}, 14
          s_min_u32 {sS0}, {sS0}, 40
          s_and_b32 {t1}, {sW4}, 1
          s_mul_i32 {t1}, {t1}, 14336
          s_lshr_b32 {t2}, {sW4}, 1
          s_mul_i32 {t2}, {t2}, 51200
          s_add_u32 {t2}, {t2}, {t1}
          v_add_u32 v14, {t2}, v14
          s_lshl_b32 {t0}, {sQ}, 7
          s_add_u32 {t0}, {t0}, {WS_MODG + 200*128}
          v_lshl_add_u32 v12, {vG}, 4, {t0}""")
    for s in range(14):
        a(f"ds_read_b64_tr_b16 {vr(FW+4*s,2)}, v14 offset:{1024*s}\nds_read_b64_tr_b16 {vr(FW+4*s+2,2)}, v14 offset:{1024*s+128}")
    a(f"""s_waitcnt lgkmcnt(0)
          s_cmp_lg_u32 {sW4}, 3
          s_cbranch_scc1 L_f2full""")
    for i in range(8): a(f"v_mov_b32 {vr(FW+i)}, 0")
    a.label("L_f2full")
    a(f"s_cmp_lg_u32 {sW4}, 0\ns_cbranch_scc1 L_noc0")
    for k in range(3):
        a(f"""v_add_u32 v4, {64*k}, {vL}
              v_min_u32 v4, 159, v4
              v_lshlrev_b32 v5, 3, v4
              global_load_dwordx2 {vr(112+2*k,2)}, v5, {WR}
              v_lshrrev_b32 {vr(96+k)}, 2, v4
              v_and_b32 v4, 3, v4
              v_lshlrev_b32 {vr(96+k)}, 7, {vr(96+k)}
              v_lshl_add_u32 {vr(96+k)}, v4, 4, {vr(96+k)}
              v_add_u32 {vr(96+k)}, {WS_MODG + 120*128}, {vr(96+k)}""")
    poll("\n".join(f"global_load_dwordx4 {vr(100+4*k,4)}, {vr(96+k)}, {WS} sc1" for k in range(3)),
         f"""v_min3_u32 v4, v101, v103, v105
             v_max3_u32 v5, v101, v103, v105
             v_min3_u32 v4, v4, v107, v109
             v_max3_u32 v5, v5, v107, v109
             v_min_u32 v4, v4, v111
             v_max_u32 v5, v5, v111
             v_xor_b32 v4, {sTAG}, v4
             v_xor_b32 v5, {sTAG}, v5
             v_or_b32 v4, v4, v5
             v_cmp_ne_u32 vcc, 0, v4""", sleep=4)
    a("v_mov_b32 v128, 0")
    for k in range(3):
        unpack("v120", "v121", vr(100+4*k)); unpack("v122", "v123", vr(102+4*k))
        unpack("v124", "v125", vr(112+2*k)); unpack("v126", "v127", vr(113+2*k))
        if k == 2: a(f"s_mov_b64 exec, {MK_LO}")
        for i in range(4): a(f"v_fmac_f32 v128, {vr(120+i)}, {vr(124+i)}")
    a("s_mov_b64 exec, -1")
    row_allreduce((128,), "v_add_f32")
    allreduce_g((128,), 129)
    a(f"v_readfirstlane_b32 {sC0}, v128")
    a.label("L_noc0")
    a("s_barrier")
    out_rows()
    stamp(14)
    find_winner()
    stamp(15)
    a(f"""global_load_dwordx4 v[188:191], v12, {WS} sc1
          s_lshl_b32 {t0}, {sW4}, 4
          v_add_u32 v8, {t0}, {vN}
          v_lshlrev_b32 v9, 2, v8
          ds_bpermute_b32 v10, v9, v5
          v_cmp_ne_u32 {MK_A}, {t3}, v8
          v_mul_u32_u24 v8, 2560, v8
          s_lshl_b32 {t0}, {sQ}, 6
          s_add_u32 {t0}, {t0}, {WS_BASE}
          v_lshl_add_u32 v9, {vG}, 4, {t0}
          v_add_u32 v8, v9, v8
          s_mul_i32 {t0}, {t3}, 2560
          v_add_u32 v9, {t0}, v9
          s_lshl_b32 {t0}, {sQ}, 5
          v_lshl_add_u32 v11, {vG}, 3, {t0}
          s_waitcnt lgkmcnt(0)
          v_and_b32 v10, 2047, v10
          v_mul_u32_u24 v10, 1280, v10
          v_add_u32 v15, v11, v10
          s_and_b32 {sWINT}, {sWINT}, 2047
          s_mul_i32 {t0}, {sWINT}, 1280
          v_add_u32 v11, {t0}, v11""")
    poll(f"global_load_dwordx4 v[196:199], v8, {WS} sc1\nglobal_load_dwordx4 v[200:203], v9, {WS} sc1",
         "v_max_u32 v10, v196, v200\nv_cmp_eq_u32 vcc, -1, v10")
    unpack("v192", "v193", "v188"); unpack("v194", "v195", "v190")
    a(f"""v_cvt_pk_bf16_f32 v12, v196, v197
          v_cvt_pk_bf16_f32 v13, v198, v199
          s_mov_b64 exec, {MK_A}
          global_store_dwordx2 v15, v[12:13], {OUT}
          s_mov_b64 exec, -1
          v_mov_b32 v204, {sWINR}
          v_add_f32 v204, {sC0}, v204
          v_mul_f32 v204, {hex(f2u(-math.log2(math.e)))}, v204
          v_exp_f32 v204, v204
          s_lshl_b32 {t0}, {sS0}, {ASH + 2}
          s_add_u32 {t0}, {t0}, {WS_ACT}
          v_add_f32 v204, 1.0, v204
          v_rcp_f32 v204, v204
          v_min_u32 v8, 13, {vN}
          v_lshl_add_u32 v8, v8, 2, {vG}
          v_lshl_add_u32 v8, v8, {ASH}, {t0}
          v_pk_mul_f32 v[192:193], v[192:193], v[204:205] op_sel_hi:[1,0]
          v_pk_mul_f32 v[194:195], v[194:195], v[204:205] op_sel_hi:[1,0]
          s_lshl_b32 {t0}, {sW4}, 6
          s_add_u32 {t0}, {t0}, {L_YP}
          v_lshl_add_u32 v9, {vG}, 4, {t0}""")
    stamp(38)
    for _ in range(OPT.get("actdelay", 0)): a("s_sleep 4")
    poll_value(f"global_load_dwordx4 {vr(FA,4)}, v8, {WS} sc1", [vr(FA), vr(FA+2)])
    stamp(16)
    gemv_bcast(14, FW, FA)
    a(f"""v_pk_add_f32 v[176:177], v[176:177], v[180:181]
          v_pk_add_f32 v[178:179], v[178:179], v[182:183]
          s_cmp_eq_u32 {sW4}, 0
          s_cbranch_scc1 L_f2fin
          s_mov_b64 exec, {MK_N0}
          ds_write_b128 v9, v[176:179]
          s_mov_b64 exec, -1""")
    lds_signal(L_CNT + C_Y, "v4", "v5")
    endpgm()
    a.label("L_f2fin")
    a(f"v_mov_b32 v4, {L_CNT + C_Y}")
    lds_wait(3, "v4", "v5")
    a(f"""ds_read_b128 v[180:183], v9 offset:64
          ds_read_b128 v[184:187], v9 offset:128
          ds_read_b128 v[188:191], v9 offset:192
          s_waitcnt lgkmcnt(0)
          v_pk_add_f32 v[176:177], v[176:177], v[180:181]
          v_pk_add_f32 v[178:179], v[178:179], v[182:183]
          v_pk_add_f32 v[184:185], v[184:185], v[188:189]
          v_pk_add_f32 v[186:187], v[186:187], v[190:191]
          v_pk_add_f32 v[176:177], v[176:177], v[184:185]
          v_pk_add_f32 v[178:179], v[178:179], v[186:187]
          v_pk_fma_f32 v[200:201], v[176:177], v[192:193], v[200:201]
          v_pk_fma_f32 v[202:203], v[178:179], v[194:195], v[202:203]
          v_cvt_pk_bf16_f32 v12, v200, v201
          v_cvt_pk_bf16_f32 v13, v202, v203
          s_mov_b64 exec, {MK_N0}
          global_store_dwordx2 v11, v[12:13], {OUT}
          s_mov_b64 exec, -1""")
    stamp(17)
    a.label("L_end")
    endpgm()
    a.label("L_exit")
    a("s_endpgm")

def build(**opt):
    global a
    OPT.update(opt)
    a.lines.clear(); _uid[0] = 0
    prologue(); layernorm1(); qkv(); attention(); outproj(); stage2(); ffn(); slow_path()
    rep = []
    lines, nn = insert_nops(a.lines, rep)
    errs = check_waits(lines)
    head = open(f"cdna_kernels/{NAME}.s.ref").read().split("; Override launch")[0]
    out = head + f"; @launch grid=(256,1,1) block=(512,1,1) lds={LDS_BYTES}\n"
    out += f""".amdgcn_target "amdgcn-amd-amdhsa--gfx950"
.text
.globl {NAME}_kernel
.p2align 8
.type {NAME}_kernel,@function
{NAME}_kernel:
"""
    out += "\n".join(l if l.endswith(":") or l.startswith(".") else "    " + l for l in lines)
    out += f"""
.section .rodata,"a"
.p2align 6
.amdhsa_kernel {NAME}_kernel
  .amdhsa_next_free_vgpr 256
  .amdhsa_next_free_sgpr 100
  .amdhsa_accum_offset 256
  .amdhsa_group_segment_fixed_size 0
  .amdhsa_kernarg_size 120
  .amdhsa_user_sgpr_count 2
  .amdhsa_user_sgpr_kernarg_segment_ptr 1
  .amdhsa_system_sgpr_workgroup_id_x 1
  .amdhsa_float_denorm_mode_32 3
.end_amdhsa_kernel
"""
    return out, rep, errs

if __name__ == "__main__":
    opts = {}
    path = f"cdna_kernels/{NAME}.s"
    for arg in sys.argv[1:]:
        if arg.startswith("-o"): path = arg[2:]
        else:
            k, _, v = arg.partition("="); opts[k] = (int(v) if v.lstrip('-').isdigit() else v.replace('+', ' ')) if v else True
    out, rep, errs = build(**opts)
    open(path, "w").write(out)
    print(f"{path}: {out.count(chr(10))} lines, {len(rep)} nop sites, {sum(r[0] for r in rep)} states")
    if opts.get("verbose"):
        for r in rep: print("  nop", r)
    for e in errs: print("WAIT ERROR:", e)
```
